```python
import torch

def _softmax(x, axis=-1):
    return torch.softmax(x, dim=axis)
def _gelu(x):
    return torch.nn.functional.gelu(x, approximate="tanh")
def _silu(x):
    return torch.nn.functional.silu(x)
def _sigmoid(x):
    return torch.sigmoid(x)
def _layernorm(x, axis=-1, eps=1e-5):
    m = x.mean(dim=axis, keepdim=True)
    v = x.var(dim=axis, keepdim=True, unbiased=False)
    return (x - m) / torch.sqrt(v + eps)
def _scatter_add(tgt, idx, src, axis=0):
    return tgt.clone().index_add_(axis, idx, src)
def _segment_sum(src, seg, n):
    out = torch.zeros((n,) + src.shape[1:], dtype=src.dtype)
    return out.index_add_(0, seg, src)
def _pad(x, pw):
    flat = tuple(v for pair in reversed(pw) for v in pair)
    return torch.nn.functional.pad(x, flat)

kernel_name = 'standalone__moe_arch_mod__prompt'

def setup_inputs():

    _w = (lambda a: (lambda t: t.to(torch.bfloat16) if t.is_floating_point() else t)(torch.as_tensor(a)))
    B, S, D, F, C = 1, 2048, 1024, 3584, 2
    return {
        "x": _w((lambda *s: torch.randn(*s, dtype=torch.bfloat16) * 0.1)(B, S, D)),
        "w_r": _w((lambda *s: torch.randn(*s, dtype=torch.bfloat16) * 0.1)(D)),
        "w_gate": _w((lambda *s: torch.randn(*s, dtype=torch.bfloat16) * 0.1)(D, F)),
        "w_up": _w((lambda *s: torch.randn(*s, dtype=torch.bfloat16) * 0.1)(D, F)),
        "w_down": _w((lambda *s: torch.randn(*s, dtype=torch.bfloat16) * 0.1)(F, D)),
    }

def reference(x, w_r, w_gate, w_up, w_down):
    B, S, D = x.shape
    C = 2
    r = x @ w_r
    idx = torch.argsort(-r, axis=-1)[:, :C]
    idx_e = (lambda x, n, axis: torch.repeat_interleave(x, n, dim=axis))(idx.reshape(B, C, 1), D, axis=2)
    x_sel = (lambda x, i, axis: torch.take_along_dim(x, i, dim=axis))(x, idx_e, axis=1)
    g = _silu(x_sel @ w_gate)
    u = x_sel @ w_up
    y = (g * u) @ w_down
    r_sel = _sigmoid((lambda x, i, axis: torch.take_along_dim(x, i, dim=axis))(r, idx, axis=1))
    y = y * r_sel.reshape(B, C, 1)
    b_off = (torch.arange(B) * S).reshape(B, 1)
    flat_idx = (idx + b_off).reshape(B * C)
    zero = (x * 0.0).reshape(B * S, D)
    upd = _scatter_add(zero, flat_idx, y.reshape(B * C, D), axis=0)
    return x + upd.reshape(B, S, D)
```

```python
KNAME = "standalone__moe_arch_mod__prompt_kernel"
HEADER_COMMENT = """; Kernarg layout for this problem (64 bytes, ptrs only, base s[0:1]):
"""
class Asm:
    def __init__(self):
        self.lines = []
        self.nlab = 0
    def __call__(self, s):
        for l in s.strip("\n").split("\n"):
            self.lines.append(l if l.rstrip().endswith(":") or l.startswith(";") else "    " + l.strip())
    def label(self, base="L"):
        self.nlab += 1
        return f"{base}_{self.nlab}"
    def text(self): return "\n".join(self.lines) + "\n"

def kernel_file(body, grid, block, lds, vgpr, sgpr=102, accum=None, meta=None, extra_comment=""):
    if accum is None: accum = min(256, (vgpr + 3) // 4 * 4)
    s = HEADER_COMMENT
    s += extra_comment
    if meta is not None: s += f"; @meta {meta!r}\n"
    s += f"; @launch grid=({grid},1,1) block=({block},1,1) lds={lds}\n"
    s += f""".amdgcn_target "amdgcn-amd-amdhsa--gfx950"
.text
.globl {KNAME}
.p2align 8
.type {KNAME},@function
{KNAME}:
{body}
.section .rodata,"a"
.p2align 6
.amdhsa_kernel {KNAME}
  .amdhsa_next_free_vgpr {vgpr}
  .amdhsa_next_free_sgpr {sgpr}
  .amdhsa_accum_offset {accum}
  .amdhsa_group_segment_fixed_size 0
  .amdhsa_kernarg_size 64
  .amdhsa_user_sgpr_count 2
  .amdhsa_user_sgpr_kernarg_segment_ptr 1
  .amdhsa_system_sgpr_workgroup_id_x 1
  .amdhsa_float_denorm_mode_32 3
.end_amdhsa_kernel
"""
    return s

X_BYTES = 2048*1024*2
W_BYTES = 1024*3584*2
WS_BYTES = 268435456
STAMP_OFF = 128 << 20

def srd(a, d, base, nbytes):
    a(f"""s_mov_b32 s{d}, s{base}
s_mov_b32 s{d+1}, s{base+1}
s_mov_b32 s{d+2}, {nbytes}
s_mov_b32 s{d+3}, 0x20000""")
```

```python
import sys
from asmlib import *

WS_E    = 0
WS_KEYS = 4096
KSTR    = 2048 + 256
WS_PRE  = 65536
WS_YP   = 524288
MASK    = 0xF80007F8
SPIN    = 1 << 16

class P:
    nrep = 8
    npre = 0
    xmod = ""
    wmod = "nt"
    omod = "sc1"
    store_at = 1
    stamps = False
    rprio = 3

def gen(p):
    a = Asm()
    st = p.stamps
    nstamp = [0]
    def stamp(i):
        if st: a(f"s_memrealtime s[{60+2*i}:{61+2*i}]")
    def stamp_out():
        if not st: return
        a(f"""s_waitcnt lgkmcnt(0)
s_lshl_b32 s44, s2, 4
s_add_u32 s44, s44, s3
s_lshl_b32 s44, s44, 6
s_add_u32 s44, s44, {STAMP_OFF}
s_mov_b64 exec, 1""")
        for i in range(12): a(f"v_mov_b32 v{4+i}, s{60+2*i}")
        a("""v_mov_b32 v3, 0
buffer_store_dwordx4 v[4:7], v3, s[28:31], s44 offen
buffer_store_dwordx4 v[8:11], v3, s[28:31], s44 offen offset:16
buffer_store_dwordx4 v[12:15], v3, s[28:31], s44 offen offset:32""")
    if st:
        for i in range(1, 12): a(f"s_mov_b32 s{60+2*i}, 0")
    stamp(0)
    a(f"""s_load_dwordx8 s[4:11], s[0:1], 0
s_load_dwordx8 s[12:19], s[0:1], 32
s_cmp_ge_u32 s2, 256
s_cbranch_scc1 L_end
v_lshrrev_b32 v1, 6, v0
v_and_b32 v0, 63, v0
v_readfirstlane_b32 s3, v1
s_and_b32 s40, s2, 7
s_lshr_b32 s41, s2, 3
s_mul_i32 s40, s40, 7
s_lshr_b32 s42, s41, 2
s_add_u32 s40, s40, s42          ; s40 = fg
s_and_b32 s41, s41, 3            ; s41 = j
s_lshl_b32 s42, s40, 2
s_add_u32 s42, s42, s41          ; s42 = fg*4+j
s_mov_b32 s22, {X_BYTES}
s_mov_b32 s23, 0x20000
s_mov_b32 s30, {WS_BYTES}
s_mov_b32 s31, 0x20000
s_cmp_lg_u32 s3, 0
s_cbranch_scc1 L_notR""")
    a(f"""s_setprio {p.rprio}
v_lshlrev_b32 v1, 4, v0
s_mov_b32 s26, {X_BYTES}
s_mov_b32 s27, 0x20000
s_mov_b32 s38, 2048
s_mov_b32 s39, 0x20000
s_lshl_b32 s43, s2, 14
v_mov_b32 v84, -1
v_mov_b32 v85, -1
v_mov_b32 v86, -1
v_mov_b32 v87, -1
s_lshl_b32 s44, s42, 10
s_add_u32 s44, s44, {WS_PRE}
s_lshl_b32 s45, s42, 11
s_add_u32 s45, s45, {WS_YP}
s_waitcnt lgkmcnt(0)
s_load_dword s46, s[18:19], {WS_E}
s_mov_b32 s20, s4
s_mov_b32 s21, s5
s_mov_b32 s28, s18
s_mov_b32 s29, s19
s_mov_b32 s36, s6
s_mov_b32 s37, s7
s_mov_b32 s24, s14
s_mov_b32 s25, s15
s_cmp_ge_u32 s2, 224
s_cbranch_scc1 L_noclear
buffer_store_dwordx4 v[84:87], v1, s[28:31], s44 offen sc1
buffer_store_dwordx4 v[84:87], v1, s[28:31], s45 offen sc1
buffer_store_dwordx4 v[84:87], v1, s[28:31], s45 offen offset:1024 sc1
L_noclear:
buffer_load_dwordx4 v[2:5], v1, s[36:39], 0 offen
buffer_load_dwordx4 v[6:9], v1, s[36:39], 0 offen offset:1024""")
    for r in range(8):
        a(f"buffer_load_dwordx4 v[{10+8*r}:{13+8*r}], v1, s[20:23], s43 offen offset:{(r%2)*2048} {p.xmod}")
        a(f"buffer_load_dwordx4 v[{14+8*r}:{17+8*r}], v1, s[20:23], s43 offen offset:{(r%2)*2048+1024} {p.xmod}")
        if r % 2 == 1 and r < 7: a("s_add_u32 s43, s43, 4096")
    stamp(1)
    a(f"""v_lshrrev_b32 v82, 5, v0
v_bfe_u32 v83, v0, 4, 1
v_lshl_or_b32 v82, v83, 1, v82
v_bfe_u32 v83, v0, 3, 1
v_lshl_or_b32 v82, v83, 2, v82
s_lshl_b32 s47, s2, 3
s_sub_u32 s47, 2047, s47
v_sub_u32 v82, s47, v82
v_lshlrev_b32 v88, 5, v0
v_sub_u32 v88, {255*8}, v88
v_subrev_u32 v89, 8, v88
v_subrev_u32 v90, 16, v88
v_subrev_u32 v91, 24, v88
v_mul_u32_u24 v92, {KSTR}, v0
s_lshl_b32 s48, s2, 3
s_add_u32 s48, s48, {WS_KEYS}
v_lshlrev_b32 v93, 5, v0
s_and_b32 s49, s2, {p.nrep-1}
s_mul_i32 s49, s49, {KSTR}
s_add_u32 s49, s49, {WS_KEYS}
s_waitcnt lgkmcnt(0)
s_mul_i32 s50, s46, 0x9E3779B8
s_add_u32 s50, s50, 0x3C6EF372       ; T1
s_xor_b32 s51, s50, 0xA5A5A5A8       ; T2""")
    for r in range(8):
        a(f"s_waitcnt vmcnt({14-2*r})")
        b = 10 + 8*r
        a(f"v_dot2_f32_bf16 v{74+r}, v{b}, v2, 0")
        for q in range(1, 8): a(f"v_dot2c_f32_bf16 v{74+r}, v{b+q}, v{2+q}")
    stamp(2)
    a("""s_nop 2
v_permlane32_swap_b32 v74, v75
v_permlane32_swap_b32 v76, v77
v_permlane32_swap_b32 v78, v79
v_permlane32_swap_b32 v80, v81
v_add_f32 v74, v74, v75
v_add_f32 v76, v76, v77
v_add_f32 v78, v78, v79
v_add_f32 v80, v80, v81
s_nop 0
v_permlane16_swap_b32 v74, v76
v_permlane16_swap_b32 v78, v80
v_add_f32 v74, v74, v76
v_add_f32 v78, v78, v80
s_nop 0
v_add_f32_dpp v75, v74, v74 row_ror:8 row_mask:0xf bank_mask:0xf
v_add_f32_dpp v75, v78, v78 row_ror:8 row_mask:0xf bank_mask:0xc
s_nop 1
v_add_f32_dpp v75, v75, v75 row_half_mirror row_mask:0xf bank_mask:0xf
s_nop 1
v_add_f32_dpp v75, v75, v75 quad_perm:[1,0,3,2] row_mask:0xf bank_mask:0xf
s_nop 1
v_add_f32_dpp v75, v75, v75 quad_perm:[2,3,0,1] row_mask:0xf bank_mask:0xf
v_cmp_u_f32 vcc, v75, v75
v_cvt_pk_bf16_f32 v76, v75, v75
v_ashrrev_i32 v77, 31, v76
v_or_b32 v77, 0x80000000, v77
v_xor_b32 v76, v76, v77
v_lshrrev_b32 v76, 16, v76
v_cndmask_b32 v76, v76, 0, vcc
v_lshl_or_b32 v76, v76, 11, v82      ; key
s_nop 1
v_max_u32_dpp v74, v76, v76 row_ror:8 row_mask:0xf bank_mask:0xf
v_min_u32_dpp v75, v76, v76 row_ror:8 row_mask:0xf bank_mask:0xf
v_mov_b32 v76, v74
v_mov_b32 v77, v75
s_nop 1
v_permlane16_swap_b32 v74, v76
v_permlane16_swap_b32 v75, v77
v_min_u32 v78, v74, v76
v_max_u32 v74, v74, v76
v_max3_u32 v75, v75, v77, v78
v_mov_b32 v76, v74
v_mov_b32 v77, v75
s_nop 1
v_permlane32_swap_b32 v74, v76
v_permlane32_swap_b32 v75, v77
v_min_u32 v78, v74, v76
v_max_u32 v74, v74, v76
v_max3_u32 v75, v75, v77, v78
v_xor_b32 v74, s50, v74
v_xor_b32 v75, s51, v75""")
    a(f"""s_mov_b64 exec, {(1<<p.nrep)-1}
buffer_store_dwordx2 v[74:75], v92, s[28:31], s48 offen sc1
s_mov_b64 exec, -1""")
    stamp(3)
    a(f"""s_mov_b32 s52, {SPIN}
L_poll1:
buffer_load_dwordx4 v[76:79], v93, s[28:31], s49 offen sc1
buffer_load_dwordx4 v[80:83], v93, s[28:31], s49 offen offset:16 sc1
s_sub_u32 s52, s52, 1
s_cbranch_scc1 L_poll1_done
s_waitcnt vmcnt(0)""")
    for e in range(4):
        a(f"v_xor_b32 v{76+2*e}, s50, v{76+2*e}\nv_xor_b32 v{77+2*e}, s51, v{77+2*e}")
    tt = ((0xF0 ^ 0xAA) | (0xCC ^ 0xAA)) & 0xFF
    for e in range(4):
        a(f"v_bitop3_b32 v{84+e}, v{76+2*e}, v{77+2*e}, v{88+e} bitop3:{tt:#x}")
    a(f"""v_or3_b32 v84, v84, v85, v86
v_or_b32 v84, v84, v87
v_and_b32 v84, {MASK:#x}, v84
v_cmp_ne_u32 vcc, 0, v84
s_cbranch_vccnz L_poll1
L_poll1_done:
s_waitcnt vmcnt(0)""")
    stamp(4)
    a("""v_min_u32 v84, v76, v78
v_max_u32 v76, v76, v78
v_max3_u32 v77, v77, v79, v84
v_min_u32 v85, v80, v82
v_max_u32 v80, v80, v82
v_max3_u32 v81, v81, v83, v85
v_min_u32 v84, v76, v80
v_max_u32 v76, v76, v80
v_max3_u32 v77, v77, v81, v84""")
    def merge_dpp(ctrl, masks="row_mask:0xf bank_mask:0xf"):
        a(f"""s_nop 1
v_min_u32_dpp v84, v76, v76 {ctrl} {masks}
v_max_u32_dpp v85, v77, v77 {ctrl} {masks}
v_max_u32_dpp v76, v76, v76 {ctrl} {masks}
v_max_u32 v77, v84, v85""")
    merge_dpp("quad_perm:[1,0,3,2]"); merge_dpp("quad_perm:[2,3,0,1]"); merge_dpp("row_half_mirror"); merge_dpp("row_mirror")
    for sw in ("v_permlane16_swap_b32", "v_permlane32_swap_b32"):
        a(f"""v_mov_b32 v78, v76
v_mov_b32 v79, v77
s_nop 1
{sw} v76, v78
{sw} v77, v79
v_min_u32 v84, v76, v78
v_max_u32 v76, v76, v78
v_max3_u32 v77, v77, v79, v84""")
    a("""v_and_b32 v80, 0x7ff, v76
v_and_b32 v81, 0x7ff, v77
v_sub_u32 v80, 0x7ff, v80
v_sub_u32 v81, 0x7ff, v81
v_lshlrev_b32 v80, 11, v80
v_lshlrev_b32 v81, 11, v81
v_lshlrev_b32 v82, 5, v76
v_lshlrev_b32 v83, 5, v77
v_ashrrev_i32 v84, 31, v82
v_ashrrev_i32 v85, 31, v83
v_not_b32 v84, v84
v_not_b32 v85, v85
v_or_b32 v84, 0x80000000, v84
v_or_b32 v85, 0x80000000, v85
v_xor_b32 v82, v82, v84
v_xor_b32 v83, v83, v85
v_and_b32 v82, 0xffff0000, v82
v_and_b32 v83, 0xffff0000, v83
v_mov_b32 v84, 0
s_mov_b64 exec, 1
ds_write_b128 v84, v[80:83]
s_mov_b64 exec, -1
v_readfirstlane_b32 s52, v80
v_readfirstlane_b32 s53, v81
s_waitcnt lgkmcnt(0)
s_barrier""")
    stamp(5)
    a(f"""s_cmp_lg_u32 s2, 0
s_cbranch_scc1 L_noE
s_add_u32 s46, s46, 1
v_mov_b32 v85, s46
s_mov_b64 exec, 1
buffer_store_dword v85, v84, s[28:31], 0 offen sc1
s_mov_b64 exec, -1
L_noE:""")
    if p.store_at > 1:
        a("s_cmp_ge_u32 s2, 224\ns_cbranch_scc1 L_rstore")
        for i in range(p.store_at - 1): a("s_barrier")
        a("L_rstore:")
    a("s_lshl_b32 s43, s2, 14")
    for r in range(8):
        a(f"""s_cmp_eq_u32 s43, s52
s_cselect_b32 s54, 0x40000000, s43
s_cmp_eq_u32 s43, s53
s_cselect_b32 s54, 0x40000000, s54
buffer_store_dwordx4 v[{10+8*r}:{13+8*r}], v1, s[24:27], s54 offen {p.omod}
buffer_store_dwordx4 v[{14+8*r}:{17+8*r}], v1, s[24:27], s54 offen offset:1024 {p.omod}""")
        if r < 7: a("s_add_u32 s43, s43, 2048")
    stamp(6)
    if st:
        a("s_waitcnt vmcnt(0)"); stamp(7); stamp_out()
    a("s_endpgm")

    a(f"""L_notR:
s_sub_u32 s43, s3, 1                 ; w
s_cmp_ge_u32 s2, 224
s_cbranch_scc1 L_RED
v_lshrrev_b32 v1, 4, v0              ; g
v_and_b32 v2, 15, v0                 ; jj
s_lshl_b32 s44, s41, 8
s_lshl_b32 s45, s43, 6
s_add_u32 s44, s44, s45
s_mul_i32 s45, s44, 7168
s_lshl_b32 s46, s40, 7
s_add_u32 s45, s45, s46
v_and_b32 v3, 7, v2
v_lshlrev_b32 v3, 4, v3
v_mul_u32_u24 v4, {16*7168}, v1
v_add3_u32 v3, v3, v4, s45
v_cmp_gt_u32 vcc, 8, v2
s_mov_b32 s48, 7168
s_mov_b32 s49, 0
s_mov_b32 s34, {W_BYTES}
s_mov_b32 s35, 0x20000
v_lshlrev_b32 v128, 13, v1
v_lshl_or_b32 v128, v2, 4, v128
s_lshl_b32 s46, s40, 6
s_lshl_b32 s47, s43, 4
s_add_u32 s46, s46, s47
s_lshl_b32 s46, s46, 11
s_lshl_b32 s47, s41, 9
s_add_u32 s46, s46, s47
s_add_u32 s47, s46, 4096
s_waitcnt lgkmcnt(0)
v_mov_b32 v4, s10
v_mov_b32 v5, s8
v_mov_b32 v6, s11
v_mov_b32 v7, s9
v_cndmask_b32 v4, v4, v5, vcc
v_cndmask_b32 v5, v6, v7, vcc
v_add_co_u32 v4, vcc, v4, v3
s_mov_b32 s32, s12
s_mov_b32 s33, s13
v_addc_co_u32 v5, vcc, 0, v5, vcc""")
    for m in range(16):
        a(f"global_load_dwordx4 v[{32+4*m}:{35+4*m}], v[4:5], off {p.wmod}")
        if m < 15: a("v_lshl_add_u64 v[4:5], v[4:5], 0, s[48:49]")
    def dload(i):
        m, half = i >> 1, i & 1
        a(f"buffer_load_dwordx4 v[{96+4*i}:{99+4*i}], v128, s[32:35], s{46 + (m>>1)} offen offset:{(m&1)*2048+half*256} {p.wmod}")
    for i in range(p.npre): dload(i)
    stamp(1)
    a("""s_mov_b32 s20, s4
s_mov_b32 s21, s5
s_mov_b32 s28, s18
s_mov_b32 s29, s19
v_and_b32 v3, 1, v0
v_cmp_eq_u32 vcc, 1, v3
v_mov_b32 v4, 0x0c0c0100
v_mov_b32 v5, 0x01000c0c
v_mov_b32 v6, 0x0c0c0302
v_mov_b32 v7, 0x03020c0c
v_cndmask_b32 v4, v4, v5, vcc        ; parity 0
v_cndmask_b32 v5, v6, v7, vcc        ; parity 1
v_bfe_u32 v3, v0, 1, 2
v_mov_b32 v6, 0x0c0c0c0c""")
    for d in range(4):
        a(f"""v_cmp_eq_u32 vcc, {d}, v3
s_nop 1
v_cndmask_b32 v{16+d}, v6, v4, vcc
v_cndmask_b32 v{20+d}, v6, v5, vcc""")
    a(f"""v_lshlrev_b32 v129, 5, v1            ; g*32
s_lshl_b32 s44, s44, 1
v_add_u32 v129, s44, v129
v_and_b32 v3, 8, v0
v_cmp_ne_u32 s[56:57], 0, v3
v_lshlrev_b32 v130, 4, v0            ; lane*16
s_lshl_b32 s50, s43, 10
v_add_u32 v131, s50, v130
v_mov_b32 v3, 0
s_barrier
ds_read_b64 v[4:5], v3
s_waitcnt lgkmcnt(0)
v_cndmask_b32 v4, v4, v5, s[56:57]
v_add_u32 v4, v4, v129
buffer_load_dwordx4 v[8:11], v4, s[20:23], 0 offen
buffer_load_dwordx4 v[12:15], v4, s[20:23], 0 offen offset:16""")
    for i in range(p.npre, 8): dload(i)
    stamp(2)
    a(f"s_waitcnt vmcnt({8-p.npre})")
    stamp(3)
    def perms(dst, src, par):
        for d in range(4): a(f"v_perm_b32 v{dst+d}, v{src}, v{src}, v{16+4*par+d}")
    perms(24, 8, 0)
    for m in range(16):
        cur = 24 + 4*(m & 1); nxt = 24 + 4*((m+1) & 1)
        if m < 15: perms(nxt, 8 + ((m+1) >> 1), (m+1) & 1)
        else: a("s_nop 1")
        a(f"v_mfma_f32_16x16x32_bf16 v[4:7], v[{cur}:{cur+3}], v[{32+4*m}:{35+4*m}], {'0' if m == 0 else 'v[4:7]'}")
    a(f"""s_nop 7
ds_write_b128 v131, v[4:7] offset:64
s_waitcnt lgkmcnt(0)
s_barrier""")
    stamp(4)
    a(f"""s_cmp_lg_u32 s43, 0
s_cbranch_scc1 L_wait_h
ds_read_b128 v[8:11], v130 offset:{64+1024}
ds_read_b128 v[12:15], v130 offset:{64+2048}
ds_read_b128 v[24:27], v130 offset:{64+3072}
s_lshl_b32 s50, s40, 12
s_add_u32 s50, s50, {WS_PRE}
s_lshl_b32 s51, s41, 10
s_add_u32 s52, s50, s51
s_add_u32 s53, s51, 1024
s_and_b32 s53, s53, 4095
s_add_u32 s53, s53, s50
s_add_u32 s54, s51, 2048
s_and_b32 s54, s54, 4095
s_add_u32 s54, s54, s50
s_add_u32 s55, s51, 3072
s_and_b32 s55, s55, 4095
s_add_u32 s55, s55, s50
s_waitcnt lgkmcnt(1)
v_pk_add_f32 v[4:5], v[4:5], v[8:9]
v_pk_add_f32 v[6:7], v[6:7], v[10:11]
s_waitcnt lgkmcnt(0)
v_pk_add_f32 v[12:13], v[12:13], v[24:25]
v_pk_add_f32 v[14:15], v[14:15], v[26:27]
v_pk_add_f32 v[4:5], v[4:5], v[12:13]
v_pk_add_f32 v[6:7], v[6:7], v[14:15]
v_min_u32 v4, -2, v4
v_min_u32 v5, -2, v5
v_min_u32 v6, -2, v6
v_min_u32 v7, -2, v7
buffer_store_dwordx4 v[4:7], v130, s[28:31], s52 offen sc1
s_mov_b32 s58, {SPIN}""")
    stamp(5)
    a(f"""L_poll2:
buffer_load_dwordx4 v[8:11], v130, s[28:31], s53 offen sc1
buffer_load_dwordx4 v[12:15], v130, s[28:31], s54 offen sc1
buffer_load_dwordx4 v[24:27], v130, s[28:31], s55 offen sc1
s_sub_u32 s58, s58, 1
s_cbranch_scc1 L_poll2_done
s_waitcnt vmcnt(0)
v_max3_u32 v28, v8, v9, v10
v_max3_u32 v29, v11, v12, v13
v_max3_u32 v30, v14, v15, v24
v_max3_u32 v31, v25, v26, v27
v_max3_u32 v28, v28, v29, v30
v_max_u32 v28, v28, v31
v_cmp_eq_u32 vcc, -1, v28
s_cbranch_vccnz L_poll2
L_poll2_done:
s_waitcnt vmcnt(0)""")
    stamp(6)
    a(f"""v_pk_add_f32 v[8:9], v[8:9], v[12:13]
v_pk_add_f32 v[10:11], v[10:11], v[14:15]
v_pk_add_f32 v[4:5], v[4:5], v[24:25]
v_pk_add_f32 v[6:7], v[6:7], v[26:27]
v_pk_add_f32 v[4:5], v[4:5], v[8:9]
v_pk_add_f32 v[6:7], v[6:7], v[10:11]
v_cvt_pk_bf16_f32 v8, v4, v5
v_cvt_pk_bf16_f32 v9, v6, v7
s_mov_b32 s50, 0xbfb8aa3b            ; -log2(e)
v_lshlrev_b32 v4, 16, v8
v_and_b32 v5, 0xffff0000, v8
v_lshlrev_b32 v6, 16, v9
v_and_b32 v7, 0xffff0000, v9""")
    for r in range(4): a(f"v_mul_f32 v{8+r}, s50, v{4+r}")
    for r in range(4): a(f"v_exp_f32 v{8+r}, v{8+r}")
    for r in range(4): a(f"v_add_f32 v{8+r}, 1.0, v{8+r}")
    for r in range(4): a(f"v_rcp_f32 v{8+r}, v{8+r}")
    for r in range(4): a(f"v_mul_f32 v{8+r}, v{4+r}, v{8+r}")
    a("""v_cvt_pk_bf16_f32 v12, v8, v9
v_cvt_pk_bf16_f32 v13, v10, v11
v_lshlrev_b32 v8, 16, v12
v_and_b32 v9, 0xffff0000, v12
v_lshlrev_b32 v10, 16, v13
v_and_b32 v11, 0xffff0000, v13""")
    for r in range(4): a(f"v_mul_f32_dpp v{8+r}, v{4+r}, v{8+r} row_ror:8 row_mask:0xf bank_mask:0xf")
    a(f"""v_cvt_pk_bf16_f32 v12, v8, v9
v_cvt_pk_bf16_f32 v13, v10, v11
v_lshrrev_b32 v3, 1, v1
v_lshlrev_b32 v3, 7, v3
v_lshl_or_b32 v3, v2, 4, v3
v_and_b32 v8, 1, v1
v_lshl_or_b32 v3, v8, 3, v3
s_mov_b32 exec_lo, 0x00ff00ff
s_mov_b32 exec_hi, 0x00ff00ff
ds_write_b64 v3, v[12:13] offset:4224
s_mov_b64 exec, -1
s_waitcnt lgkmcnt(0)
L_wait_h:
v_bfe_u32 v3, v0, 3, 1
v_lshlrev_b32 v3, 7, v3
v_lshl_or_b32 v3, v1, 3, v3
s_lshl_b32 s50, s43, 5
v_add_u32 v3, s50, v3
s_barrier
ds_read_b64 v[8:9], v3 offset:4224
s_waitcnt lgkmcnt(0)""")
    stamp(7)
    perms(24, 8, 0)
    a("s_waitcnt vmcnt(0)")
    for m in range(4):
        cur = 24 + 4*(m & 1); nxt = 24 + 4*((m+1) & 1)
        if m < 3: perms(nxt, 8 + ((m+1) >> 1), (m+1) & 1)
        for half in range(2):
            acc = f"v[{4+8*half}:{7+8*half}]"
            i = 2*m + half
            a(f"v_mfma_f32_16x16x32_bf16 {acc}, v[{cur}:{cur+3}], v[{96+4*i}:{99+4*i}], {'0' if m == 0 else acc}")
    a(f"""s_lshl_b32 s50, s43, 11
v_add_u32 v131, s50, v130
s_nop 5
ds_write_b128 v131, v[4:7] offset:4608
ds_write_b128 v131, v[12:15] offset:{4608+1024}
s_waitcnt lgkmcnt(0)
s_barrier""")
    stamp(8)
    a(f"""s_cmp_ge_u32 s43, 2
s_cbranch_scc1 L_ffn_done
s_lshl_b32 s50, s43, 10
v_add_u32 v3, s50, v130
ds_read_b128 v[4:7], v3 offset:4608
ds_read_b128 v[8:11], v3 offset:{4608+2048}
ds_read_b128 v[12:15], v3 offset:{4608+4096}
ds_read_b128 v[24:27], v3 offset:{4608+6144}
s_lshl_b32 s51, s42, 11
s_add_u32 s51, s51, s50
s_add_u32 s51, s51, {WS_YP}
v_lshlrev_b32 v3, 6, v2
v_lshl_or_b32 v3, v1, 4, v3
s_waitcnt lgkmcnt(2)
v_pk_add_f32 v[4:5], v[4:5], v[8:9]
v_pk_add_f32 v[6:7], v[6:7], v[10:11]
s_waitcnt lgkmcnt(0)
v_pk_add_f32 v[12:13], v[12:13], v[24:25]
v_pk_add_f32 v[14:15], v[14:15], v[26:27]
v_pk_add_f32 v[4:5], v[4:5], v[12:13]
v_pk_add_f32 v[6:7], v[6:7], v[14:15]
v_min_u32 v4, -2, v4
v_min_u32 v5, -2, v5
v_min_u32 v6, -2, v6
v_min_u32 v7, -2, v7
buffer_store_dwordx4 v[4:7], v3, s[28:31], s51 offen sc1
L_ffn_done:""")
    stamp(9)
    if st:
        a("s_waitcnt vmcnt(0)"); stamp(10); stamp_out()
    a("s_endpgm")

    a(f"""L_RED:
s_sub_u32 s44, s2, 224               ; hw
s_lshl_b32 s45, s44, 2
s_add_u32 s45, s45, s43
s_lshl_b32 s46, s45, 6
v_lshrrev_b32 v1, 2, v0              ; pc
v_and_b32 v2, 3, v0                  ; sub
v_lshlrev_b32 v3, 13, v1
v_lshl_or_b32 v3, v2, 4, v3
s_add_u32 s47, s46, {16*8192}
s_add_u32 s48, s46, {32*8192}
s_add_u32 s49, s46, {48*8192}
s_mov_b32 s34, {56*8192}
s_mov_b32 s35, 0x20000
s_mov_b32 s26, {X_BYTES}
s_mov_b32 s27, 0x20000
v_bfe_u32 v4, v0, 4, 1
v_bfe_u32 v5, v0, 5, 1
v_lshl_or_b32 v4, v4, 1, v5
v_and_b32 v5, 1, v0
v_lshl_or_b32 v4, v5, 2, v4
s_lshl_b32 s50, s45, 3
v_add_lshl_u32 v4, v4, s50, 1
v_and_b32 v5, 2, v0
v_cmp_ne_u32 s[56:57], 0, v5
v_mov_b32 v5, 0
s_waitcnt lgkmcnt(0)
s_add_u32 s32, s18, {WS_YP}
s_addc_u32 s33, s19, 0
s_mov_b32 s20, s4
s_mov_b32 s21, s5
s_mov_b32 s24, s14
s_mov_b32 s25, s15
s_mov_b32 s28, s18
s_mov_b32 s29, s19
s_barrier
ds_read_b128 v[8:11], v5
s_waitcnt lgkmcnt(0)
v_cndmask_b32 v8, v8, v9, s[56:57]
v_cndmask_b32 v10, v10, v11, s[56:57]
v_add_u32 v4, v4, v8
buffer_load_ushort v6, v4, s[20:23], 0 offen
v_mul_f32 v10, 0xbfb8aa3b, v10
v_exp_f32 v10, v10
s_mov_b32 s58, {SPIN}
v_add_f32 v10, 1.0, v10
v_rcp_f32 v10, v10
s_nop 0
v_cvt_pk_bf16_f32 v10, v10, v10
v_and_b32 v7, 0xffff0000, v10""")
    stamp(2)
    a(f"""L_poll3:
buffer_load_dwordx4 v[8:11], v3, s[32:35], s46 offen sc1
buffer_load_dwordx4 v[12:15], v3, s[32:35], s47 offen sc1
buffer_load_dwordx4 v[16:19], v3, s[32:35], s48 offen sc1
buffer_load_dwordx4 v[20:23], v3, s[32:35], s49 offen sc1
s_sub_u32 s58, s58, 1
s_cbranch_scc1 L_poll3_done
s_waitcnt vmcnt(0)
v_max3_u32 v24, v8, v9, v10
v_max3_u32 v25, v11, v12, v13
v_max3_u32 v26, v14, v15, v16
v_max3_u32 v27, v17, v18, v19
v_max3_u32 v28, v20, v21, v22
v_max3_u32 v24, v24, v25, v23
v_max3_u32 v26, v26, v27, v28
v_max_u32 v24, v24, v26
v_cmp_eq_u32 vcc, -1, v24
s_cbranch_vccnz L_poll3
L_poll3_done:
s_waitcnt vmcnt(0)""")
    stamp(3)
    a(f"""v_pk_add_f32 v[8:9], v[8:9], v[12:13]
v_pk_add_f32 v[10:11], v[10:11], v[14:15]
v_pk_add_f32 v[16:17], v[16:17], v[20:21]
v_pk_add_f32 v[18:19], v[18:19], v[22:23]
v_pk_add_f32 v[8:9], v[8:9], v[16:17]
v_pk_add_f32 v[10:11], v[10:11], v[18:19]
s_nop 1
v_permlane32_swap_b32 v8, v9
v_permlane32_swap_b32 v10, v11
v_add_f32 v8, v8, v9
v_add_f32 v10, v10, v11
s_nop 1
v_permlane16_swap_b32 v8, v10
v_add_f32 v8, v8, v10
s_nop 1
v_add_f32_dpp v8, v8, v8 row_ror:4 row_mask:0xf bank_mask:0xf
s_nop 1
v_add_f32_dpp v8, v8, v8 row_ror:8 row_mask:0xf bank_mask:0xf
v_lshlrev_b32 v6, 16, v6
v_cvt_pk_bf16_f32 v8, v8, v8
v_and_b32 v8, 0xffff0000, v8
v_mul_f32 v8, v8, v7
v_cvt_pk_bf16_f32 v8, v8, v8
v_and_b32 v8, 0xffff0000, v8
v_add_f32 v8, v8, v6
v_cvt_pk_bf16_f32 v8, v8, v8
s_mov_b32 exec_lo, 0x000f000f
s_mov_b32 exec_hi, 0x000f000f
buffer_store_short v8, v4, s[24:27], 0 offen {p.omod}""")
    stamp(4)
    if st:
        a("s_waitcnt vmcnt(0)"); stamp(5); stamp_out()
    a("L_end:\ns_endpgm")
    meta = dict(nwg=256, nwave=5, nst=11) if st else None
    return kernel_file(a.text(), 256, 320, 12800, 136, meta=meta)

if __name__ == "__main__":
    p = P()
    out = sys.argv[1]
    for kv in sys.argv[2:]:
        k, v = kv.split("=")
        setattr(p, k, type(getattr(P, k))(eval(v)) if not isinstance(getattr(P, k), str) else v.replace("+", " "))
    open(out, "w").write(gen(p))
```

```python
import sys, re
from asmlib import *

def wrap(src, sel, M, agg="max"):
    m = re.search(r"; @launch grid=\((\d+),1,1\) block=\((\d+),1,1\) lds=(\d+)", src)
    g, b, l = m.groups()
    nw = int(b)//64
    src = src.replace(m.group(0), f"; @launch kernel={KNAME} grid=({g},1,1) block=({b},1,1) lds={l}\n; @launch kernel=amp_kernel grid=(1,1,1) block=(256,1,1) lds=64")
    a = Asm()
    a(f"""s_load_dwordx2 s[4:5], s[0:1], 56
s_cmp_ge_u32 s2, 1
s_cbranch_scc1 LA_end
v_lshlrev_b32 v1, 10, v0
v_mov_b32 v2, -1
v_mov_b32 v3, {0 if agg == 'max' else -1}
v_mov_b32 v10, 0
s_waitcnt lgkmcnt(0)
s_add_u32 s8, s4, {STAMP_OFF}
s_addc_u32 s9, s5, 0
s_mov_b32 s10, 0x100000
s_mov_b32 s11, 0x20000
ds_write_b64 v10, v[2:3]
s_waitcnt lgkmcnt(0)
s_barrier""")
    for w in range(1):
        a(f"buffer_load_dword v4, v1, s[8:11], 0 offen offset:{w*64}\ns_waitcnt vmcnt(0)\nv_min_u32 v2, v2, v4")
    for (lo, hi, w, st) in sel:
        a(f"""buffer_load_dword v4, v1, s[8:11], 0 offen offset:{w*64+st*4}
v_cmp_le_u32 vcc, {lo}, v0
v_cmp_gt_u32 s[12:13], s14, v0""".replace("v_cmp_gt_u32 s[12:13], s14, v0", f"s_mov_b32 s14, {hi}\nv_cmp_gt_u32 s[12:13], s14, v0"))
        a(f"""s_and_b64 vcc, vcc, s[12:13]
s_waitcnt vmcnt(0)
v_cndmask_b32 v4, v3, v4, vcc
v_{agg}_u32 v3, v3, v4""")
    a(f"""ds_min_u32 v10, v2
ds_{agg}_u32 v10, v3 offset:4
s_waitcnt lgkmcnt(0)
s_barrier
ds_read_b64 v[2:3], v10
s_waitcnt lgkmcnt(0)
v_sub_u32 v2, v3, v2
s_nop 1
v_readfirstlane_b32 s16, v2
s_memrealtime s[18:19]
s_mul_i32 s16, s16, {M}
s_min_u32 s16, s16, 100000
s_waitcnt lgkmcnt(0)
LA_spin:
s_memrealtime s[20:21]
s_waitcnt lgkmcnt(0)
s_sub_u32 s22, s20, s18
s_cmp_lt_u32 s22, s16
s_cbranch_scc1 LA_spin
LA_end:
s_endpgm""")
    amp = f""".text
.globl amp_kernel
.p2align 8
.type amp_kernel,@function
amp_kernel:
{a.text()}
.section .rodata,"a"
.p2align 6
.amdhsa_kernel amp_kernel
  .amdhsa_next_free_vgpr 16
  .amdhsa_next_free_sgpr 32
  .amdhsa_accum_offset 16
  .amdhsa_group_segment_fixed_size 0
  .amdhsa_kernarg_size 64
  .amdhsa_user_sgpr_count 2
  .amdhsa_user_sgpr_kernarg_segment_ptr 1
  .amdhsa_system_sgpr_workgroup_id_x 1
.end_amdhsa_kernel
"""
    return src + amp

if __name__ == "__main__":
    src = open(sys.argv[1]).read()
    open(sys.argv[2], "w").write(wrap(src, eval(sys.argv[3]), int(sys.argv[4]), sys.argv[5] if len(sys.argv) > 5 else "max"))
```

```python
import sys
from asmlib import *

WS_E    = 0
WS_RES  = 4096
WS_RESF = 73728
WS_DONE = 77824
WS_KEYS = 131072
WS_PREA = 393216
WS_PREB = 655360
WS_YP   = 1048576
MASK    = 0xF80007F8
SPIN    = 1 << 16
L_CNT = 24
L_TAGS, L_ROUTE, L_RED1, L_RED2, L_END = 0, 16, 64, 4608, 12800

class P:
    diagland = False
    nagg = 32
    agg_sleep = 5
    red_delay = 0
    npre = 0
    rsleep = 4
    hint = True
    hint_max = 200
    spec = True
    th2 = 4
    pretouch = True
    cpos = 14
    dummy = True
    rdummy = False
    pre_sleep = 3
    nb1 = 6
    xmod = ""
    wmod = ""
    dmod = ""
    omod = ""
    fmod = ""
    store_at = 2
    stamps = False
    light = False
    ediag = 0
    tlbw = False
    cpf = False
    local_res = True
    local_pre = True
    na_pre = 64
    rot = False
    xpre = True

def gen(p):
    a = Asm()
    st = p.stamps
    SV = 119
    def stamp(i):
        if st: a(f"s_memrealtime s[100:101]\ns_waitcnt lgkmcnt(0)\nv_writelane_b32 v{SV}, s100, {i}")
    def stamp_out():
        if p.light:
            a(f"""s_waitcnt vmcnt(0) lgkmcnt(0)
s_memrealtime s[98:99]
s_mov_b64 exec, 1
s_lshl_b32 s20, s2, 4
s_add_u32 s20, s20, s3
s_lshl_b32 s20, s20, 6
s_add_u32 s20, s20, {STAMP_OFF}
v_mov_b32 v3, 0
v_mov_b32 v4, s100
s_waitcnt lgkmcnt(0)
v_mov_b32 v5, s98
buffer_store_dwordx2 v[4:5], v3, s[28:31], s20 offen""")
        if not st: return
        a(f"""s_mov_b64 exec, 0xffff
s_lshl_b32 s20, s2, 4
s_add_u32 s20, s20, s3
s_lshl_b32 s20, s20, 6
s_add_u32 s20, s20, {STAMP_OFF}
v_lshlrev_b32 v3, 2, v0
buffer_store_dword v{SV}, v3, s[28:31], s20 offen""")
    def read_tags(vtmp):
        a(f"""v_mov_b32 v{vtmp}, 0
ds_read_b128 v[{vtmp}:{vtmp+3}], v{vtmp} offset:{L_TAGS}
s_waitcnt lgkmcnt(0)
v_readfirstlane_b32 s26, v{vtmp+2}
v_readfirstlane_b32 s27, v{vtmp+3}""")
    def poll_result(dst, tag, off, cnt):
        l1, l2, l3 = a.label("L_rp"), a.label("L_rf"), a.label("L_rd")
        a(f"s_and_b32 s{off}, s2, 7")
        if p.local_res:
            a(f"""s_lshl_b32 s{off}, s{off}, 13
s_add_u32 s{off}, s{off}, {WS_RES}
s_mov_b32 s{cnt}, 63
{l1}:
s_load_dwordx4 s[{dst}:{dst+3}], s[18:19], s{off}
s_add_u32 s{off}, s{off}, 128
s_waitcnt lgkmcnt(0)
s_cmp_eq_u32 s{dst+3}, s{tag}
s_cbranch_scc1 {l3}
s_sub_u32 s{cnt}, s{cnt}, 1
s_cbranch_scc0 {l1}
s_and_b32 s{off}, s2, 7""")
        a(f"""s_lshl_b32 s{off}, s{off}, 8
s_add_u32 s{off}, s{off}, {WS_RESF}
s_mov_b32 s{cnt}, {SPIN}
{l2}:
s_load_dwordx4 s[{dst}:{dst+3}], s[18:19], s{off} glc
s_waitcnt lgkmcnt(0)
s_cmp_eq_u32 s{dst+3}, s{tag}
s_cbranch_scc1 {l3}
s_sub_u32 s{cnt}, s{cnt}, 1
s_cbranch_scc0 {l2}
{l3}:
s_and_b32 s{dst}, s{dst}, 0x3ff800
s_and_b32 s{dst+1}, s{dst+1}, 0x3ff800""")
    def selectors():
        a("""v_and_b32 v3, 1, v0
v_cmp_eq_u32 vcc, 1, v3
v_mov_b32 v4, 0x0c0c0100
v_mov_b32 v5, 0x01000c0c
v_mov_b32 v6, 0x0c0c0302
v_mov_b32 v7, 0x03020c0c
v_cndmask_b32 v4, v4, v5, vcc
v_cndmask_b32 v5, v6, v7, vcc
v_bfe_u32 v3, v0, 1, 2
v_mov_b32 v6, 0x0c0c0c0c""")
        for d in range(4):
            a(f"""v_cmp_eq_u32 vcc, {d}, v3
s_nop 1
v_cndmask_b32 v{16+d}, v6, v4, vcc
v_cndmask_b32 v{20+d}, v6, v5, vcc""")
    def perms(dst, src, par):
        for d in range(4): a(f"v_perm_b32 v{dst+d}, v{src}, v{src}, v{16+4*par+d}")
    XOR_OR = ((0xF0 ^ 0xCC) | 0xAA) & 0xFF

    if st: a(f"v_mov_b32 v{SV}, 0")
    if p.light: a("s_memrealtime s[100:101]")
    stamp(0)
    a(f"""s_load_dwordx8 s[4:11], s[0:1], 0
s_load_dwordx8 s[12:19], s[0:1], 32
s_cmp_ge_u32 s2, 256
s_cbranch_scc1 L_end""")
    if p.cpf:
        a(f"""; last wave: pull the kernel's code into this die's L2
v_cmp_le_u32 vcc, 512, v0
s_and_saveexec_b64 s[20:21], vcc
s_cbranch_execz L_nocpf
s_getpc_b64 s[22:23]
L_pc:
v_and_b32 v1, 63, v0
v_lshlrev_b32 v1, 7, v1
v_min_u32 v1, L_end-L_pc, v1
global_load_dword v100, v1, s[22:23]
L_nocpf:
s_mov_b64 exec, s[20:21]""")
    a(f"""s_nop 0
v_lshrrev_b32 v1, 6, v0
v_and_b32 v0, 63, v0
v_readfirstlane_b32 s3, v1
s_mov_b32 s30, {WS_BYTES}
s_mov_b32 s31, 0x20000
s_cmp_lg_u32 s3, 0
s_cbranch_scc1 L_notR""")
    a(f"""s_setprio 3
v_lshlrev_b32 v1, 4, v0
s_mov_b32 s22, {X_BYTES}
s_mov_b32 s23, 0x20000
s_mov_b32 s38, 2048
s_mov_b32 s39, 0x20000
s_lshl_b32 s43, s2, 14
v_mov_b32 v88, 0
v_mov_b32 v84, -1
v_mov_b32 v85, -1
v_mov_b32 v86, 0
v_mov_b32 v87, 0
s_mov_b64 exec, 1
ds_write_b128 v88, v[84:87] offset:{L_ROUTE}
s_mov_b64 exec, -1
s_waitcnt lgkmcnt(0)""")
    stamp(8)
    a(f"""s_mov_b32 s20, s4
s_mov_b32 s21, s5
s_mov_b32 s36, s6
s_mov_b32 s37, s7
s_load_dword s46, s[18:19], {WS_E}""")
    for r in range(8):
        a(f"buffer_load_dwordx4 v[{10+8*r}:{13+8*r}], v1, s[20:23], s43 offen offset:{(r%2)*2048} {p.xmod}")
        a(f"buffer_load_dwordx4 v[{14+8*r}:{17+8*r}], v1, s[20:23], s43 offen offset:{(r%2)*2048+1024} {p.xmod}")
        if r == 0:
            a("""buffer_load_dwordx4 v[2:5], v1, s[36:39], 0 offen
buffer_load_dwordx4 v[6:9], v1, s[36:39], 0 offen offset:1024""")
        if r % 2 == 1 and r < 7: a("s_add_u32 s43, s43, 4096")
    stamp(9)
    a("s_barrier")
    stamp(1)
    a(f"""s_mov_b32 s28, s18
s_mov_b32 s29, s19
s_mov_b32 s24, s14
s_mov_b32 s25, s15
s_mov_b32 s26, {X_BYTES}
s_mov_b32 s27, 0x20000
v_lshrrev_b32 v82, 5, v0
v_bfe_u32 v83, v0, 4, 1
v_lshl_or_b32 v82, v83, 1, v82
v_bfe_u32 v83, v0, 3, 1
v_lshl_or_b32 v82, v83, 2, v82
s_lshl_b32 s47, s2, 3
s_sub_u32 s47, 2047, s47
v_sub_u32 v82, s47, v82
v_lshlrev_b32 v92, 15, v0
s_lshl_b32 s48, s2, 7
s_add_u32 s48, s48, {WS_KEYS}
s_nop 0""")
    def eblock():
        a(f"""s_waitcnt lgkmcnt(0)""")
        if p.ediag: stamp(10)
        a(f"""s_mul_i32 s50, s46, 0x9E3779B8
s_add_u32 s50, s50, 0x3C6EF372       ; T1
s_xor_b32 s51, s50, 0xA5A5A5A8       ; T2
s_mul_i32 s52, s46, 0x85EBCA6B
s_add_u32 s52, s52, 0x27D4EB2F       ; Tres
s_and_b32 s53, s52, 15               ; tagA
v_mov_b32 v84, s50
v_mov_b32 v85, s46
v_mov_b32 v86, s52
v_mov_b32 v87, s53
s_mov_b64 exec, 1
ds_write_b128 v88, v[84:87] offset:{L_TAGS}
s_mov_b64 exec, -1""")
    if p.ediag == 2: eblock()
    for r in range(8):
        a(f"s_waitcnt vmcnt({14-2*r})")
        b = 10 + 8*r
        a(f"v_dot2_f32_bf16 v{74+r}, v{b}, v2, 0")
        for q in range(1, 8): a(f"v_dot2c_f32_bf16 v{74+r}, v{b+q}, v{2+q}")
    if p.ediag != 2: eblock()
    stamp(2)
    a("""s_nop 2
v_permlane32_swap_b32 v74, v75
v_permlane32_swap_b32 v76, v77
v_permlane32_swap_b32 v78, v79
v_permlane32_swap_b32 v80, v81
v_add_f32 v74, v74, v75
v_add_f32 v76, v76, v77
v_add_f32 v78, v78, v79
v_add_f32 v80, v80, v81
s_nop 0
v_permlane16_swap_b32 v74, v76
v_permlane16_swap_b32 v78, v80
v_add_f32 v74, v74, v76
v_add_f32 v78, v78, v80
s_nop 0
v_add_f32_dpp v75, v74, v74 row_ror:8 row_mask:0xf bank_mask:0xf
v_add_f32_dpp v75, v78, v78 row_ror:8 row_mask:0xf bank_mask:0xc
s_nop 1
v_add_f32_dpp v75, v75, v75 row_half_mirror row_mask:0xf bank_mask:0xf
s_nop 1
v_add_f32_dpp v75, v75, v75 quad_perm:[1,0,3,2] row_mask:0xf bank_mask:0xf
s_nop 1
v_add_f32_dpp v75, v75, v75 quad_perm:[2,3,0,1] row_mask:0xf bank_mask:0xf
v_cmp_u_f32 vcc, v75, v75
v_cvt_pk_bf16_f32 v76, v75, v75
v_ashrrev_i32 v77, 31, v76
v_or_b32 v77, 0x80000000, v77
v_xor_b32 v76, v76, v77
v_lshrrev_b32 v76, 16, v76
v_cndmask_b32 v76, v76, 0, vcc
v_lshl_or_b32 v76, v76, 11, v82      ; key
s_nop 1
v_max_u32_dpp v74, v76, v76 row_ror:8 row_mask:0xf bank_mask:0xf
v_min_u32_dpp v75, v76, v76 row_ror:8 row_mask:0xf bank_mask:0xf
v_mov_b32 v76, v74
v_mov_b32 v77, v75
s_nop 1
v_permlane16_swap_b32 v74, v76
v_permlane16_swap_b32 v75, v77
v_min_u32 v78, v74, v76
v_max_u32 v74, v74, v76
v_max3_u32 v75, v75, v77, v78
v_mov_b32 v76, v74
v_mov_b32 v77, v75
s_nop 1
v_permlane32_swap_b32 v74, v76
v_permlane32_swap_b32 v75, v77
v_min_u32 v78, v74, v76
v_max_u32 v74, v74, v76
v_max3_u32 v75, v75, v77, v78
v_xor_b32 v74, s50, v74
v_xor_b32 v75, s51, v75
s_mov_b64 exec, 0xff
buffer_store_dwordx2 v[74:75], v92, s[28:31], s48 offen sc1
s_mov_b64 exec, -1
s_cmp_ge_u32 s2, 224
s_cbranch_scc1 L_Rnoc
s_waitcnt lgkmcnt(0)
s_barrier""")
    stamp(3)
    a("L_Rnoc:")
    poll_result(40, 52, 44, 45)
    stamp(4)
    a(f"""s_cmp_ge_u32 s2, 224
s_cbranch_scc1 L_rstore
v_mov_b32 v84, s40
v_mov_b32 v85, s41
s_mov_b64 exec, 1
ds_write_b64 v88, v[84:85] offset:{L_ROUTE}
s_mov_b64 exec, -1
s_setprio 0""")
    for i in range(p.store_at): a("s_barrier")
    if p.rsleep: a(f"s_sleep {p.rsleep}")
    if p.rdummy: a("buffer_load_dword v84, v88, s[36:39], 0 offen\ns_waitcnt vmcnt(0)")
    a("L_rstore:")
    stamp(5)
    a("s_lshl_b32 s43, s2, 14")
    for r in range(8):
        a(f"""s_cmp_eq_u32 s43, s40
s_cselect_b32 s54, 0x40000000, s43
s_cmp_eq_u32 s43, s41
s_cselect_b32 s54, 0x40000000, s54
buffer_store_dwordx4 v[{10+8*r}:{13+8*r}], v1, s[24:27], s54 offen {p.omod}
buffer_store_dwordx4 v[{14+8*r}:{17+8*r}], v1, s[24:27], s54 offen offset:1024 {p.omod}""")
        if r < 7: a("s_add_u32 s43, s43, 2048")
    stamp(6)
    if p.store_at < 2:
        a("s_cmp_ge_u32 s2, 224\ns_cbranch_scc1 L_rfin")
        for i in range(2 - p.store_at): a("s_barrier")
        a("L_rfin:")
    if st:
        a("s_waitcnt vmcnt(0)"); stamp(7)
    stamp_out()
    a("s_endpgm")

    a(f"""L_notR:
s_cmp_ge_u32 s2, 224
s_cbranch_scc1 L_HELP
s_and_b32 s20, s2, 7
s_lshr_b32 s33, s2, 3
s_mul_i32 s20, s20, 7
s_lshr_b32 s21, s33, 2
s_add_u32 s32, s20, s21              ; s32 = fg
s_and_b32 s33, s33, 3                ; s33 = j
v_lshrrev_b32 v1, 4, v0              ; g
v_and_b32 v2, 15, v0                 ; jj
s_cmp_ge_u32 s3, 5
s_cbranch_scc1 L_D""")
    a(f"""s_sub_u32 s34, s3, 1                 ; w""")
    if p.rot:
        a("""s_add_u32 s21, s21, 1
s_cmp_eq_u32 s21, 7
s_cselect_b32 s21, 0, s21
s_add_u32 s35, s20, s21""")
    else: a("s_mov_b32 s35, s32")
    a(f"""s_lshl_b32 s20, s33, 8
s_lshl_b32 s21, s34, 6
s_add_u32 s20, s20, s21
s_mul_i32 s21, s20, 7168
v_cmp_gt_u32 vcc, 8, v2
v_mov_b32 v5, s35
v_mov_b32 v6, s32
v_and_b32 v3, 7, v2
v_cndmask_b32 v96, v5, v6, vcc
v_lshlrev_b32 v3, 4, v3
v_lshl_or_b32 v3, v96, 7, v3
v_mul_u32_u24 v4, {16*7168}, v1
v_add3_u32 v3, v3, v4, s21
s_mov_b32 s22, 7168
s_mov_b32 s23, 0
s_lshl_b32 s20, s20, 1
s_waitcnt lgkmcnt(0)
v_mov_b32 v4, s10
v_mov_b32 v5, s8
v_mov_b32 v6, s11
v_mov_b32 v7, s9
v_cndmask_b32 v4, v4, v5, vcc
v_cndmask_b32 v5, v6, v7, vcc
v_add_co_u32 v4, vcc, v4, v3
s_mov_b32 s28, s18
s_mov_b32 s29, s19
v_addc_co_u32 v5, vcc, 0, v5, vcc""")
    stamp(8)
    a("s_barrier")
    def lcount():
        a(f"""v_mov_b32 v6, 0
v_mov_b32 v7, 1
s_mov_b64 exec, 1
ds_add_u32 v6, v7 offset:{L_CNT}
s_mov_b64 exec, -1""")
    for m in range(16):
        if m == p.nb1:
            stamp(1); a("s_barrier")
        if m == p.cpos: lcount()
        if p.th2 and m >= p.nb1: a(f"s_waitcnt vmcnt({p.th2-1})")
        a(f"global_load_dwordx4 v[{32+4*m}:{35+4*m}], v[4:5], off {p.wmod}")
        if m < 15: a("v_lshl_add_u64 v[4:5], v[4:5], 0, s[22:23]")
    if p.nb1 >= 16: a("s_barrier")
    if p.cpos >= 16: lcount()
    stamp(2)
    if p.diagland:
        a("s_waitcnt vmcnt(0)"); stamp(10)
    read_tags(8)
    selectors()
    a(f"""v_lshlrev_b32 v97, 4, v0             ; lane*16
s_lshl_b32 s21, s34, 10
v_add_u32 v98, s21, v97
s_lshl_b32 s12, s33, 10
v_bfe_u32 v3, v2, 1, 2
v_lshlrev_b32 v3, 8, v3
v_lshl_or_b32 v96, v96, 12, v3
v_and_b32 v3, 1, v2
v_lshl_or_b32 v96, v3, 7, v96
v_and_b32 v3, 1, v1
v_lshl_or_b32 v96, v3, 6, v96
v_lshrrev_b32 v3, 1, v1
v_lshl_or_b32 v96, v3, 5, v96
v_lshrrev_b32 v3, 3, v2
v_lshl_or_b32 v96, v3, 4, v96
s_add_u32 s13, s12, {WS_PREB}
s_add_u32 s12, s12, {WS_PREA}
s_add_u32 s14, s27, 5
s_add_u32 s15, s27, 10
s_add_u32 s16, s27, 15
v_mov_b32 v3, 0
s_mov_b32 s21, {SPIN*16}
L_Lroute:
ds_read_b64 v[4:5], v3 offset:{L_ROUTE}
s_sub_u32 s21, s21, 1
s_cbranch_scc1 L_Lroute_done
s_waitcnt lgkmcnt(0)
v_readfirstlane_b32 s8, v4
v_readfirstlane_b32 s9, v5
s_cmp_eq_u32 s8, -1
s_cbranch_scc1 L_Lroute
L_Lroute_done:
s_and_b32 s8, s8, 0x3ff800
s_and_b32 s9, s9, 0x3ff800""")
    stamp(3)
    a("""s_add_u32 s8, s8, s20
s_add_u32 s9, s9, s20
s_load_dwordx16 s[36:51], s[4:5], s8
s_load_dwordx16 s[52:67], s[4:5], s8 offset:64
s_load_dwordx16 s[68:83], s[4:5], s9
s_load_dwordx16 s[84:99], s[4:5], s9 offset:64
s_mov_b64 exec, 0xff
s_waitcnt lgkmcnt(0)""")
    stamp(4)
    for g in range(4):
        for t in range(2):
            for q in range(4):
                sr = 36 + 32*t + 8*g + 2*q
                a(f"v_mov_b64 v[{8+2*q}:{9+2*q}], s[{sr}:{sr+1}]")
            a("s_lshl_b64 exec, exec, 8" if (g, t) != (3, 1) else "s_mov_b64 exec, -1")
    a("s_waitcnt vmcnt(0)")
    stamp(5)
    perms(24, 8, 0)
    for m in range(16):
        cur = 24 + 4*(m & 1); nxt = 24 + 4*((m+1) & 1)
        if m < 15: perms(nxt, 8 + ((m+1) >> 1), (m+1) & 1)
        else: a("s_nop 1")
        a(f"v_mfma_f32_16x16x32_bf16 v[4:7], v[{cur}:{cur+3}], v[{32+4*m}:{35+4*m}], {'0' if m == 0 else 'v[4:7]'}")
    a(f"""s_nop 7
ds_write_b128 v98, v[4:7] offset:{L_RED1}
s_waitcnt lgkmcnt(0)
s_barrier""")
    stamp(6)
    a(f"""s_cmp_lg_u32 s34, 0
s_cbranch_scc1 L_L_done
ds_read_b128 v[8:11], v97 offset:{L_RED1+1024}
ds_read_b128 v[12:15], v97 offset:{L_RED1+2048}
ds_read_b128 v[24:27], v97 offset:{L_RED1+3072}
s_waitcnt lgkmcnt(1)
v_pk_add_f32 v[4:5], v[4:5], v[8:9]
v_pk_add_f32 v[6:7], v[6:7], v[10:11]
s_waitcnt lgkmcnt(0)
v_pk_add_f32 v[12:13], v[12:13], v[24:25]
v_pk_add_f32 v[14:15], v[14:15], v[26:27]
v_pk_add_f32 v[4:5], v[4:5], v[12:13]
v_pk_add_f32 v[6:7], v[6:7], v[14:15]
v_bfi_b32 v4, 15, s27, v4
v_bfi_b32 v5, 15, s14, v5
v_bfi_b32 v6, 15, s15, v6
v_bfi_b32 v7, 15, s16, v7""")
    if p.local_pre: a("buffer_store_dwordx4 v[4:7], v96, s[28:31], s12 offen")
    else: a("buffer_store_dwordx4 v[4:7], v96, s[28:31], s13 offen sc1")
    stamp(7)
    a("s_barrier\nL_L_done:")
    stamp_out()
    a("s_endpgm")

    a(f"""L_D:
s_sub_u32 s34, s3, 5                 ; w
v_lshlrev_b32 v64, 13, v1
v_lshl_or_b32 v64, v2, 4, v64
s_lshl_b32 s20, s32, 6
s_lshl_b32 s21, s34, 4
s_add_u32 s20, s20, s21
s_lshl_b32 s20, s20, 11
s_lshl_b32 s21, s33, 9
s_add_u32 s20, s20, s21
s_add_u32 s21, s20, 4096
s_mov_b32 s38, {W_BYTES}
s_mov_b32 s39, 0x20000""")
    selectors()
    a(f"""s_waitcnt lgkmcnt(0)
s_mov_b32 s36, s12
s_mov_b32 s37, s13
s_mov_b32 s28, s18
s_mov_b32 s29, s19""")
    stamp(9)
    if p.tlbw:
        a(f"""s_cmp_lg_u32 s34, 3
s_cbranch_scc1 L_notlb
v_lshlrev_b32 v8, 21, v0
s_mov_b64 exec, 0xf
buffer_load_dword v101, v8, s[36:39], 0 offen
s_mov_b64 exec, 3
global_load_dword v102, v8, s[14:15]
s_mov_b64 exec, -1
L_notlb:""")
    a("s_barrier\ns_barrier")
    def dload(i):
        m, half = i >> 1, i & 1
        a(f"buffer_load_dwordx4 v[{32+4*i}:{35+4*i}], v64, s[36:39], s{20 + (m>>1)} offen offset:{(m&1)*2048+half*256} {p.dmod}")
    for i in range(p.npre): dload(i)
    read_tags(8)
    a(f"""v_lshlrev_b32 v65, 4, v0             ; lane*16
s_lshl_b32 s22, s34, 11
v_add_u32 v66, s22, v65
s_lshl_b32 s22, s34, 10
v_add_u32 v67, s22, v65
s_lshl_b32 s23, s32, 2
s_add_u32 s23, s23, s33
s_lshl_b32 s23, s23, 11
s_add_u32 s23, s23, s22
s_add_u32 s23, s23, {WS_YP}
v_lshrrev_b32 v3, 1, v2
v_lshlrev_b32 v68, 7, v3
v_lshrrev_b32 v3, 1, v1
v_lshl_or_b32 v68, v3, 6, v68
v_and_b32 v3, 1, v2
v_and_b32 v4, 1, v1
v_lshl_or_b32 v3, v3, 1, v4
v_lshl_or_b32 v68, v3, 4, v68
v_mad_u32_u24 v71, v3, 5, s27
s_add_u32 s40, s27, 5
s_and_b32 s48, s2, 7
s_lshl_b32 s48, s48, 7
s_lshr_b32 s49, s2, 3
s_lshl_b32 s49, s49, 2
s_add_u32 s48, s48, s49
s_add_u32 s48, s48, {WS_DONE}
s_lshl_b32 s22, s34, 8
v_lshl_add_u32 v69, v0, 2, s22
v_and_b32 v4, 3, v0
v_mad_u32_u24 v70, v4, 5, s27
s_lshl_b32 s41, s32, 12
s_add_u32 s41, s41, {WS_PREA if p.local_pre else WS_PREB}
s_mov_b32 s42, {p.na_pre if p.local_pre else SPIN}
s_mov_b32 s43, 0xbfb8aa3b            ; -log2(e)
s_lshl_b32 s44, s33, 10
s_add_u32 s44, s44, s41
v_mov_b32 v3, 0
s_mov_b32 s22, {SPIN*4}
L_Dcnt:
s_sleep 1
ds_read_b32 v4, v3 offset:{L_CNT}
s_sub_u32 s22, s22, 1
s_cbranch_scc1 L_Dcnt_done
s_waitcnt lgkmcnt(0)
v_readfirstlane_b32 s45, v4
s_cmp_lt_u32 s45, 4
s_cbranch_scc1 L_Dcnt
L_Dcnt_done:""")
    if p.dummy:
        a("""; loads return in issue order per CU: this one comes back once the gate/up tile issued before it has landed
v_mov_b32 v8, 0""")
        if p.pretouch:
            for q in range(4): a(f"buffer_load_dword v{8+q}, v69, s[28:31], s41 offen offset:{q*1024} sc1")
        else:
            a("s_mov_b64 exec, 1\nbuffer_load_dword v8, v8, s[28:31], 0 offen\ns_mov_b64 exec, -1")
        a("s_waitcnt vmcnt(0)")
    stamp(1)
    for i in range(p.npre, 8): dload(i)
    stamp(2)
    if p.diagland:
        a("s_waitcnt vmcnt(0)"); stamp(8)
    a("s_barrier")
    if p.pre_sleep: a(f"s_sleep {p.pre_sleep}")
    stamp(3)
    a("L_poll2:")
    for q in range(4):
        a(f"buffer_load_dword v{8+q}, v69, s[28:31], s41 offen offset:{q*1024} sc1")
    a(f"""s_sub_u32 s42, s42, 1
s_cbranch_scc1 L_p2sw
s_waitcnt vmcnt(0)""")
    if st:
        a(f"""s_memrealtime s[100:101]
s_sub_u32 s60, {p.na_pre+7}, s42
s_min_u32 s60, s60, 11
s_mov_b32 m0, s60
s_waitcnt lgkmcnt(0)
v_writelane_b32 v{SV}, s100, m0""")
    a(f"""v_xor_b32 v12, v8, v70
v_xor_b32 v13, v9, v70
v_bitop3_b32 v12, v10, v70, v12 bitop3:{XOR_OR:#x}
v_bitop3_b32 v13, v11, v70, v13 bitop3:{XOR_OR:#x}
v_add_f32 v8, v8, v9
v_or_b32 v12, v12, v13
v_add_f32 v10, v10, v11
v_and_b32 v12, 15, v12
v_add_f32 v8, v8, v10
v_cmp_ne_u32 vcc, 0, v12
s_cbranch_vccnz L_poll2
L_poll2_done:""")
    stamp(4)
    a(f"""v_cvt_pk_bf16_f32 v8, v8, v8
v_and_b32 v8, 0xffff0000, v8
v_mul_f32 v9, s43, v8
v_exp_f32 v9, v9
s_nop 0
v_add_f32 v9, 1.0, v9
v_rcp_f32 v9, v9
s_nop 0
v_mul_f32 v9, v8, v9
v_cvt_pk_bf16_f32 v9, v9, v9
v_and_b32 v9, 0xffff0000, v9
s_nop 1
v_mul_f32_dpp v10, v8, v9 row_shl:4 row_mask:0xf bank_mask:0x5
v_mul_f32_dpp v10, v9, v8 row_shr:4 row_mask:0xf bank_mask:0xa
s_nop 1
v_mov_b32_dpp v8, v10 quad_perm:[0,0,0,0] row_mask:0xf bank_mask:0xf
v_mov_b32_dpp v11, v10 quad_perm:[1,1,1,1] row_mask:0xf bank_mask:0xf
v_mov_b32_dpp v9, v10 quad_perm:[2,2,2,2] row_mask:0xf bank_mask:0xf
v_mov_b32_dpp v12, v10 quad_perm:[3,3,3,3] row_mask:0xf bank_mask:0xf
v_cvt_pk_bf16_f32 v8, v8, v11
v_cvt_pk_bf16_f32 v9, v9, v12""")
    perms(24, 8, 0)
    for m in range(4):
        cur = 24 + 4*(m & 1); nxt = 24 + 4*((m+1) & 1)
        if m < 3: perms(nxt, 8 + ((m+1) >> 1), (m+1) & 1)
        for half in range(2):
            acc = f"v[{4+8*half}:{7+8*half}]"
            i = 2*m + half
            a(f"v_mfma_f32_16x16x32_bf16 {acc}, v[{cur}:{cur+3}], v[{32+4*i}:{35+4*i}], {'0' if m == 0 else acc}")
    a(f"""s_nop 6
ds_write_b128 v66, v[4:7] offset:{L_RED2}
ds_write_b128 v66, v[12:15] offset:{L_RED2+1024}
s_waitcnt lgkmcnt(0)
s_barrier""")
    stamp(5)
    a(f"""s_cmp_ge_u32 s34, 2
s_cbranch_scc1 L_D_copy
s_setprio 3
ds_read_b128 v[4:7], v67 offset:{L_RED2}
ds_read_b128 v[8:11], v67 offset:{L_RED2+2048}
ds_read_b128 v[12:15], v67 offset:{L_RED2+4096}
ds_read_b128 v[24:27], v67 offset:{L_RED2+6144}
s_waitcnt lgkmcnt(2)
v_pk_add_f32 v[4:5], v[4:5], v[8:9]
v_pk_add_f32 v[6:7], v[6:7], v[10:11]
s_waitcnt lgkmcnt(0)
v_pk_add_f32 v[12:13], v[12:13], v[24:25]
v_pk_add_f32 v[14:15], v[14:15], v[26:27]
v_pk_add_f32 v[4:5], v[4:5], v[12:13]
v_pk_add_f32 v[6:7], v[6:7], v[14:15]
v_bfi_b32 v4, 15, v71, v4
buffer_store_dwordx4 v[4:7], v68, s[28:31], s23 offen sc1
L_D_done:""")
    stamp(6)
    if st:
        a("s_waitcnt vmcnt(0)"); stamp(7)
    stamp_out()
    a("s_endpgm")
    a(f"""; the local mailbox never filled: a peer sits on another die, use the write-through mailbox
L_p2sw:
s_waitcnt vmcnt(0)
s_cmp_ge_u32 s41, {WS_PREB}
s_cbranch_scc1 L_poll2_done
s_mov_b32 s42, {SPIN}
s_add_u32 s46, s27, 10
s_add_u32 s47, s27, 15
L_p2own:
buffer_load_dwordx4 v[8:11], v65, s[28:31], s44 offen sc1
s_sub_u32 s42, s42, 1
s_cbranch_scc1 L_p2own_done
s_waitcnt vmcnt(0)
v_xor_b32 v12, s27, v8
v_bitop3_b32 v12, v9, s40, v12 bitop3:{XOR_OR:#x}
v_bitop3_b32 v12, v10, s46, v12 bitop3:{XOR_OR:#x}
v_bitop3_b32 v12, v11, s47, v12 bitop3:{XOR_OR:#x}
v_and_b32 v12, 15, v12
v_cmp_ne_u32 vcc, 0, v12
s_cbranch_vccnz L_p2own
L_p2own_done:
s_waitcnt vmcnt(0)
s_add_u32 s45, s44, {WS_PREB-WS_PREA}
buffer_store_dwordx4 v[8:11], v65, s[28:31], s45 offen sc1
s_add_u32 s41, s41, {WS_PREB-WS_PREA}
s_mov_b32 s42, {SPIN}
s_branch L_poll2
L_D_copy:""")
    if p.hint:
        a(f"""s_cmp_lg_u32 s34, 3
s_cbranch_scc1 L_D_copy2
v_mov_b32 v8, s26
v_mov_b32 v9, 0
s_mov_b64 exec, 1
buffer_store_dword v8, v9, s[28:31], s48 offen
s_branch L_D_done
L_D_copy2:""")
    if p.local_pre:
        a(f"""s_cmp_lg_u32 s34, 2
s_cbranch_scc1 L_D_done
buffer_load_dwordx4 v[8:11], v65, s[28:31], s44 offen sc1
s_add_u32 s45, s44, {WS_PREB-WS_PREA}
s_waitcnt vmcnt(0)
buffer_store_dwordx4 v[8:11], v65, s[28:31], s45 offen sc1""")
    a("s_branch L_D_done")

    a(f"""L_HELP:
s_cmp_ge_u32 s3, 5
s_cbranch_scc1 L_AGG
s_sub_u32 s34, s3, 1
s_cmp_ge_u32 s34, 2
s_cbranch_scc1 L_end
s_sub_u32 s44, s2, 224               ; hw
s_lshl_b32 s45, s44, 1
s_add_u32 s45, s45, s34
s_lshl_b32 s46, s45, 7
v_lshrrev_b32 v1, 3, v0
v_and_b32 v2, 7, v0                  ; sub
v_lshlrev_b32 v3, 13, v1
v_lshl_or_b32 v3, v2, 4, v3
s_mov_b32 s38, {56*8192}
s_mov_b32 s39, 0x20000
s_mov_b32 s22, {X_BYTES}
s_mov_b32 s23, 0x20000
s_mov_b32 s54, {X_BYTES}
s_mov_b32 s55, 0x20000
v_bfe_u32 v4, v0, 4, 1
v_bfe_u32 v5, v0, 5, 1
v_lshl_or_b32 v4, v4, 1, v5
v_and_b32 v40, 3, v0
v_lshl_or_b32 v4, v40, 2, v4
s_lshl_b32 s50, s45, 4
v_add_lshl_u32 v4, v4, s50, 1
v_and_b32 v5, 4, v0
v_cmp_ne_u32 s[56:57], 0, v5
s_and_b32 s48, s2, 7
s_lshl_b32 s48, s48, 7
s_add_u32 s48, s48, {WS_DONE}
v_lshlrev_b32 v41, 2, v0
s_waitcnt lgkmcnt(0)
s_add_u32 s36, s18, {WS_YP}
s_addc_u32 s37, s19, 0
s_mov_b32 s20, s4
s_mov_b32 s21, s5
s_mov_b32 s52, s14
s_mov_b32 s53, s15
s_mov_b32 s28, s18
s_mov_b32 s29, s19
s_load_dword s59, s[18:19], {WS_E}
s_waitcnt lgkmcnt(0)
s_barrier
s_mul_i32 s26, s59, 0x85EBCA6B
s_add_u32 s26, s26, 0x27D4EB2F       ; Tres
s_and_b32 s27, s26, 15               ; tagA
v_mad_u32_u24 v40, v40, 5, s27""")
    poll_result(40, 26, 44, 45)
    stamp(1)
    a(f"""v_mov_b32 v8, s40
v_mov_b32 v9, s41
s_and_b32 s44, s42, 0xffff0000
s_lshl_b32 s45, s42, 16
v_mov_b32 v10, s44
v_mov_b32 v11, s45
v_cndmask_b32 v8, v8, v9, s[56:57]
v_cndmask_b32 v10, v10, v11, s[56:57]
v_add_u32 v4, v4, v8
buffer_load_ushort v6, v4, s[20:23], 0 offen
v_mul_f32 v10, 0xbfb8aa3b, v10
v_exp_f32 v10, v10
s_mov_b32 s58, {SPIN}
v_add_f32 v10, 1.0, v10
v_rcp_f32 v10, v10
s_nop 0
v_cvt_pk_bf16_f32 v10, v10, v10
v_and_b32 v7, 0xffff0000, v10""")
    if p.hint:
        a(f"""; timing hint only: wait until the workgroups of this die have finished before the first look at the partials
s_mov_b32 s59, {p.hint_max}
s_mov_b32 exec_lo, 0x0fffffff
s_mov_b32 exec_hi, 0
L_hint:
buffer_load_dword v8, v41, s[28:31], s48 offen sc1
s_sub_u32 s59, s59, 1
s_cbranch_scc1 L_hint_done
s_waitcnt vmcnt(0)
v_cmp_ne_u32 vcc, s26, v8
s_cbranch_vccnz L_hint
L_hint_done:
s_mov_b64 exec, -1""")
    if p.red_delay: a(f"s_sleep {p.red_delay}")
    stamp(2)
    if st: a("s_mov_b32 s61, 0\ns_mov_b32 s62, 0\ns_mov_b32 s63, 0")
    a("L_poll3:\ns_mov_b32 s47, s46")
    for i in range(7):
        a(f"buffer_load_dwordx4 v[{8+4*i}:{11+4*i}], v3, s[36:39], s47 offen sc1")
        if i < 6: a(f"s_add_u32 s47, s47, {8*8192}")
    a("""s_sub_u32 s58, s58, 1
s_cbranch_scc1 L_poll3_done
s_waitcnt vmcnt(0)""")
    if st:
        a(f"""s_memrealtime s[100:101]
s_add_u32 s61, s61, 1
s_mov_b32 s64, s63
s_mov_b32 s63, s62
s_waitcnt lgkmcnt(0)
s_mov_b32 s62, s100
v_writelane_b32 v{SV}, s61, 6
v_writelane_b32 v{SV}, s63, 7
v_writelane_b32 v{SV}, s64, 8""")
    a(f"""v_xor_b32 v36, v8, v40
v_xor_b32 v37, v12, v40
v_bitop3_b32 v36, v16, v40, v36 bitop3:{XOR_OR:#x}
v_bitop3_b32 v37, v20, v40, v37 bitop3:{XOR_OR:#x}
v_bitop3_b32 v36, v24, v40, v36 bitop3:{XOR_OR:#x}
v_bitop3_b32 v37, v28, v40, v37 bitop3:{XOR_OR:#x}
v_bitop3_b32 v36, v32, v40, v36 bitop3:{XOR_OR:#x}
v_or_b32 v36, v36, v37
v_and_b32 v36, 15, v36
v_cmp_ne_u32 vcc, 0, v36
s_cbranch_vccnz L_poll3
L_poll3_done:
s_waitcnt vmcnt(0)""")
    stamp(3)
    a(f"""v_pk_add_f32 v[8:9], v[8:9], v[12:13]
v_pk_add_f32 v[10:11], v[10:11], v[14:15]
v_pk_add_f32 v[16:17], v[16:17], v[20:21]
v_pk_add_f32 v[18:19], v[18:19], v[22:23]
v_pk_add_f32 v[24:25], v[24:25], v[28:29]
v_pk_add_f32 v[26:27], v[26:27], v[30:31]
v_pk_add_f32 v[8:9], v[8:9], v[32:33]
v_pk_add_f32 v[10:11], v[10:11], v[34:35]
v_pk_add_f32 v[16:17], v[16:17], v[24:25]
v_pk_add_f32 v[18:19], v[18:19], v[26:27]
v_pk_add_f32 v[8:9], v[8:9], v[16:17]
v_pk_add_f32 v[10:11], v[10:11], v[18:19]
s_nop 1
v_permlane32_swap_b32 v8, v9
v_permlane32_swap_b32 v10, v11
v_add_f32 v8, v8, v9
v_add_f32 v10, v10, v11
s_nop 1
v_permlane16_swap_b32 v8, v10
v_add_f32 v8, v8, v10
s_nop 1
v_add_f32_dpp v8, v8, v8 row_ror:8 row_mask:0xf bank_mask:0xf
v_lshlrev_b32 v6, 16, v6
v_cvt_pk_bf16_f32 v8, v8, v8
v_and_b32 v8, 0xffff0000, v8
v_mul_f32 v8, v8, v7
v_cvt_pk_bf16_f32 v8, v8, v8
v_and_b32 v8, 0xffff0000, v8
v_add_f32 v8, v8, v6
v_cvt_pk_bf16_f32 v8, v8, v8
s_mov_b32 exec_lo, 0x00ff00ff
s_mov_b32 exec_hi, 0x00ff00ff
buffer_store_short v8, v4, s[52:55], 0 offen {p.fmod}""")
    stamp(4)
    if st:
        a("s_waitcnt vmcnt(0)"); stamp(5)
    stamp_out()
    a("s_endpgm")

    a(f"""L_AGG:
s_cmp_lg_u32 s3, 5
s_cbranch_scc1 L_end
s_cmp_ge_u32 s2, {224+p.nagg}
s_cbranch_scc1 L_end
s_setprio 3
s_and_b32 s32, s2, 7
v_lshlrev_b32 v1, 7, v0              ; lane*128
s_lshl_b32 s33, s32, 13
s_add_u32 s33, s33, {WS_RES}
s_lshl_b32 s34, s32, 8
s_add_u32 s34, s34, {WS_RESF}
s_lshl_b32 s36, s32, 15
s_add_u32 s36, s36, {WS_KEYS}
s_add_u32 s37, s36, 8192
s_add_u32 s38, s36, 16384
s_add_u32 s39, s36, 24576
v_lshlrev_b32 v88, 3, v0
v_sub_u32 v88, {255*8}, v88
v_subrev_u32 v89, {64*8}, v88
v_subrev_u32 v90, {128*8}, v88
v_subrev_u32 v91, {192*8}, v88
v_lshlrev_b32 v2, 4, v0
s_mov_b32 s22, {X_BYTES}
s_mov_b32 s23, 0x20000
s_waitcnt lgkmcnt(0)
s_mov_b32 s28, s18
s_mov_b32 s29, s19
s_mov_b32 s20, s4
s_mov_b32 s21, s5
s_load_dword s46, s[18:19], {WS_E}
buffer_load_dword v3, v1, s[28:31], s33 offen sc1
s_mov_b32 s52, {SPIN}
s_lshr_b32 s53, s2, 3
s_and_b32 s53, s53, 3
s_waitcnt lgkmcnt(0)
s_barrier
s_mul_i32 s50, s46, 0x9E3779B8
s_add_u32 s50, s50, 0x3C6EF372       ; T1
s_xor_b32 s51, s50, 0xA5A5A5A8       ; T2
s_mul_i32 s54, s46, 0x85EBCA6B
s_add_u32 s54, s54, 0x27D4EB2F       ; Tres
v_mov_b32 v83, s54""")
    stamp(1)
    def merge_decode():
        for ctrl in ("quad_perm:[1,0,3,2]", "quad_perm:[2,3,0,1]", "row_half_mirror", "row_mirror"):
            a(f"""s_nop 1
v_min_u32_dpp v84, v76, v76 {ctrl} row_mask:0xf bank_mask:0xf
v_max_u32_dpp v85, v77, v77 {ctrl} row_mask:0xf bank_mask:0xf
v_max_u32_dpp v76, v76, v76 {ctrl} row_mask:0xf bank_mask:0xf
v_max_u32 v77, v84, v85""")
        for sw in ("v_permlane16_swap_b32", "v_permlane32_swap_b32"):
            a(f"""v_mov_b32 v78, v76
v_mov_b32 v79, v77
s_nop 1
{sw} v76, v78
{sw} v77, v79
v_min_u32 v84, v76, v78
v_max_u32 v76, v76, v78
v_max3_u32 v77, v77, v79, v84""")
        a("""v_not_b32 v80, v76
v_not_b32 v81, v77
v_and_b32 v80, 0x7ff, v80
v_and_b32 v81, 0x7ff, v81
v_lshlrev_b32 v80, 11, v80
v_lshlrev_b32 v81, 11, v81""")
    def xprefetch():
        a("""v_add_u32 v4, v80, v2
v_add_u32 v5, v81, v2
buffer_load_dwordx4 v[8:11], v4, s[20:23], 0 offen
buffer_load_dwordx4 v[12:15], v5, s[20:23], 0 offen
buffer_load_dwordx4 v[16:19], v4, s[20:23], 0 offen offset:1024
buffer_load_dwordx4 v[20:23], v5, s[20:23], 0 offen offset:1024""")
    a("""v_mov_b32 v70, 0
v_mov_b32 v71, 0
v_mov_b32 v92, 0x07060302
s_mov_b64 s[56:57], -1
L_poll1:""")
    for e in range(4):
        a(f"buffer_load_dwordx2 v[{60+2*e}:{61+2*e}], v1, s[28:31], s{36+e} offen sc1")
    a(f"""s_sub_u32 s52, s52, 1
s_cbranch_scc1 L_poll1_done""")
    if p.spec:
        a(f"""s_cmp_lg_u32 s53, 3
s_cbranch_scc1 L_nospec
s_cmp_eq_u64 s[56:57], -1
s_cbranch_scc1 L_nospec
s_mov_b64 exec, -1
v_mov_b32 v76, v70
v_mov_b32 v77, v71""")
        merge_decode()
        xprefetch()
        a("""s_mov_b64 exec, s[56:57]
s_waitcnt vmcnt(4)
s_branch L_specdone
L_nospec:
s_waitcnt vmcnt(0)
L_specdone:""")
    else: a("s_waitcnt vmcnt(0)")
    if st:
        a(f"""s_memrealtime s[100:101]
s_sub_u32 s60, {SPIN+3}, s52
s_min_u32 s60, s60, 11
s_mov_b32 m0, s60
s_waitcnt lgkmcnt(0)
v_writelane_b32 v{SV}, s100, m0""")
    for e in range(4):
        a(f"v_xor_b32 v{60+2*e}, s50, v{60+2*e}\nv_xor_b32 v{61+2*e}, s51, v{61+2*e}")
    tt = ((0xF0 ^ 0xAA) | (0xCC ^ 0xAA)) & 0xFF
    for e in range(4):
        a(f"v_bitop3_b32 v{84+e}, v{60+2*e}, v{61+2*e}, v{88+e} bitop3:{tt:#x}")
    a(f"""v_or3_b32 v84, v84, v85, v86
v_or_b32 v84, v84, v87
v_and_b32 v84, {MASK:#x}, v84
v_cmp_ne_u32 vcc, 0, v84
v_min_u32 v84, v60, v62
v_max_u32 v60, v60, v62
v_max3_u32 v61, v61, v63, v84
v_min_u32 v85, v64, v66
v_max_u32 v64, v64, v66
v_max3_u32 v65, v65, v67, v85
s_andn2_b64 exec, exec, vcc
v_min_u32 v84, v60, v64
v_max_u32 v70, v60, v64
v_max3_u32 v71, v61, v65, v84
s_and_b64 s[56:57], s[56:57], vcc
s_cbranch_scc0 L_poll1_done
s_mov_b64 exec, s[56:57]""")
    if p.agg_sleep:
        a(f"""s_cmp_eq_u32 s53, 0
s_cbranch_scc1 L_poll1
s_cmp_eq_u32 s53, 3
s_cbranch_scc1 L_poll1
s_sleep {p.agg_sleep}
s_cmp_eq_u32 s53, 1
s_cbranch_scc1 L_poll1
s_sleep {p.agg_sleep}""")
    a(f"""s_branch L_poll1
L_poll1_done:
s_mov_b64 exec, -1""")
    stamp(2)
    a("v_mov_b32 v76, v70\nv_mov_b32 v77, v71")
    merge_decode()
    a("""v_lshlrev_b32 v84, 5, v76
v_lshlrev_b32 v85, 5, v77
v_perm_b32 v82, v84, v85, v92
v_pk_ashrrev_i16 v84, 15, v82 op_sel_hi:[0,1]
v_not_b32 v84, v84
v_or_b32 v84, 0x80008000, v84
v_xor_b32 v82, v82, v84""")
    if p.local_res: a("buffer_store_dwordx4 v[80:83], v1, s[28:31], s33 offen")
    if p.xpre: xprefetch()
    a(f"""v_mov_b32 v3, 0
s_mov_b64 exec, 1
buffer_store_dwordx4 v[80:83], v3, s[28:31], s34 offen sc1
s_mov_b64 exec, -1""")
    stamp(3)
    a(f"""s_cmp_lg_u32 s2, 224
s_cbranch_scc1 L_agg_done
s_add_u32 s46, s46, 1
v_mov_b32 v85, s46
s_mov_b64 exec, 1
buffer_store_dword v85, v3, s[28:31], 0 offen sc1
L_agg_done:""")
    stamp_out()
    a("L_end:\ns_endpgm")
    meta = dict(nwg=256, nwave=9, nst=12) if st else (dict(light=1) if p.light else None)
    return kernel_file(a.text(), 256, 576, L_END, 120 if st else 104, meta=meta)

if __name__ == "__main__":
    p = P()
    out = sys.argv[1]
    for kv in sys.argv[2:]:
        k, v = kv.split("=")
        setattr(p, k, type(getattr(P, k))(eval(v)) if not isinstance(getattr(P, k), str) else v.replace("+", " "))
    open(out, "w").write(gen(p))
```

```python
import sys
from asmlib import *

WS_E    = 0
WS_RES  = 4096
WS_RESF = 73728
WS_DONE = 77824
WS_ARR  = 81920
WS_KEYS = 131072
KSTR    = 2304
WS_PREA = 393216
WS_PREB = 655360
WS_YP   = 1048576
MASK    = 0xF80007F8
SPIN    = 1 << 16
L_TAGS, L_ROUTE, L_CNT, L_RED1, L_RED2, L_END = 0, 16, 24, 64, 4608, 12800
C1, D1, X12, C2, D2 = 0x9E3779B8, 0x3C6EF372, 0xA5A5A5A8, 0x85EBCA6B, 0x27D4EB2F
XOR_OR = ((0xF0 ^ 0xCC) | 0xAA) & 0xFF

class P:
    nb1 = 4; th2 = 6; cpos = 10; thd = 0; relief = True; rstr = 4; th3 = -1; cpos3 = -1
    xmod = ""; wmod = "nt"; dmod = "nt"; omod = ""; fmod = ""
    store_at = 2; rsleep = 4
    stamps = False; light = False
    local_res = True; local_pre = True; na_pre = 64; na_res = 63
    agg_sleep = 0; agg_d0 = 8; agg_d1 = 6; nres = 64; early3 = False; spec = True; xpre = True
    pre_sleep = 3; hint = True; hint_max = 200; red_delay = 6
    cpf = True; align = 12
    order = "entry,R1,Lstart,stubs,R3,R2,L2,D,RED,AGG,cold"

def gen(p):
    S = {}
    cur = [None]
    def sec(name):
        S.setdefault(name, Asm()); cur[0] = S[name]
    def a(t): cur[0](t)
    nl = [0]
    def label(b):
        nl[0] += 1; return f"{b}_{nl[0]}"
    st = p.stamps
    SV = 119
    def stamp(i):
        if st: a(f"s_memrealtime s[100:101]\ns_waitcnt lgkmcnt(0)\nv_writelane_b32 v{SV}, s100, {i}")
    def stamp_idx(expr_sub, reg, lo):
        if st: a(f"""s_memrealtime s[100:101]
s_sub_u32 s60, {expr_sub}, s{reg}
s_min_u32 s60, s60, 11
s_mov_b32 m0, s60
s_waitcnt lgkmcnt(0)
v_writelane_b32 v{SV}, s100, m0""")
    def stamp_out():
        if not (st or p.light): return
        a(f"""s_waitcnt vmcnt(0) lgkmcnt(0)
s_lshl_b32 s20, s2, 4
s_add_u32 s20, s20, s3
s_lshl_b32 s20, s20, 6
s_add_u32 s20, s20, {STAMP_OFF}""")
        if p.light:
            a(f"""s_memrealtime s[98:99]
s_mov_b64 exec, 1
v_mov_b32 v3, 0
v_mov_b32 v4, s100
s_waitcnt lgkmcnt(0)
v_mov_b32 v5, s98
buffer_store_dwordx2 v[4:5], v3, s[28:31], s20 offen""")
        else:
            a(f"""s_mov_b64 exec, 0xffff
v_lshlrev_b32 v3, 2, v0
buffer_store_dword v{SV}, v3, s[28:31], s20 offen""")
    def ws_srd():
        a(f"s_mov_b32 s28, s18\ns_mov_b32 s29, s19\ns_mov_b32 s30, {WS_BYTES}\ns_mov_b32 s31, 0x20000")
    def read_tags(v):
        a(f"""v_mov_b32 v{v}, 0
ds_read_b64 v[{v}:{v+1}], v{v} offset:{L_TAGS}
s_waitcnt lgkmcnt(0)
v_readfirstlane_b32 s26, v{v}
v_readfirstlane_b32 s27, v{v+1}""")
    def poll_result(dst, tag, off, cnt):
        l1, l2, l2b, l3 = label("L_rp"), label("L_rf"), label("L_rg"), label("L_rd")
        if p.local_res:
            a(f"""s_and_b32 s{off}, s2, 7
s_lshl_b32 s{off}, s{off}, 13
s_add_u32 s{off}, s{off}, {WS_RES}
s_mov_b32 s{cnt}, {p.na_res}
{l1}:
s_load_dwordx4 s[{dst}:{dst+3}], s[18:19], s{off}
s_add_u32 s{off}, s{off}, 128
s_sub_u32 s{cnt}, s{cnt}, 1
s_cbranch_scc1 {l2}
s_waitcnt lgkmcnt(0)
s_cmp_lg_u32 s{dst+3}, s{tag}
s_cbranch_scc1 {l1}
{l3}:""")
        else: a(f"s_branch {l2}\n{l3}:")
        back = cur[0]
        sec("cold")
        a(f"""{l2}:
s_and_b32 s{off}, s2, 7
s_lshl_b32 s{off}, s{off}, 8
s_add_u32 s{off}, s{off}, {WS_RESF}
s_mov_b32 s{cnt}, {SPIN}
{l2b}:
s_waitcnt lgkmcnt(0)
s_load_dwordx4 s[{dst}:{dst+3}], s[18:19], s{off} glc
s_waitcnt lgkmcnt(0)
s_cmp_eq_u32 s{dst+3}, s{tag}
s_cbranch_scc1 {l3}
s_sleep 8
s_sub_u32 s{cnt}, s{cnt}, 1
s_cbranch_scc0 {l2b}
s_branch {l3}""")
        cur[0] = back
    def selectors():
        a("""; v16..v23: byte selectors that place one bf16 at element (lane&7) of an 8-element A fragment
v_and_b32 v3, 1, v0
v_cmp_eq_u32 vcc, 1, v3
v_mov_b32 v4, 0x0c0c0100
v_mov_b32 v5, 0x01000c0c
v_mov_b32 v6, 0x0c0c0302
v_mov_b32 v7, 0x03020c0c
v_cndmask_b32 v4, v4, v5, vcc
v_cndmask_b32 v5, v6, v7, vcc
v_bfe_u32 v3, v0, 1, 2
v_mov_b32 v6, 0x0c0c0c0c""")
        for d in range(4):
            a(f"""v_cmp_eq_u32 vcc, {d}, v3
s_nop 1
v_cndmask_b32 v{16+d}, v6, v4, vcc
v_cndmask_b32 v{20+d}, v6, v5, vcc""")
    def perms(dst, src, par):
        for d in range(4): a(f"v_perm_b32 v{dst+d}, v{src}, v{src}, v{16+4*par+d}")
    def fgj():
        a("""s_and_b32 s20, s2, 7
s_lshr_b32 s33, s2, 3
s_mul_i32 s20, s20, 7
s_lshr_b32 s21, s33, 2
s_add_u32 s32, s20, s21
s_and_b32 s33, s33, 3                ; s33 = j
v_lshrrev_b32 v1, 4, v0              ; g
v_and_b32 v2, 15, v0                 ; jj""")

    sec("entry")
    if st: a(f"v_mov_b32 v{SV}, 0")
    if p.light: a("s_memrealtime s[100:101]")
    stamp(0)
    a(f"""s_load_dwordx8 s[4:11], s[0:1], 0
s_load_dwordx8 s[12:19], s[0:1], 32
v_readfirstlane_b32 s3, v0
s_cmp_ge_u32 s2, 256
s_cbranch_scc1 L_end
v_and_b32 v0, 63, v0
s_lshr_b32 s3, s3, 6
s_cmp_ge_u32 s3, 5
s_cbranch_scc1 L_stubD
s_cmp_lg_u32 s3, 0
s_cbranch_scc1 L_Lstart""")

    sec("R1")
    a("s_mov_b32 s35, s2")
    if p.relief:
        a("""; workgroups whose gate/up column group is 3 mod 8 load those lines more slowly: a helper routes their rows
s_and_b32 s20, s2, 7
s_mul_i32 s21, s20, 7
s_lshr_b32 s22, s2, 5
s_add_u32 s21, s21, s22
s_lshr_b32 s22, s22, 3
s_cmp_ge_u32 s2, 224
s_cselect_b32 s21, 0, s21
s_and_b32 s22, s21, 7
s_cmp_eq_u32 s22, 3
s_cbranch_scc1 L_R3""")
    a(f"""L_R1:
s_setprio 3
s_lshl_b32 s43, s35, 14
s_add_u32 s44, s43, 4096
v_lshlrev_b32 v1, 4, v0
v_add_u32 v90, s44, v1
v_add_u32 v91, 8192, v90
v_mov_b32 v88, 0
v_mov_b32 v84, -1
v_mov_b32 v85, -1
v_mov_b32 v86, 0
v_mov_b32 v87, 0
s_mov_b64 exec, 1
ds_write_b128 v88, v[84:87] offset:{L_ROUTE}
s_mov_b64 exec, -1
s_waitcnt lgkmcnt(0)""")
    stamp(8)
    for i in range(16):
        a(f"global_load_dwordx4 v[{10+4*i}:{13+4*i}], v{90+i//8}, s[4:5] offset:{(i%8)*1024-4096} {p.xmod}")
        if i == 1:
            a("global_load_dwordx4 v[2:5], v1, s[6:7]\nglobal_load_dwordx4 v[6:9], v1, s[6:7] offset:1024")
    a(f"s_load_dword s46, s[18:19], {WS_E}")
    stamp(9)
    a("s_barrier\ns_branch L_R2")

    sec("stubs")
    a("L_stubD:\ns_cmp_ge_u32 s2, 224\ns_cbranch_scc1 L_stubA")
    if p.cpf:
        a(f"""s_cmp_lg_u32 s3, 8
s_cbranch_scc1 L_nocpf
s_getpc_b64 s[22:23]
L_pc:
v_lshlrev_b32 v1, 7, v0
v_min_u32 v1, L_end-L_pc, v1
global_load_dword v100, v1, s[22:23]
L_nocpf:""")
    a(f"""s_barrier
s_barrier
s_branch L_D
L_stubA:
s_cmp_lg_u32 s3, 5
s_cbranch_scc1 L_end
L_stubH:
s_waitcnt lgkmcnt(0)
s_load_dword s46, s[18:19], {WS_E}
s_waitcnt lgkmcnt(0)
s_barrier
s_cmp_eq_u32 s3, 5
s_cbranch_scc1 L_AGG
s_branch L_RED
L_stubR:
s_cmp_ge_u32 s3, 3
s_cbranch_scc0 L_stubH""")
    if p.relief:
        a("""s_cmp_lg_u32 s3, 3
s_cbranch_scc1 L_end
s_sub_u32 s20, s2, 224
s_cmp_ge_u32 s20, 28
s_cbranch_scc1 L_end
s_lshr_b32 s21, s20, 2               ; m
s_and_b32 s20, s20, 3                ; j
s_add_u32 s22, s21, 4
s_lshr_b32 s22, s22, 3
s_add_u32 s22, s22, s21              ; x = m + (m >= 4)
s_lshl_b32 s21, s21, 3
s_add_u32 s21, s21, 3                ; fg
s_mul_i32 s23, s22, 7
s_sub_u32 s21, s21, s23              ; fg - 7x
s_lshl_b32 s21, s21, 5
s_lshl_b32 s20, s20, 3
s_add_u32 s35, s21, s20
s_add_u32 s35, s35, s22
s_branch L_R1""")
    else: a("s_endpgm")
    sec("R3")
    if p.relief:
        a(f"""L_R3:
s_lshr_b32 s21, s21, 3
s_lshl_b32 s21, s21, 2
s_bfe_u32 s22, s2, 0x20003
s_add_u32 s21, s21, s22              ; h = 4m + j
s_lshl_b32 s48, s21, 3
s_add_u32 s48, s48, {WS_ARR}
v_mov_b32 v88, 0
v_mov_b32 v84, -1
v_mov_b32 v85, -1
v_mov_b32 v86, 0
v_mov_b32 v87, 0
s_mov_b64 exec, 1
ds_write_b128 v88, v[84:87] offset:{L_ROUTE}
s_waitcnt lgkmcnt(0)
s_load_dword s46, s[18:19], {WS_E}
s_barrier""")
        ws_srd()
        a(f"""s_waitcnt lgkmcnt(0)
s_mul_i32 s50, s46, {C1:#x}
s_add_u32 s50, s50, {D1:#x}          ; T1
s_xor_b32 s51, s50, {X12:#x}         ; T2
s_mul_i32 s52, s46, {C2:#x}
s_add_u32 s52, s52, {D2:#x}          ; Tres
s_and_b32 s53, s52, 15               ; tagA
v_mov_b32 v84, s52
v_mov_b32 v85, s53
ds_write_b64 v88, v[84:85] offset:{L_TAGS}
v_mov_b32 v74, s50
v_mov_b32 v75, s51
s_waitcnt lgkmcnt(0)
s_barrier
buffer_store_dwordx2 v[74:75], v88, s[28:31], s48 offen sc1""")
        poll_result(40, 52, 44, 45)
        a(f"""v_mov_b32 v84, s40
v_mov_b32 v85, s41
ds_write_b64 v88, v[84:85] offset:{L_ROUTE}
s_barrier
s_barrier""")
        stamp_out()
        a("s_endpgm")
    else: a("s_nop 0")

    sec("R2")
    a("L_R2:")
    stamp(1)
    ws_srd()
    a(f"""s_mov_b32 s24, s14
s_mov_b32 s25, s15
s_mov_b32 s26, {X_BYTES}
s_mov_b32 s27, 0x20000
v_lshrrev_b32 v82, 5, v0
v_bfe_u32 v83, v0, 4, 1
v_lshl_or_b32 v82, v83, 1, v82
v_bfe_u32 v83, v0, 3, 1
v_lshl_or_b32 v82, v83, 2, v82
s_lshl_b32 s47, s35, 3
s_sub_u32 s47, 2047, s47
v_sub_u32 v82, s47, v82
v_mul_u32_u24 v92, {KSTR}, v0
s_lshl_b32 s48, s35, 3
s_add_u32 s48, s48, {WS_KEYS}
s_waitcnt lgkmcnt(0)
s_mul_i32 s50, s46, {C1:#x}
s_add_u32 s50, s50, {D1:#x}          ; T1
s_xor_b32 s51, s50, {X12:#x}         ; T2
s_mul_i32 s52, s46, {C2:#x}
s_add_u32 s52, s52, {D2:#x}          ; Tres
s_and_b32 s53, s52, 15               ; tagA
v_mov_b32 v84, s52
v_mov_b32 v85, s53
s_mov_b64 exec, 1
ds_write_b64 v88, v[84:85] offset:{L_TAGS}
s_mov_b64 exec, -1""")
    for r in range(8):
        a(f"s_waitcnt vmcnt({14-2*r})")
        b = 10 + 8*r
        a(f"v_dot2_f32_bf16 v{74+r}, v{b}, v2, 0")
        for q in range(1, 8): a(f"v_dot2c_f32_bf16 v{74+r}, v{b+q}, v{2+q}")
    stamp(2)
    a("""s_nop 2
v_permlane32_swap_b32 v74, v75
v_permlane32_swap_b32 v76, v77
v_permlane32_swap_b32 v78, v79
v_permlane32_swap_b32 v80, v81
v_add_f32 v74, v74, v75
v_add_f32 v76, v76, v77
v_add_f32 v78, v78, v79
v_add_f32 v80, v80, v81
s_nop 0
v_permlane16_swap_b32 v74, v76
v_permlane16_swap_b32 v78, v80
v_add_f32 v74, v74, v76
v_add_f32 v78, v78, v80
s_nop 0
v_add_f32_dpp v75, v74, v74 row_ror:8 row_mask:0xf bank_mask:0xf
v_add_f32_dpp v75, v78, v78 row_ror:8 row_mask:0xf bank_mask:0xc
s_nop 1
v_add_f32_dpp v75, v75, v75 row_half_mirror row_mask:0xf bank_mask:0xf
s_nop 1
v_add_f32_dpp v75, v75, v75 quad_perm:[1,0,3,2] row_mask:0xf bank_mask:0xf
s_nop 1
v_add_f32_dpp v75, v75, v75 quad_perm:[2,3,0,1] row_mask:0xf bank_mask:0xf
v_cmp_u_f32 vcc, v75, v75
v_cvt_pk_bf16_f32 v76, v75, v75
v_ashrrev_i32 v77, 31, v76
v_or_b32 v77, 0x80000000, v77
v_xor_b32 v76, v76, v77
v_lshrrev_b32 v76, 16, v76
v_cndmask_b32 v76, v76, 0, vcc
v_lshl_or_b32 v76, v76, 11, v82      ; key
s_nop 1
v_max_u32_dpp v74, v76, v76 row_ror:8 row_mask:0xf bank_mask:0xf
v_min_u32_dpp v75, v76, v76 row_ror:8 row_mask:0xf bank_mask:0xf
v_mov_b32 v76, v74
v_mov_b32 v77, v75
s_nop 1
v_permlane16_swap_b32 v74, v76
v_permlane16_swap_b32 v75, v77
v_min_u32 v78, v74, v76
v_max_u32 v74, v74, v76
v_max3_u32 v75, v75, v77, v78
v_mov_b32 v76, v74
v_mov_b32 v77, v75
s_nop 1
v_permlane32_swap_b32 v74, v76
v_permlane32_swap_b32 v75, v77
v_min_u32 v78, v74, v76
v_max_u32 v74, v74, v76
v_max3_u32 v75, v75, v77, v78
v_xor_b32 v74, s50, v74
v_xor_b32 v75, s51, v75
s_mov_b64 exec, REPMASK
buffer_store_dwordx2 v[74:75], v92, s[28:31], s48 offen sc1
s_mov_b64 exec, 1
s_cmp_ge_u32 s2, E3LIM
s_cbranch_scc1 L_Rnob
s_waitcnt lgkmcnt(0)
s_barrier
L_Rnob:""")
    stamp(3)
    poll_result(40, 52, 44, 45)
    a(f"""v_mov_b32 v84, s40
v_mov_b32 v85, s41
ds_write_b64 v88, v[84:85] offset:{L_ROUTE}
s_mov_b64 exec, -1
s_setprio 0""")
    stamp(4)
    a("s_cmp_ge_u32 s2, 224\ns_cbranch_scc1 L_rstore")
    for i in range(p.store_at): a("s_barrier")
    if p.rsleep: a(f"s_sleep {p.rsleep}")
    a("L_rstore:\ns_lshl_b32 s43, s35, 14")
    stamp(5)
    for r in range(8):
        a(f"""s_cmp_eq_u32 s43, s40
s_cselect_b32 s54, 0x40000000, s43
s_cmp_eq_u32 s43, s41
s_cselect_b32 s54, 0x40000000, s54
buffer_store_dwordx4 v[{10+8*r}:{13+8*r}], v1, s[24:27], s54 offen {p.omod}
buffer_store_dwordx4 v[{14+8*r}:{17+8*r}], v1, s[24:27], s54 offen offset:1024 {p.omod}""")
        if r < 7: a("s_add_u32 s43, s43, 2048")
    stamp(6)
    if p.store_at < 2:
        a("s_cmp_ge_u32 s2, 224\ns_cbranch_scc1 L_rfin")
        for i in range(2 - p.store_at): a("s_barrier")
        a("L_rfin:")
    if st: a("s_waitcnt vmcnt(0)"); stamp(7)
    stamp_out()
    a("s_endpgm")

    sec("Lstart")
    a("""L_Lstart:
s_cmp_ge_u32 s2, 224
s_cbranch_scc1 L_stubR""")
    fgj()
    a(f"""s_sub_u32 s34, s3, 1                 ; w
s_lshl_b32 s20, s33, 8
s_lshl_b32 s21, s34, 6
s_add_u32 s20, s20, s21
s_mul_i32 s21, s20, 7168
s_lshl_b32 s22, s32, 7
s_add_u32 s21, s21, s22
v_cmp_gt_u32 vcc, 8, v2
v_and_b32 v3, 7, v2
v_lshlrev_b32 v3, 4, v3
v_mul_u32_u24 v4, {p.rstr*7168}, v1
v_add3_u32 v3, v3, v4, s21
s_mov_b32 s22, 7168
s_mov_b32 s23, 0
s_mov_b32 s24, {7168*(3*p.rstr+1)}
s_mov_b32 s25, 0
s_waitcnt lgkmcnt(0)
v_mov_b32 v4, s10
v_mov_b32 v5, s8
v_mov_b32 v6, s11
v_mov_b32 v7, s9
v_cndmask_b32 v4, v4, v5, vcc
v_cndmask_b32 v5, v6, v7, vcc
v_add_co_u32 v4, vcc, v4, v3
v_mov_b32 v6, 0
v_mov_b32 v7, 1
v_addc_co_u32 v5, vcc, 0, v5, vcc""")
    stamp(8)
    a("s_barrier")
    def lcount():
        a(f"s_mov_b64 exec, 1\nds_add_u32 v6, v7 offset:{L_CNT}\ns_mov_b64 exec, -1")
    def gload(m):
        a(f"global_load_dwordx4 v[{32+4*m}:{35+4*m}], v[4:5], off {p.wmod}")
        if m < 15: a(f"v_lshl_add_u64 v[4:5], v[4:5], 0, s[{'24:25' if (m+1) % p.rstr == 0 else '22:23'}]")
    for m in range(p.nb1): gload(m)
    stamp(1); a("s_branch L_L2"); sec("L2"); a("L_L2:\ns_barrier")
    def batch2(th, cpos):
        for m in range(p.nb1, 16):
            if m == cpos: lcount()
            if th and m >= th: a(f"s_waitcnt vmcnt({th-1})")
            gload(m)
        if cpos >= 16: lcount()
    assert p.cpos >= p.nb1
    if p.th3 >= 0:
        a("s_and_b32 s26, s32, 7\ns_cmp_eq_u32 s26, 3\ns_cbranch_scc1 L_b2alt")
        batch2(p.th2, p.cpos)
        a("L_b2done:")
        back = cur[0]; sec("cold"); a("L_b2alt:"); batch2(p.th3, p.cpos3); a("s_branch L_b2done"); cur[0] = back
    else: batch2(p.th2, p.cpos)
    stamp(2)
    read_tags(8)
    selectors()
    ws_srd()
    a(f"""s_lshl_b32 s20, s20, 1
v_lshlrev_b32 v97, 4, v0             ; lane*16
s_lshl_b32 s21, s34, 10
v_add_u32 v98, s21, v97
; publish address: ((jj&7)>>1)*256 + (2*(jj&1)+(g&1))*64 + (g>>1)*32 + (jj>>3)*16
v_bfe_u32 v3, v2, 1, 2
v_lshlrev_b32 v96, 8, v3
v_and_b32 v3, 1, v2
v_lshl_or_b32 v96, v3, 7, v96
v_and_b32 v3, 1, v1
v_lshl_or_b32 v96, v3, 6, v96
v_lshrrev_b32 v3, 1, v1
v_lshl_or_b32 v96, v3, 5, v96
v_lshrrev_b32 v3, 3, v2
v_lshl_or_b32 v96, v3, 4, v96
s_lshl_b32 s12, s32, 2
s_add_u32 s12, s12, s33
s_lshl_b32 s12, s12, 10
s_add_u32 s12, s12, {WS_PREA if p.local_pre else WS_PREB}
s_add_u32 s14, s27, 5
s_add_u32 s15, s27, 10
s_add_u32 s16, s27, 15
v_mov_b32 v3, 0
s_mov_b32 s21, {SPIN*16}
L_Lroute:
ds_read_b64 v[4:5], v3 offset:{L_ROUTE}
s_sub_u32 s21, s21, 1
s_cbranch_scc1 L_Lroute_done
s_waitcnt lgkmcnt(0)
v_readfirstlane_b32 s8, v4
v_readfirstlane_b32 s9, v5
s_cmp_eq_u32 s8, -1
s_cbranch_scc1 L_Lroute
L_Lroute_done:
s_and_b32 s8, s8, 0x3ff800
s_and_b32 s9, s9, 0x3ff800""")
    stamp(3)
    a("""s_add_u32 s8, s8, s20
s_add_u32 s9, s9, s20
s_load_dwordx16 s[36:51], s[4:5], s8
s_load_dwordx16 s[68:83], s[4:5], s9
s_load_dwordx16 s[52:67], s[4:5], s8 offset:64
s_load_dwordx16 s[84:99], s[4:5], s9 offset:64
s_mov_b64 exec, 0xff
s_waitcnt lgkmcnt(0)""")
    stamp(4)
    for g in range(4):
        for t in range(2):
            if p.rstr >= 4:
                for q in range(4):
                    m = 4*q; k = 4*p.rstr*(m//p.rstr) + p.rstr*g + m % p.rstr
                    sr = 36 + 32*t + k//2
                    a(f"v_mov_b64 v[{8+2*q}:{9+2*q}], s[{sr}:{sr+1}]")
            else:
                assert p.rstr == 2
                for i in range(8):
                    a(f"v_mov_b32 v{8+i}, s{36 + 32*t + 4*i + g}")
            a("s_lshl_b64 exec, exec, 8" if (g, t) != (3, 1) else "s_mov_b64 exec, -1")
    perms(24, 8, 0)
    a("s_waitcnt vmcnt(0)")
    stamp(5)
    for m in range(16):
        c = 24 + 4*(m & 1); nx = 24 + 4*((m+1) & 1)
        if m < 15: perms(nx, 8 + ((m+1) >> 1), (m+1) & 1)
        else: a("s_nop 1")
        a(f"v_mfma_f32_16x16x32_bf16 v[4:7], v[{c}:{c+3}], v[{32+4*m}:{35+4*m}], {'0' if m == 0 else 'v[4:7]'}")
    a(f"""s_nop 7
ds_write_b128 v98, v[4:7] offset:{L_RED1}
s_waitcnt lgkmcnt(0)
s_barrier""")
    stamp(6)
    a(f"""s_cmp_lg_u32 s34, 0
s_cbranch_scc1 L_L_done
ds_read_b128 v[8:11], v97 offset:{L_RED1+1024}
ds_read_b128 v[12:15], v97 offset:{L_RED1+2048}
ds_read_b128 v[24:27], v97 offset:{L_RED1+3072}
s_waitcnt lgkmcnt(2)
v_pk_add_f32 v[4:5], v[4:5], v[8:9]
v_pk_add_f32 v[6:7], v[6:7], v[10:11]
s_waitcnt lgkmcnt(0)
v_pk_add_f32 v[12:13], v[12:13], v[24:25]
v_pk_add_f32 v[14:15], v[14:15], v[26:27]
v_pk_add_f32 v[4:5], v[4:5], v[12:13]
v_pk_add_f32 v[6:7], v[6:7], v[14:15]
v_bfi_b32 v4, 15, s27, v4
v_bfi_b32 v5, 15, s14, v5
v_bfi_b32 v6, 15, s15, v6
v_bfi_b32 v7, 15, s16, v7
buffer_store_dwordx4 v[4:7], v96, s[28:31], s12 offen {'' if p.local_pre else 'sc1'}""")
    stamp(7)
    a("s_barrier\nL_L_done:")
    stamp_out()
    a("s_endpgm")

    sec("D")
    a("L_D:")
    fgj()
    a(f"""s_sub_u32 s34, s3, 5                 ; w
v_lshlrev_b32 v64, 13, v1
v_lshl_or_b32 v64, v2, 4, v64
s_lshl_b32 s20, s32, 6
s_lshl_b32 s21, s34, 4
s_add_u32 s20, s20, s21
s_lshl_b32 s20, s20, 11
s_lshl_b32 s21, s33, 9
s_add_u32 s20, s20, s21
s_add_u32 s21, s20, 4096
s_waitcnt lgkmcnt(0)
s_mov_b32 s36, s12
s_mov_b32 s37, s13
s_mov_b32 s38, {W_BYTES}
s_mov_b32 s39, 0x20000""")
    ws_srd()
    selectors()
    read_tags(8)
    a(f"""v_lshlrev_b32 v65, 4, v0             ; lane*16
s_lshl_b32 s22, s34, 11
v_add_u32 v66, s22, v65
s_lshl_b32 s22, s34, 10
v_add_u32 v67, s22, v65
s_lshl_b32 s23, s32, 2
s_add_u32 s23, s23, s33
s_lshl_b32 s23, s23, 11
s_add_u32 s23, s23, s22
s_add_u32 s23, s23, {WS_YP}
v_lshrrev_b32 v3, 1, v2
v_lshlrev_b32 v68, 7, v3
v_lshrrev_b32 v3, 1, v1
v_lshl_or_b32 v68, v3, 6, v68
v_and_b32 v3, 1, v2
v_and_b32 v4, 1, v1
v_lshl_or_b32 v3, v3, 1, v4
v_lshl_or_b32 v68, v3, 4, v68
v_mad_u32_u24 v71, v3, 5, s27
s_and_b32 s48, s2, 7
s_lshl_b32 s48, s48, 7
s_lshr_b32 s49, s2, 3
s_lshl_b32 s49, s49, 2
s_add_u32 s48, s48, s49
s_add_u32 s48, s48, {WS_DONE}
; mailbox word of lane (g,t,mat,m): w*256 + lane*4
s_lshl_b32 s22, s34, 8
v_lshl_add_u32 v69, v0, 2, s22
v_and_b32 v4, 3, v0
v_mad_u32_u24 v70, v4, 5, s27
s_lshl_b32 s41, s32, 12
s_add_u32 s41, s41, {WS_PREA if p.local_pre else WS_PREB}
s_mov_b32 s42, {p.na_pre if p.local_pre else SPIN}
s_mov_b32 s43, 0xbfb8aa3b            ; -log2(e)
s_lshl_b32 s44, s33, 10
s_add_u32 s44, s44, s41
v_mov_b32 v72, s26
v_mov_b32 v3, 0
s_mov_b32 s22, {SPIN*4}
L_Dcnt:
s_sleep 1
ds_read_b32 v4, v3 offset:{L_CNT}
s_sub_u32 s22, s22, 1
s_cbranch_scc1 L_Dcnt_done
s_waitcnt lgkmcnt(0)
v_readfirstlane_b32 s45, v4
s_cmp_lt_u32 s45, 4
s_cbranch_scc1 L_Dcnt
L_Dcnt_done:
; (they also bring the mailbox lines into L2)""")
    for q in range(4): a(f"buffer_load_dword v{8+q}, v69, s[28:31], s41 offen offset:{q*1024} sc1")
    a("s_waitcnt vmcnt(0)")
    stamp(1)
    for i in range(8):
        m, half = i >> 1, i & 1
        if p.thd and i >= p.thd: a(f"s_waitcnt vmcnt({p.thd-1})")
        a(f"buffer_load_dwordx4 v[{32+4*i}:{35+4*i}], v64, s[36:39], s{20 + (m>>1)} offen offset:{(m&1)*2048+half*256} {p.dmod}")
    stamp(2)
    a("s_barrier")
    if p.pre_sleep: a(f"s_sleep {p.pre_sleep}")
    stamp(3)
    a("L_poll2:")
    for q in range(4):
        a(f"buffer_load_dword v{8+q}, v69, s[28:31], s41 offen offset:{q*1024} sc1")
    a("s_sub_u32 s42, s42, 1\ns_cbranch_scc1 L_p2sw\ns_waitcnt vmcnt(0)")
    stamp_idx(p.na_pre+7, 42, 8)
    a(f"""v_xor_b32 v12, v8, v70
v_xor_b32 v13, v9, v70
v_bitop3_b32 v12, v10, v70, v12 bitop3:{XOR_OR:#x}
v_bitop3_b32 v13, v11, v70, v13 bitop3:{XOR_OR:#x}
v_add_f32 v8, v8, v9
v_or_b32 v12, v12, v13
v_add_f32 v10, v10, v11
v_and_b32 v12, 15, v12
v_add_f32 v8, v8, v10
v_cmp_ne_u32 vcc, 0, v12
s_cbranch_vccnz L_poll2
L_poll2_done:""")
    stamp(4)
    a(f"""v_cvt_pk_bf16_f32 v8, v8, v8
v_and_b32 v8, 0xffff0000, v8
v_mul_f32 v9, s43, v8
v_exp_f32 v9, v9
s_nop 0
v_add_f32 v9, 1.0, v9
v_rcp_f32 v9, v9
s_nop 0
v_mul_f32 v9, v8, v9
v_cvt_pk_bf16_f32 v9, v9, v9
v_and_b32 v9, 0xffff0000, v9
v_mul_f32_dpp v10, v8, v9 row_shl:4 row_mask:0xf bank_mask:0x5
s_nop 0
v_mul_f32_dpp v10, v9, v8 row_shr:4 row_mask:0xf bank_mask:0xa
s_nop 1
v_mov_b32_dpp v8, v10 quad_perm:[0,0,0,0] row_mask:0xf bank_mask:0xf
v_mov_b32_dpp v11, v10 quad_perm:[1,1,1,1] row_mask:0xf bank_mask:0xf
v_mov_b32_dpp v9, v10 quad_perm:[2,2,2,2] row_mask:0xf bank_mask:0xf
v_mov_b32_dpp v12, v10 quad_perm:[3,3,3,3] row_mask:0xf bank_mask:0xf
v_cvt_pk_bf16_f32 v8, v8, v11
v_cvt_pk_bf16_f32 v9, v9, v12""")
    perms(24, 8, 0)
    for m in range(4):
        c = 24 + 4*(m & 1); nx = 24 + 4*((m+1) & 1)
        if m < 3: perms(nx, 8 + ((m+1) >> 1), (m+1) & 1)
        for half in range(2):
            acc = f"v[{4+8*half}:{7+8*half}]"
            i = 2*m + half
            a(f"v_mfma_f32_16x16x32_bf16 {acc}, v[{c}:{c+3}], v[{32+4*i}:{35+4*i}], {'0' if m == 0 else acc}")
    a(f"""s_nop 6
ds_write_b128 v66, v[4:7] offset:{L_RED2}
ds_write_b128 v66, v[12:15] offset:{L_RED2+1024}
s_waitcnt lgkmcnt(0)
s_barrier""")
    stamp(5)
    a(f"""s_cmp_ge_u32 s34, 2
s_cbranch_scc1 L_D_copy
ds_read_b128 v[4:7], v67 offset:{L_RED2}
ds_read_b128 v[8:11], v67 offset:{L_RED2+2048}
ds_read_b128 v[12:15], v67 offset:{L_RED2+4096}
ds_read_b128 v[24:27], v67 offset:{L_RED2+6144}
s_waitcnt lgkmcnt(2)
v_pk_add_f32 v[4:5], v[4:5], v[8:9]
v_pk_add_f32 v[6:7], v[6:7], v[10:11]
s_waitcnt lgkmcnt(0)
v_pk_add_f32 v[12:13], v[12:13], v[24:25]
v_pk_add_f32 v[14:15], v[14:15], v[26:27]
v_pk_add_f32 v[4:5], v[4:5], v[12:13]
v_pk_add_f32 v[6:7], v[6:7], v[14:15]
v_bfi_b32 v4, 15, v71, v4
buffer_store_dwordx4 v[4:7], v68, s[28:31], s23 offen sc1
L_D_done:""")
    stamp(6)
    if st: a("s_waitcnt vmcnt(0)"); stamp(7)
    stamp_out()
    a("s_endpgm\nL_D_copy:")
    if p.hint:
        a(f"""s_cmp_lg_u32 s34, 3
s_cbranch_scc1 L_D_copy2
s_mov_b64 exec, 1
buffer_store_dword v72, v3, s[28:31], s48 offen
s_branch L_D_done
L_D_copy2:""")
    if p.local_pre:
        a(f"""; wave D2 copies this workgroup's block to the write-through mailbox (for peers on other dies)
s_cmp_lg_u32 s34, 2
s_cbranch_scc1 L_D_done
buffer_load_dwordx4 v[8:11], v65, s[28:31], s44 offen sc1
s_add_u32 s45, s44, {WS_PREB-WS_PREA}
s_waitcnt vmcnt(0)
buffer_store_dwordx4 v[8:11], v65, s[28:31], s45 offen sc1""")
    a("s_branch L_D_done")
    sec("cold")
    a(f"""; the local mailbox never filled: a peer sits on another die, use the write-through mailbox
L_p2sw:
s_waitcnt vmcnt(0)
s_cmp_ge_u32 s41, {WS_PREB}
s_cbranch_scc1 L_poll2_done
s_mov_b32 s42, {SPIN}
s_add_u32 s40, s27, 5
s_add_u32 s46, s27, 10
s_add_u32 s47, s27, 15
L_p2own:
buffer_load_dwordx4 v[8:11], v65, s[28:31], s44 offen sc1
s_sub_u32 s42, s42, 1
s_cbranch_scc1 L_p2own_done
s_waitcnt vmcnt(0)
v_xor_b32 v12, s27, v8
v_bitop3_b32 v12, v9, s40, v12 bitop3:{XOR_OR:#x}
v_bitop3_b32 v12, v10, s46, v12 bitop3:{XOR_OR:#x}
v_bitop3_b32 v12, v11, s47, v12 bitop3:{XOR_OR:#x}
v_and_b32 v12, 15, v12
v_cmp_ne_u32 vcc, 0, v12
s_cbranch_vccnz L_p2own
L_p2own_done:
s_waitcnt vmcnt(0)
s_add_u32 s45, s44, {WS_PREB-WS_PREA}
buffer_store_dwordx4 v[8:11], v65, s[28:31], s45 offen sc1
s_add_u32 s41, s41, {WS_PREB-WS_PREA}
s_mov_b32 s42, {SPIN}
s_branch L_poll2""")

    sec("RED")
    a(f"""L_RED:
s_sub_u32 s34, s3, 1
s_sub_u32 s44, s2, 224
s_lshl_b32 s45, s44, 1
s_add_u32 s45, s45, s34
s_lshl_b32 s49, s45, 7
v_lshrrev_b32 v1, 3, v0
v_and_b32 v2, 7, v0                  ; sub
v_lshlrev_b32 v3, 13, v1
v_lshl_or_b32 v3, v2, 4, v3
s_add_u32 s36, s18, {WS_YP}
s_addc_u32 s37, s19, 0
s_mov_b32 s38, {56*8192}
s_mov_b32 s39, 0x20000
v_bfe_u32 v4, v0, 4, 1
v_bfe_u32 v5, v0, 5, 1
v_lshl_or_b32 v4, v4, 1, v5
v_and_b32 v40, 3, v0
v_lshl_or_b32 v4, v40, 2, v4
s_lshl_b32 s50, s45, 4
v_add_lshl_u32 v4, v4, s50, 1
v_and_b32 v5, 4, v0
v_cmp_ne_u32 s[56:57], 0, v5
s_and_b32 s48, s2, 7
s_lshl_b32 s48, s48, 7
s_add_u32 s48, s48, {WS_DONE}
v_lshlrev_b32 v41, 2, v0
s_mul_i32 s26, s46, {C2:#x}
s_add_u32 s26, s26, {D2:#x}          ; Tres
s_and_b32 s27, s26, 15               ; tagA
v_mad_u32_u24 v40, v40, 5, s27""")
    ws_srd()
    a("s_cmp_ge_u32 s2, E3LIM\ns_cbranch_scc1 L_REDnob\ns_barrier\nL_REDnob:")
    poll_result(40, 26, 44, 45)
    stamp(1)
    a(f"""s_and_b32 s40, s40, 0x3ff800
s_and_b32 s41, s41, 0x3ff800
v_mov_b32 v8, s40
v_mov_b32 v9, s41
s_and_b32 s44, s42, 0xffff0000
s_lshl_b32 s45, s42, 16
v_mov_b32 v10, s44
v_mov_b32 v11, s45
v_cndmask_b32 v8, v8, v9, s[56:57]
v_cndmask_b32 v10, v10, v11, s[56:57]
v_add_u32 v4, v4, v8
global_load_ushort v6, v4, s[4:5]
v_mul_f32 v10, 0xbfb8aa3b, v10
v_exp_f32 v10, v10
s_mov_b32 s58, {SPIN}
v_add_f32 v10, 1.0, v10
v_rcp_f32 v10, v10
s_nop 0
v_cvt_pk_bf16_f32 v10, v10, v10
v_and_b32 v7, 0xffff0000, v10""")
    if p.hint:
        a(f"""; timing hint only: wait until the workgroups of this die have finished before the first look at the partials
s_mov_b32 s59, {p.hint_max}
s_mov_b32 exec_lo, 0x0fffffff
s_mov_b32 exec_hi, 0
L_hint:
buffer_load_dword v8, v41, s[28:31], s48 offen sc1
s_sub_u32 s59, s59, 1
s_cbranch_scc1 L_hint_done
s_waitcnt vmcnt(0)
v_cmp_ne_u32 vcc, s26, v8
s_cbranch_vccnz L_hint
L_hint_done:
s_mov_b64 exec, -1""")
    if p.red_delay: a(f"s_sleep {p.red_delay}")
    stamp(2)
    if st: a("s_mov_b32 s61, 0\ns_mov_b32 s62, 0\ns_mov_b32 s63, 0")
    a("L_poll3:\ns_mov_b32 s47, s49")
    for i in range(7):
        a(f"buffer_load_dwordx4 v[{8+4*i}:{11+4*i}], v3, s[36:39], s47 offen sc1")
        if i < 6: a(f"s_add_u32 s47, s47, {8*8192}")
    a("s_sub_u32 s58, s58, 1\ns_cbranch_scc1 L_poll3_done\ns_waitcnt vmcnt(0)")
    if st:
        a(f"""s_memrealtime s[100:101]
s_mov_b32 s64, s63
s_mov_b32 s63, s62
s_waitcnt lgkmcnt(0)
s_mov_b32 s62, s100
v_writelane_b32 v{SV}, s63, 7
v_writelane_b32 v{SV}, s64, 8""")
    a(f"""v_xor_b32 v36, v8, v40
v_xor_b32 v37, v12, v40
v_bitop3_b32 v36, v16, v40, v36 bitop3:{XOR_OR:#x}
v_bitop3_b32 v37, v20, v40, v37 bitop3:{XOR_OR:#x}
v_bitop3_b32 v36, v24, v40, v36 bitop3:{XOR_OR:#x}
v_bitop3_b32 v37, v28, v40, v37 bitop3:{XOR_OR:#x}
v_bitop3_b32 v36, v32, v40, v36 bitop3:{XOR_OR:#x}
v_pk_add_f32 v[8:9], v[8:9], v[12:13]
v_or_b32 v36, v36, v37
v_pk_add_f32 v[10:11], v[10:11], v[14:15]
v_and_b32 v36, 15, v36
v_pk_add_f32 v[16:17], v[16:17], v[20:21]
v_cmp_ne_u32 vcc, 0, v36
s_cbranch_vccnz L_poll3
L_poll3_done:""")
    stamp(3)
    a(f"""v_pk_add_f32 v[18:19], v[18:19], v[22:23]
v_pk_add_f32 v[24:25], v[24:25], v[28:29]
v_pk_add_f32 v[26:27], v[26:27], v[30:31]
v_pk_add_f32 v[8:9], v[8:9], v[32:33]
v_pk_add_f32 v[10:11], v[10:11], v[34:35]
v_pk_add_f32 v[16:17], v[16:17], v[24:25]
v_pk_add_f32 v[18:19], v[18:19], v[26:27]
v_pk_add_f32 v[8:9], v[8:9], v[16:17]
v_pk_add_f32 v[10:11], v[10:11], v[18:19]
v_lshlrev_b32 v6, 16, v6
s_nop 0
v_permlane32_swap_b32 v8, v9
v_permlane32_swap_b32 v10, v11
v_add_f32 v8, v8, v9
v_add_f32 v10, v10, v11
s_nop 1
v_permlane16_swap_b32 v8, v10
v_add_f32 v8, v8, v10
s_nop 1
v_add_f32_dpp v8, v8, v8 row_ror:8 row_mask:0xf bank_mask:0xf
s_mov_b32 exec_lo, 0x00ff00ff
s_mov_b32 exec_hi, 0x00ff00ff
v_cvt_pk_bf16_f32 v8, v8, v8
v_and_b32 v8, 0xffff0000, v8
v_mul_f32 v8, v8, v7
v_cvt_pk_bf16_f32 v8, v8, v8
v_and_b32 v8, 0xffff0000, v8
v_add_f32 v8, v8, v6
v_cvt_pk_bf16_f32 v8, v8, v8
global_store_short v4, v8, s[14:15] {p.fmod}""")
    stamp(4)
    if st: a("s_waitcnt vmcnt(0)"); stamp(5)
    stamp_out()
    a("s_endpgm")

    sec("AGG")
    a(f"""L_AGG:
s_setprio 3
s_and_b32 s32, s2, 7
v_lshlrev_b32 v1, 7, v0              ; lane*128
s_lshl_b32 s33, s32, 13
s_add_u32 s33, s33, {WS_RES}
s_lshl_b32 s34, s32, 8
s_add_u32 s34, s34, {WS_RESF}
s_lshr_b32 s53, s2, 3
s_and_b32 s53, s53, 3
s_cmp_ge_u32 s2, E3LIM
s_cselect_b32 s36, 8, s32
s_mul_i32 s36, s36, {KSTR}
s_add_u32 s36, s36, {WS_KEYS}""")
    ws_srd()
    a(f"""s_cmp_lg_u32 s53, 0
s_cbranch_scc1 L_notouch
s_mov_b32 exec_hi, {0 if p.nres <= 32 else -1}
buffer_load_dword v3, v1, s[28:31], s33 offen sc1
s_mov_b64 exec, -1
L_notouch:
; expected id bits of entry p = 4*lane + e : (255-p)<<3
v_lshlrev_b32 v93, 5, v0
v_sub_u32 v88, {255*8}, v93
v_subrev_u32 v89, 8, v88
v_subrev_u32 v90, 16, v88
v_subrev_u32 v91, 24, v88
v_lshlrev_b32 v2, 4, v0
s_mov_b32 s52, {SPIN}
s_mul_i32 s50, s46, {C1:#x}
s_add_u32 s50, s50, {D1:#x}          ; T1
s_xor_b32 s51, s50, {X12:#x}         ; T2
s_mul_i32 s54, s46, {C2:#x}
s_add_u32 s54, s54, {D2:#x}          ; Tres
v_mov_b32 v83, s54
v_mov_b32 v70, 0
v_mov_b32 v71, 0
v_mov_b32 v92, 0x07060302
s_mov_b64 s[56:57], -1
s_cmp_ge_u32 s2, E3LIM
s_cbranch_scc1 L_aggo
s_barrier""")
    if p.agg_d0: a(f"s_sleep {p.agg_d0}")
    if p.agg_d1: a(f"""s_cmp_eq_u32 s53, 0
s_cbranch_scc1 L_aggo
s_sleep {p.agg_d1}
s_cmp_eq_u32 s53, 1
s_cbranch_scc1 L_aggo
s_sleep {p.agg_d1}
s_cmp_eq_u32 s53, 2
s_cbranch_scc1 L_aggo
s_sleep {p.agg_d1}""")
    a("L_aggo:")
    stamp(1)
    def merge_decode():
        for k, ctrl in enumerate(("quad_perm:[1,0,3,2]", "quad_perm:[2,3,0,1]", "row_half_mirror", "row_mirror")):
            s1, s2 = ("v70", "v71") if k == 0 else ("v76", "v77")
            a(f"""s_nop 1
v_min_u32_dpp v84, {s1}, {s1} {ctrl} row_mask:0xf bank_mask:0xf
v_max_u32_dpp v85, {s2}, {s2} {ctrl} row_mask:0xf bank_mask:0xf
v_max_u32_dpp v76, {s1}, {s1} {ctrl} row_mask:0xf bank_mask:0xf
v_max_u32 v77, v84, v85""")
        for sw in ("v_permlane16_swap_b32", "v_permlane32_swap_b32"):
            a(f"""v_mov_b32 v78, v76
v_mov_b32 v79, v77
s_nop 1
{sw} v76, v78
{sw} v77, v79
v_min_u32 v84, v76, v78
v_max_u32 v76, v76, v78
v_max3_u32 v77, v77, v79, v84""")
        a("""v_not_b32 v80, v76
v_not_b32 v81, v77
v_and_b32 v80, 0x7ff, v80
v_and_b32 v81, 0x7ff, v81
v_lshlrev_b32 v80, 11, v80
v_lshlrev_b32 v81, 11, v81""")
    def xprefetch():
        a("""v_add_u32 v4, v80, v2
v_add_u32 v5, v81, v2
global_load_dwordx4 v[8:11], v4, s[4:5]
global_load_dwordx4 v[12:15], v5, s[4:5]
global_load_dwordx4 v[16:19], v4, s[4:5] offset:1024
global_load_dwordx4 v[20:23], v5, s[4:5] offset:1024""")
    a("L_poll1:")
    a("buffer_load_dwordx4 v[60:63], v93, s[28:31], s36 offen sc1\nbuffer_load_dwordx4 v[64:67], v93, s[28:31], s36 offen offset:16 sc1")
    a("s_sub_u32 s52, s52, 1\ns_cbranch_scc1 L_poll1_done")
    if p.spec:
        a(("s_cmp_eq_u32 s53, 3\ns_cbranch_scc1 L_spec" if p.early3 else "s_cmp_lg_u64 s[56:57], -1\ns_cbranch_scc1 L_spec") + "\nL_nospec:\ns_waitcnt vmcnt(0)\nL_specdone:")
        back = cur[0]; sec("cold")
        a("""; warm this die's L2 with the rows that lead so far
L_spec:
s_cmp_eq_u64 s[56:57], -1
s_cbranch_scc1 L_nospec
s_mov_b64 exec, -1""")
        merge_decode(); xprefetch()
        a("s_mov_b64 exec, s[56:57]\ns_waitcnt vmcnt(4)\ns_branch L_specdone")
        cur[0] = back
    else: a("s_waitcnt vmcnt(0)")
    stamp_idx(SPIN+3, 52, 4)
    for e in range(4):
        a(f"v_xor_b32 v{60+2*e}, s50, v{60+2*e}\nv_xor_b32 v{61+2*e}, s51, v{61+2*e}")
    tt = ((0xF0 ^ 0xAA) | (0xCC ^ 0xAA)) & 0xFF
    for e in range(4):
        a(f"v_bitop3_b32 v{84+e}, v{60+2*e}, v{61+2*e}, v{88+e} bitop3:{tt:#x}")
    a(f"""v_or3_b32 v84, v84, v85, v86
v_or_b32 v84, v84, v87
v_and_b32 v84, {MASK:#x}, v84
v_cmp_ne_u32 vcc, 0, v84
v_min_u32 v84, v60, v62
v_max_u32 v60, v60, v62
v_max3_u32 v61, v61, v63, v84
v_min_u32 v85, v64, v66
v_max_u32 v64, v64, v66
v_max3_u32 v65, v65, v67, v85
s_andn2_b64 exec, exec, vcc
v_min_u32 v84, v60, v64
v_max_u32 v70, v60, v64
v_max3_u32 v71, v61, v65, v84
s_and_b64 s[56:57], s[56:57], vcc
s_cbranch_scc0 L_poll1_done
s_mov_b64 exec, s[56:57]""")
    if p.agg_sleep:
        a(f"""s_cmp_eq_u32 s53, 0
s_cbranch_scc1 L_poll1
s_cmp_eq_u32 s53, 3
s_cbranch_scc1 L_poll1
s_sleep {p.agg_sleep}
s_cmp_eq_u32 s53, 1
s_cbranch_scc1 L_poll1
s_sleep {p.agg_sleep}""")
    a("s_branch L_poll1\nL_poll1_done:\ns_mov_b64 exec, -1")
    stamp(2)
    merge_decode()
    a("""v_lshlrev_b32 v84, 5, v76
v_lshlrev_b32 v85, 5, v77
v_perm_b32 v82, v84, v85, v92
v_pk_ashrrev_i16 v84, 15, v82 op_sel_hi:[0,1]
v_not_b32 v84, v84
v_or_b32 v84, 0x80008000, v84
v_xor_b32 v82, v82, v84""")
    if p.local_res: a(f"s_mov_b32 exec_hi, {0 if p.nres <= 32 else -1}\nbuffer_store_dwordx4 v[80:83], v1, s[28:31], s33 offen\ns_mov_b64 exec, -1")
    if p.xpre: xprefetch()
    a(f"""v_mov_b32 v3, 0
s_mov_b64 exec, 1
buffer_store_dwordx4 v[80:83], v3, s[28:31], s34 offen sc1""")
    stamp(3)
    a(f"""s_cmp_lg_u32 s2, 224
s_cbranch_scc1 L_agg_done""")
    if p.relief:
        a(f"""; every workgroup must have read the epoch word before it changes
s_mov_b32 exec_lo, 0x0fffffff
v_lshlrev_b32 v4, 3, v0
s_mov_b32 s52, {SPIN}
L_arr:
buffer_load_dwordx2 v[60:61], v4, s[28:31], s55 offen sc1
s_sub_u32 s52, s52, 1
s_cbranch_scc1 L_arr_done
s_waitcnt vmcnt(0)
v_xor_b32 v60, s50, v60
v_bitop3_b32 v60, v61, s51, v60 bitop3:{XOR_OR:#x}
v_cmp_ne_u32 vcc, 0, v60
s_cbranch_vccnz L_arr
L_arr_done:
s_mov_b64 exec, 1""".replace("s_mov_b32 s52, {SPIN}".format(SPIN=SPIN), f"s_mov_b32 s52, {SPIN}\ns_mov_b32 s55, {WS_ARR}"))
    a(f"""s_add_u32 s46, s46, 1
v_mov_b32 v85, s46
buffer_store_dword v85, v3, s[28:31], 0 offen sc1
L_agg_done:""")
    stamp_out()
    a("s_endpgm")

    order = p.order.split(",")
    assert sorted(order) == sorted(S.keys()), (order, list(S.keys()))
    assert order[0] == "entry" and order[1] == "R1"
    body = ""
    for k, name in enumerate(order):
        t = S[name].text()
        if k + 1 < len(order):
            nxt = S[order[k+1]].lines[0].strip()
            lines = t.rstrip("\n").split("\n")
            if lines[-1].strip() == "s_branch " + nxt.rstrip(":"): t = "\n".join(lines[:-1]) + "\n"
        body += f"; ---------------- {name}\n" + t
    body += "L_end:\n    s_endpgm\n"
    body = body.replace("REPMASK", "0x1ff" if p.early3 else "0xff").replace("E3LIM", "248" if p.early3 else "256")
    meta = dict(nwg=256, nwave=9, nst=12) if st else (dict(light=1) if p.light else None)
    txt = kernel_file(body, 256, 576, L_END, 120 if st else 104, meta=meta)
    if p.align > 8: txt = txt.replace(".text\n", f".text\n.p2align {p.align}\n", 1)
    return txt

if __name__ == "__main__":
    p = P()
    out = sys.argv[1]
    for kv in sys.argv[2:]:
        k, v = kv.split("=")
        assert hasattr(P, k), k
        setattr(p, k, type(getattr(P, k))(eval(v)) if not isinstance(getattr(P, k), str) else v.replace("+", " "))
    open(out, "w").write(gen(p))
```

```python
import sys
from asmlib import *

WS_E    = 0
WS_RES  = 4096
WS_RESF = 73728
WS_DONE = 77824
WS_ARR  = 81920
WS_KEYS = 131072
KSTR    = 2304
WS_PREA = 393216
WS_PREB = 655360
WS_YP   = 1048576
MASK    = 0xF80007F8
SPIN    = 1 << 16
L_TAGS, L_ROUTE, L_CNT, L_RED1, L_RED2, L_END = 0, 16, 20, 64, 4608, 12800
C1, D1, X12, C2, D2 = 0x9E3779B8, 0x3C6EF372, 0xA5A5A5A8, 0x85EBCA6B, 0x27D4EB2F
XOR_OR = ((0xF0 ^ 0xCC) | 0xAA) & 0xFF

class P:
    nb1 = 4; th2 = 7; cpos = 10; relief = True; pfn = 10; pfat = 1
    xmod = ""; wmod = "nt"; dmod = "nt"; omod = "sc1"; fmod = ""
    rsleep = 12
    stamps = False; light = False
    na_pre = 64; na_res = 63
    agg_d0 = 4; agg_d1 = 6
    pre_sleep = 3; hint_max = 200; red_delay = 12
    align = 12; nanfix = True
    order = "entry,R1,Lstart,stubs,PF,R3,R2,L2,D,RED,AGG,cold,nan"

DOC = """;
;   workgroups 224..255 (helpers): R, a second R for the rows of the workgroups with fg%8==3, an aggregator wave
"""

def gen(p):
    S = {}
    cur = [None]
    def sec(name):
        S.setdefault(name, Asm()); cur[0] = S[name]
    def a(t): cur[0](t)
    class cold:
        def __init__(s, name="cold"): s.name = name
        def __enter__(s): s.back = cur[0]; sec(s.name)
        def __exit__(s, *e): cur[0] = s.back
    nl = [0]
    def label(b):
        nl[0] += 1; return f"{b}_{nl[0]}"
    st = p.stamps
    SV = 103
    def stamp(i):
        if st: a(f"s_memrealtime s[100:101]\ns_waitcnt lgkmcnt(0)\nv_writelane_b32 v{SV}, s100, {i}")
    def stamp_idx(expr_sub, reg):
        if st: a(f"""s_memrealtime s[100:101]
s_sub_u32 s60, {expr_sub}, s{reg}
s_min_u32 s60, s60, 11
s_mov_b32 m0, s60
s_waitcnt lgkmcnt(0)
v_writelane_b32 v{SV}, s100, m0""")
    def stamp_out():
        if not (st or p.light): return
        a(f"""s_waitcnt vmcnt(0) lgkmcnt(0)
s_lshl_b32 s20, s2, 4
s_add_u32 s20, s20, s3
s_lshl_b32 s20, s20, 6
s_add_u32 s20, s20, {STAMP_OFF}""")
        if p.light:
            a(f"""s_memrealtime s[98:99]
s_mov_b64 exec, 1
v_mov_b32 v3, 0
v_mov_b32 v4, s100
s_waitcnt lgkmcnt(0)
v_mov_b32 v5, s98
buffer_store_dwordx2 v[4:5], v3, s[28:31], s20 offen""")
        else:
            a(f"""s_mov_b64 exec, 0xffff
v_mbcnt_lo_u32_b32 v3, -1, 0
v_lshlrev_b32 v3, 2, v3
buffer_store_dword v{SV}, v3, s[28:31], s20 offen""")
    def ws_srd():
        a(f"s_mov_b32 s28, s18\ns_mov_b32 s29, s19\ns_mov_b32 s30, {WS_BYTES}\ns_mov_b32 s31, 0x20000")
    def tags_from_epoch():
        a(f"""s_mul_i32 s50, s46, {C1:#x}
s_add_u32 s50, s50, {D1:#x}
s_xor_b32 s51, s50, {X12:#x}
s_mul_i32 s52, s46, {C2:#x}
s_add_u32 s52, s52, {D2:#x}""")
    def read_tags(v):
        a(f"""v_mov_b32 v{v}, 0
ds_read_b32 v{v}, v{v} offset:{L_TAGS}
s_waitcnt lgkmcnt(0)
v_readfirstlane_b32 s26, v{v}
s_and_b32 s27, s26, 15""")
    def poll_result(dst, tag, off, cnt):
        l1, l2, l2b, l3 = label("L_rp"), label("L_rf"), label("L_rg"), label("L_rd")
        a(f"""s_and_b32 s{off}, s2, 7
s_lshl_b32 s{off}, s{off}, 13
s_add_u32 s{off}, s{off}, {WS_RES}
s_mov_b32 s{cnt}, {p.na_res}
{l1}:
s_load_dwordx4 s[{dst}:{dst+3}], s[18:19], s{off}
s_add_u32 s{off}, s{off}, 128
s_sub_u32 s{cnt}, s{cnt}, 1
s_cbranch_scc1 {l2}
s_waitcnt lgkmcnt(0)
s_cmp_lg_u32 s{dst+3}, s{tag}
s_cbranch_scc1 {l1}
{l3}:""")
        with cold():
            a(f"""; the aggregator sits on another die: read the write-through copy past the caches
{l2}:
s_and_b32 s{off}, s2, 7
s_lshl_b32 s{off}, s{off}, 8
s_add_u32 s{off}, s{off}, {WS_RESF}
s_mov_b32 s{cnt}, {SPIN}
{l2b}:
s_waitcnt lgkmcnt(0)
s_load_dwordx4 s[{dst}:{dst+3}], s[18:19], s{off} glc
s_waitcnt lgkmcnt(0)
s_cmp_eq_u32 s{dst+3}, s{tag}
s_cbranch_scc1 {l3}
s_sleep 8
s_sub_u32 s{cnt}, s{cnt}, 1
s_cbranch_scc0 {l2b}
s_and_b32 s{dst}, s{dst}, 0x7ff07ff
s_branch {l3}""")
    def selectors():
        a("""; v16..v23: byte selectors that place one bf16 at element (lane&7) of an 8-element A fragment
v_and_b32 v3, 1, v0
v_cmp_eq_u32 vcc, 1, v3
v_mov_b32 v4, 0x0c0c0100
v_mov_b32 v5, 0x01000c0c
v_mov_b32 v6, 0x0c0c0302
v_mov_b32 v7, 0x03020c0c
v_cndmask_b32 v4, v4, v5, vcc
v_cndmask_b32 v5, v6, v7, vcc
v_bfe_u32 v3, v0, 1, 2
v_mov_b32 v6, 0x0c0c0c0c""")
        for d in range(4):
            a(f"""v_cmp_eq_u32 vcc, {d}, v3
s_nop 1
v_cndmask_b32 v{16+d}, v6, v4, vcc
v_cndmask_b32 v{20+d}, v6, v5, vcc""")
    def perms(dst, src, par):
        for d in range(4): a(f"v_perm_b32 v{dst+d}, v{src}, v{src}, v{16+4*par+d}")
    def fg_of_wg():
        a("""s_and_b32 s20, s2, 7
s_mul_i32 s20, s20, 7
s_lshr_b32 s21, s2, 5
s_add_u32 s32, s20, s21
s_bfe_u32 s33, s2, 0x20003           ; s33 = j""")
    def lds_init():
        a(f"""v_mov_b32 v88, 0
v_mov_b32 v84, -1
v_mov_b32 v85, 0
s_mov_b64 exec, 1
ds_write_b64 v88, v[84:85] offset:{L_ROUTE}""")

    sec("entry")
    if st: a(f"v_mov_b32 v{SV}, 0")
    if p.light: a("s_memrealtime s[100:101]")
    stamp(0)
    a(f"""s_load_dwordx8 s[4:11], s[0:1], 0
s_load_dwordx8 s[12:19], s[0:1], 32
v_readfirstlane_b32 s3, v0
s_cmp_ge_u32 s2, 256
s_cbranch_scc1 L_end
v_and_b32 v0, 63, v0
s_lshr_b32 s3, s3, 6                 ; wave
s_cmp_ge_u32 s3, 5
s_cbranch_scc1 L_stubD
s_cmp_lg_u32 s3, 0
s_cbranch_scc1 L_Lstart""")

    sec("R1")
    a("s_mov_b32 s35, s2")
    if p.relief:
        fg_of_wg()
        a("""; lines whose address bits 9:7 are 3 stream more slowly through one CU: a helper routes these workgroups' rows
s_cmp_ge_u32 s2, 224
s_cselect_b32 s21, 0, s32
s_and_b32 s21, s21, 7
s_cmp_eq_u32 s21, 3
s_cbranch_scc1 L_R3""")
    a("""L_R1:
s_setprio 3
s_lshl_b32 s43, s35, 14
s_add_u32 s44, s43, 4096
v_lshlrev_b32 v1, 4, v0
v_add_u32 v90, s44, v1
v_add_u32 v91, 8192, v90""")
    lds_init()
    a("s_mov_b64 exec, -1\ns_waitcnt lgkmcnt(0)")
    stamp(8)
    for i in range(16):
        a(f"global_load_dwordx4 v[{10+4*i}:{13+4*i}], v{90+i//8}, s[4:5] offset:{(i%8)*1024-4096} {p.xmod}")
        if i == 1:
            a("global_load_dwordx4 v[2:5], v1, s[6:7]\nglobal_load_dwordx4 v[6:9], v1, s[6:7] offset:1024")
    stamp(9)
    a(f"s_load_dword s46, s[18:19], {WS_E}\ns_barrier\ns_branch L_R2")

    sec("stubs")
    a(f"""L_stubD:
s_cmp_ge_u32 s2, 224
s_cbranch_scc1 L_stubA
""" + ("s_cmp_eq_u32 s3, 5\ns_cbranch_scc1 L_PF\n" if p.pfn < 16 else "") + f"""s_cmp_lg_u32 s3, 8
s_cbranch_scc1 L_nocpf
; pull the kernel's code into this die's L2
s_getpc_b64 s[22:23]
L_pc:
v_lshlrev_b32 v1, 7, v0
v_min_u32 v1, L_hot_end-L_pc, v1
global_load_dword v80, v1, s[22:23]
L_nocpf:
s_barrier                            ; A
s_barrier                            ; B
s_branch L_D
L_stubA:
s_cmp_lg_u32 s3, 5
s_cbranch_scc1 L_end
L_stubH:
s_waitcnt lgkmcnt(0)
s_load_dword s46, s[18:19], {WS_E}
s_waitcnt lgkmcnt(0)
s_barrier                            ; A (the epoch word is read before this workgroup publishes)
s_cmp_eq_u32 s3, 5
s_cbranch_scc1 L_AGG
s_branch L_RED
L_stubR:
s_cmp_ge_u32 s3, 3
s_cbranch_scc0 L_stubH
""")
    if not p.relief: a("s_endpgm")
    else: a(f"""s_cmp_lg_u32 s3, 3
s_cbranch_scc1 L_end
s_sub_u32 s20, s2, 224
s_cmp_ge_u32 s20, 28
s_cbranch_scc1 L_end
s_lshr_b32 s21, s20, 2               ; m: fg = 8m+3
s_and_b32 s20, s20, 3                ; j
s_add_u32 s22, s21, 4
s_lshr_b32 s22, s22, 3
s_add_u32 s22, s22, s21
s_lshl_b32 s21, s21, 3
s_add_u32 s21, s21, 3
s_mul_i32 s23, s22, 7
s_sub_u32 s21, s21, s23
s_lshl_b32 s21, s21, 5
s_lshl_b32 s20, s20, 3
s_add_u32 s35, s21, s20
s_add_u32 s35, s35, s22
s_branch L_R1""")

    sec("PF")
    if p.pfn < 16:
        nm = 16 - p.pfn
        a("L_PF:")
        fg_of_wg()
        a(f"""; a CU keeps only half as many lines with address bits 9:7 == 3 in flight: the other workgroups of the die pull
s_sub_u32 s22, 3, s20
s_and_b32 s22, s22, 7
s_cmp_gt_u32 s21, s22
s_subb_u32 s23, s21, 0
s_cmp_eq_u32 s21, s22
s_cselect_b32 s23, 7, s23
s_cmp_eq_u32 s22, 7
s_cselect_b32 s23, 7, s23
s_cmp_ge_u32 s23, {nm}
s_cbranch_scc1 L_nocpf
s_add_u32 s23, s23, {p.pfn}          ; m
s_lshr_b32 s24, s23, 2
s_lshl_b32 s24, s24, 4
s_and_b32 s23, s23, 3
s_add_u32 s23, s23, s24
s_lshl_b32 s24, s33, 8
s_add_u32 s23, s23, s24
s_mul_i32 s23, s23, 7168
s_add_u32 s22, s22, s20
s_lshl_b32 s22, s22, 7
s_add_u32 s23, s23, s22
v_bfe_u32 v1, v0, 3, 2
v_mul_u32_u24 v1, {64*7168}, v1
v_bfe_u32 v2, v0, 1, 2
v_mul_u32_u24 v2, {4*7168}, v2
v_add3_u32 v1, v1, v2, s23
v_and_b32 v2, 1, v0
v_cmp_eq_u32 vcc, 0, v2
s_waitcnt lgkmcnt(0)
v_mov_b32 v4, s10
v_mov_b32 v5, s8
v_mov_b32 v6, s11
v_mov_b32 v7, s9
v_cndmask_b32 v4, v4, v5, vcc
v_cndmask_b32 v5, v6, v7, vcc
v_add_co_u32 v4, vcc, v4, v1
s_nop 1
v_addc_co_u32 v5, vcc, 0, v5, vcc
s_mov_b32 exec_hi, 0
s_barrier                            ; A""")
        if p.pfat == 2: a("s_barrier                            ; B")
        a("global_load_dword v80, v[4:5], off\ns_mov_b64 exec, -1")
        if p.pfat == 1: a("s_barrier                            ; B")
        a("s_branch L_D")
    else: a("s_nop 0")

    sec("R3")
    if not p.relief: a('s_nop 0')
    def r3():
        a(f"""L_R3:
s_lshr_b32 s21, s32, 3
s_lshl_b32 s21, s21, 2
s_add_u32 s21, s21, s33
s_lshl_b32 s48, s21, 3
s_add_u32 s48, s48, {WS_ARR}""")
        lds_init()
        a(f"""s_waitcnt lgkmcnt(0)
s_load_dword s46, s[18:19], {WS_E}
s_barrier                            ; A""")
        ws_srd()
        a("s_waitcnt lgkmcnt(0)")
        tags_from_epoch()
        a(f"""v_mov_b32 v84, s52
ds_write_b32 v88, v84 offset:{L_TAGS}
v_mov_b32 v74, s50
v_mov_b32 v75, s51
s_waitcnt lgkmcnt(0)
s_barrier                            ; B
buffer_store_dwordx2 v[74:75], v88, s[28:31], s48 offen sc1""")
        poll_result(40, 52, 44, 45)
        a(f"""v_mov_b32 v84, s40
ds_write_b32 v88, v84 offset:{L_ROUTE}
s_barrier                            ; 2
s_barrier                            ; 4""")
        stamp_out()
        a("s_endpgm")
    if p.relief: r3()

    sec("R2")
    a("L_R2:")
    ws_srd()
    a(f"""s_mov_b32 s24, s14
s_mov_b32 s25, s15
s_mov_b32 s26, {X_BYTES}
s_mov_b32 s27, 0x20000
v_lshrrev_b32 v82, 5, v0
v_bfe_u32 v83, v0, 4, 1
v_lshl_or_b32 v82, v83, 1, v82
v_bfe_u32 v83, v0, 3, 1
v_lshl_or_b32 v82, v83, 2, v82
s_lshl_b32 s47, s35, 3
s_sub_u32 s47, 2047, s47
v_sub_u32 v82, s47, v82
v_mul_u32_u24 v92, {KSTR}, v0
s_lshl_b32 s48, s35, 3
s_add_u32 s48, s48, {WS_KEYS}""")
    for r in range(8): a(f"v_mov_b32 v{74+r}, 0")
    if p.nanfix: a("v_mov_b32 v93, 0x207")
    a("s_waitcnt lgkmcnt(0)")
    stamp(1)
    tags_from_epoch()
    a(f"""v_mov_b32 v84, s52
s_mov_b64 exec, 1
ds_write_b32 v88, v84 offset:{L_TAGS}
s_mov_b64 exec, -1""")
    def dots(r, lo, hi):
        for q in range(lo, hi): a(f"v_dot2c_f32_bf16 v{74+r}, v{10+8*r+q}, v{2+q}")
    for r in range(6):
        a(f"s_waitcnt vmcnt({14-2*r})"); dots(r, 0, 8)
    a("s_waitcnt vmcnt(2)"); dots(6, 0, 8)
    a("""v_permlane32_swap_b32 v74, v75
v_permlane32_swap_b32 v76, v77
v_permlane32_swap_b32 v78, v79
v_add_f32 v74, v74, v75
v_add_f32 v76, v76, v77
v_add_f32 v78, v78, v79
s_waitcnt vmcnt(1)""")
    dots(7, 0, 4)
    a("v_permlane16_swap_b32 v74, v76\ns_waitcnt vmcnt(0)")
    dots(7, 4, 8)
    stamp(2)
    a("""v_add_f32 v74, v74, v76
s_nop 1
v_permlane32_swap_b32 v80, v81
v_add_f32_dpp v75, v74, v74 row_ror:8 row_mask:0xf bank_mask:0xf
v_add_f32 v80, v80, v81
s_nop 1
v_permlane16_swap_b32 v78, v80
v_add_f32 v78, v78, v80
s_nop 1
v_add_f32_dpp v75, v78, v78 row_ror:8 row_mask:0xf bank_mask:0xc
s_nop 1
v_add_f32_dpp v75, v75, v75 row_half_mirror row_mask:0xf bank_mask:0xf
s_nop 1
v_add_f32_dpp v75, v75, v75 quad_perm:[1,0,3,2] row_mask:0xf bank_mask:0xf
s_nop 1
v_add_f32_dpp v79, v75, v75 quad_perm:[2,3,0,1] row_mask:0xf bank_mask:0xf
v_cmp_u_f32 vcc, v79, v79
v_cvt_pk_bf16_f32 v76, v79, v79
v_ashrrev_i32 v77, 31, v76
v_or_b32 v77, 0x80000000, v77
v_xor_b32 v76, v76, v77
v_lshrrev_b32 v76, 16, v76
v_cndmask_b32 v76, v76, 0, vcc
v_lshl_or_b32 v76, v76, 11, v82
s_nop 1
v_max_u32_dpp v74, v76, v76 row_ror:8 row_mask:0xf bank_mask:0xf
v_max_u32_dpp v78, v76, v76 row_ror:8 row_mask:0xf bank_mask:0xf
v_min_u32_dpp v75, v76, v76 row_ror:8 row_mask:0xf bank_mask:0xf
v_min_u32_dpp v77, v76, v76 row_ror:8 row_mask:0xf bank_mask:0xf
s_nop 0
v_permlane16_swap_b32 v74, v78
v_permlane16_swap_b32 v75, v77
v_min_u32 v80, v74, v78
v_max_u32 v76, v74, v78
v_max_u32 v74, v74, v78
v_max3_u32 v81, v75, v77, v80
v_max3_u32 v75, v75, v77, v80
v_permlane32_swap_b32 v74, v76
s_nop 0
v_permlane32_swap_b32 v75, v81
v_min_u32 v78, v74, v76
v_max_u32 v74, v74, v76
v_max3_u32 v75, v75, v81, v78
v_xor_b32 v74, s50, v74
v_xor_b32 v75, s51, v75
s_mov_b64 exec, 0xff
buffer_store_dwordx2 v[74:75], v92, s[28:31], s48 offen sc1
s_waitcnt lgkmcnt(0)
s_barrier""")
    stamp(3)
    if p.nanfix:
        a("""s_mov_b64 exec, -1
v_cmp_class_f32 vcc, v79, v93
s_cbranch_vccnz L_nanfix
L_nanfix_done:""")
        with cold("nan"):
            a("""L_hot_end:
L_nanfix:
s_mov_b32 s54, 0x07060302""")
            for r in range(10, 74, 2):
                a(f"""v_and_b32 v84, 0xffff0000, v{r}
v_lshlrev_b32 v85, 16, v{r}
v_and_b32 v86, 0xffff0000, v{r+1}
v_lshlrev_b32 v87, 16, v{r+1}
v_fma_f32 v84, v84, 0, v84
v_fma_f32 v85, v85, 0, v85
v_fma_f32 v86, v86, 0, v86
v_fma_f32 v87, v87, 0, v87
v_perm_b32 v{r}, v84, v85, s54
v_perm_b32 v{r+1}, v86, v87, s54""")
            a("s_branch L_nanfix_done")
    else:
        with cold("nan"): a("L_hot_end:")
    a("s_mov_b64 exec, 1")
    poll_result(40, 52, 44, 45)
    a(f"""v_mov_b32 v84, s40
ds_write_b32 v88, v84 offset:{L_ROUTE}
s_mov_b64 exec, -1
s_setprio 0
s_and_b32 s41, s40, 0x7ff
s_bfe_u32 s40, s40, 0xb0010
s_lshl_b32 s42, s35, 3""")
    stamp(4)
    a("s_cmp_ge_u32 s2, 224\ns_cbranch_scc1 L_rstore\ns_barrier                            ; 2\ns_barrier                            ; 4")
    if p.rsleep: a(f"s_sleep {p.rsleep}")
    a("L_rstore:\ns_lshl_b32 s43, s35, 14")
    stamp(5)
    for r in range(8):
        a(f"""s_cmp_eq_u32 s42, s40
s_cselect_b32 s54, 0x40000000, s43
s_cmp_eq_u32 s42, s41
s_cselect_b32 s54, 0x40000000, s54
buffer_store_dwordx4 v[{10+8*r}:{13+8*r}], v1, s[24:27], s54 offen {p.omod}
buffer_store_dwordx4 v[{14+8*r}:{17+8*r}], v1, s[24:27], s54 offen offset:1024 {p.omod}""")
        if r < 7: a("s_add_u32 s43, s43, 2048\ns_add_u32 s42, s42, 1")
    stamp(6)
    if st: a("s_waitcnt vmcnt(0)"); stamp(7)
    stamp_out()
    a("s_endpgm")

    sec("Lstart")
    a("""L_Lstart:
s_cmp_ge_u32 s2, 224
s_cbranch_scc1 L_stubR""")
    fg_of_wg()
    a(f"""v_lshrrev_b32 v1, 4, v0              ; g
v_and_b32 v2, 15, v0
s_sub_u32 s34, s3, 1                 ; w
s_lshl_b32 s20, s33, 8
s_lshl_b32 s21, s34, 6
s_add_u32 s20, s20, s21
s_mul_i32 s21, s20, 7168
s_lshl_b32 s22, s32, 7
s_add_u32 s21, s21, s22
v_cmp_gt_u32 vcc, 8, v2
v_and_b32 v3, 7, v2
v_lshlrev_b32 v3, 4, v3
v_mul_u32_u24 v4, {4*7168}, v1
v_add3_u32 v3, v3, v4, s21
s_mov_b32 s22, 7168
s_mov_b32 s23, 0
s_mov_b32 s24, {7168*13}
s_mov_b32 s25, 0
s_waitcnt lgkmcnt(0)
v_mov_b32 v4, s10
v_mov_b32 v5, s8
v_mov_b32 v6, s11
v_mov_b32 v7, s9
v_cndmask_b32 v4, v4, v5, vcc
v_cndmask_b32 v5, v6, v7, vcc
v_add_co_u32 v4, vcc, v4, v3
v_mov_b32 v6, 0
v_mov_b32 v7, 1
v_addc_co_u32 v5, vcc, 0, v5, vcc""")
    stamp(8)
    a("s_barrier                            ; A")
    def gload(m):
        a(f"global_load_dwordx4 v[{32+4*m}:{35+4*m}], v[4:5], off {p.wmod}")
        if m < 15: a(f"v_lshl_add_u64 v[4:5], v[4:5], 0, s[{'24:25' if (m+1) % 4 == 0 else '22:23'}]")
    for m in range(p.nb1): gload(m)
    stamp(1); a("s_branch L_L2"); sec("L2"); a("L_L2:\ns_barrier                            ; B")
    for m in range(p.nb1, 17):
        if m == p.cpos: a(f"s_mov_b64 exec, 1\nds_add_u32 v6, v7 offset:{L_CNT}\ns_mov_b64 exec, -1")
        if m == 16: break
        if p.th2 and m >= p.th2: a(f"s_waitcnt vmcnt({p.th2-1})")
        gload(m)
    stamp(2)
    read_tags(8)
    selectors()
    ws_srd()
    a(f"""s_lshl_b32 s20, s20, 1
v_bfe_u32 v3, v2, 1, 2
v_lshlrev_b32 v4, 8, v3
v_and_b32 v3, 1, v2
v_lshl_or_b32 v4, v3, 7, v4
v_and_b32 v3, 1, v1
v_lshl_or_b32 v4, v3, 6, v4
v_lshrrev_b32 v3, 1, v1
v_lshl_or_b32 v4, v3, 5, v4
v_lshrrev_b32 v3, 3, v2
v_lshl_or_b32 v1, v3, 4, v4
v_lshlrev_b32 v0, 4, v0              ; lane*16
s_lshl_b32 s21, s34, 10
v_add_u32 v2, s21, v0
s_lshl_b32 s12, s32, 2
s_add_u32 s12, s12, s33
s_lshl_b32 s12, s12, 10
s_add_u32 s12, s12, {WS_PREA}
s_add_u32 s14, s27, 5
s_add_u32 s15, s27, 10
s_add_u32 s16, s27, 15
s_add_u32 s4, s4, s20
s_addc_u32 s5, s5, 0
v_mov_b32 v3, 0
s_mov_b32 s21, {SPIN*16}
L_Lroute:
ds_read_b32 v4, v3 offset:{L_ROUTE}
s_sub_u32 s21, s21, 1
s_cbranch_scc1 L_Lroute_done
s_waitcnt lgkmcnt(0)
v_readfirstlane_b32 s8, v4
s_cmp_eq_u32 s8, -1
s_cbranch_scc1 L_Lroute
L_Lroute_done:""")
    stamp(3)
    a("""s_lshr_b32 s9, s8, 5
s_and_b32 s9, s9, 0x3ff800
s_load_dwordx16 s[36:51], s[4:5], s9
s_load_dwordx16 s[52:67], s[4:5], s9 offset:64
s_lshl_b32 s8, s8, 11
s_and_b32 s8, s8, 0x3ff800
s_load_dwordx16 s[68:83], s[4:5], s8
s_load_dwordx16 s[84:99], s[4:5], s8 offset:64
s_mov_b64 exec, 0xff
s_waitcnt lgkmcnt(0)""")
    stamp(4)
    for g in range(4):
        for t in range(2):
            for q in range(4):
                sr = 36 + 32*t + (16*q + 4*g)//2
                a(f"v_mov_b64 v[{8+2*q}:{9+2*q}], s[{sr}:{sr+1}]")
            a("s_lshl_b64 exec, exec, 8" if (g, t) != (3, 1) else "s_mov_b64 exec, -1")
    perms(24, 8, 0)
    a("s_waitcnt vmcnt(0)")
    stamp(5)
    for m in range(16):
        c = 24 + 4*(m & 1); nx = 24 + 4*((m+1) & 1)
        if m < 15: perms(nx, 8 + ((m+1) >> 1), (m+1) & 1)
        else: a("s_nop 0")
        a(f"v_mfma_f32_16x16x32_bf16 v[4:7], v[{c}:{c+3}], v[{32+4*m}:{35+4*m}], {'0' if m == 0 else 'v[4:7]'}")
    a(f"""s_cmp_eq_u32 s34, 0
s_cbranch_scc1 L_L0
s_nop 5
ds_write_b128 v2, v[4:7] offset:{L_RED1}
s_waitcnt lgkmcnt(0)
s_barrier                            ; 2""")
    stamp(6)
    stamp_out()
    a(f"""s_endpgm
L_L0:
s_nop 0
s_barrier                            ; 2""")
    stamp(6)
    a(f"""ds_read_b128 v[8:11], v0 offset:{L_RED1+1024}
ds_read_b128 v[12:15], v0 offset:{L_RED1+2048}
ds_read_b128 v[24:27], v0 offset:{L_RED1+3072}
s_waitcnt lgkmcnt(2)
v_pk_add_f32 v[4:5], v[4:5], v[8:9]
v_pk_add_f32 v[6:7], v[6:7], v[10:11]
s_waitcnt lgkmcnt(0)
v_pk_add_f32 v[12:13], v[12:13], v[24:25]
v_pk_add_f32 v[14:15], v[14:15], v[26:27]
v_pk_add_f32 v[4:5], v[4:5], v[12:13]
v_pk_add_f32 v[6:7], v[6:7], v[14:15]
v_bfi_b32 v4, 15, s27, v4
v_bfi_b32 v5, 15, s14, v5
v_bfi_b32 v6, 15, s15, v6
v_bfi_b32 v7, 15, s16, v7
buffer_store_dwordx4 v[4:7], v1, s[28:31], s12 offen""")
    stamp(7)
    a("s_barrier                            ; 4")
    stamp_out()
    a("s_endpgm")

    sec("D")
    a("L_D:")
    fg_of_wg()
    a(f"""v_lshrrev_b32 v1, 4, v0              ; g
v_and_b32 v2, 15, v0                 ; jj
s_sub_u32 s34, s3, 5
v_lshlrev_b32 v64, 13, v1
v_lshl_or_b32 v64, v2, 4, v64
s_lshl_b32 s20, s32, 6
s_lshl_b32 s21, s34, 4
s_add_u32 s20, s20, s21
s_lshl_b32 s20, s20, 11
s_lshl_b32 s21, s33, 9
s_add_u32 s20, s20, s21
s_add_u32 s21, s20, 4096
s_waitcnt lgkmcnt(0)
s_mov_b32 s36, s12
s_mov_b32 s37, s13
s_mov_b32 s38, {W_BYTES}
s_mov_b32 s39, 0x20000""")
    ws_srd()
    selectors()
    read_tags(8)
    a(f"""v_lshlrev_b32 v65, 4, v0             ; lane*16
s_lshl_b32 s22, s34, 11
v_add_u32 v66, s22, v65
s_lshl_b32 s22, s34, 10
v_add_u32 v67, s22, v65
s_lshl_b32 s23, s32, 2
s_add_u32 s23, s23, s33
s_lshl_b32 s23, s23, 11
s_add_u32 s23, s23, s22
s_add_u32 s23, s23, {WS_YP}
v_lshrrev_b32 v3, 1, v2
v_lshlrev_b32 v68, 7, v3
v_lshrrev_b32 v3, 1, v1
v_lshl_or_b32 v68, v3, 6, v68
v_and_b32 v3, 1, v2
v_and_b32 v4, 1, v1
v_lshl_or_b32 v3, v3, 1, v4
v_lshl_or_b32 v68, v3, 4, v68
v_mad_u32_u24 v71, v3, 5, s27
s_and_b32 s48, s2, 7
s_lshl_b32 s48, s48, 7
s_lshr_b32 s49, s2, 3
s_lshl_b32 s49, s49, 2
s_add_u32 s48, s48, s49
s_add_u32 s48, s48, {WS_DONE}
s_lshl_b32 s22, s34, 8
v_lshl_add_u32 v69, v0, 2, s22
v_and_b32 v4, 3, v0
v_mad_u32_u24 v70, v4, 5, s27
s_lshl_b32 s41, s32, 12
s_add_u32 s41, s41, {WS_PREA}
s_mov_b32 s42, {p.na_pre}
s_mov_b32 s43, 0xbfb8aa3b            ; -log2(e)
s_lshl_b32 s44, s33, 10
s_add_u32 s44, s44, s41
v_mov_b32 v72, s26
v_mov_b32 v3, 0
s_mov_b32 s22, {SPIN*4}
L_Dcnt:
s_sleep 1
ds_read_b32 v4, v3 offset:{L_CNT}
s_sub_u32 s22, s22, 1
s_cbranch_scc1 L_Dcnt_done
s_waitcnt lgkmcnt(0)
v_readfirstlane_b32 s45, v4
s_cmp_lt_u32 s45, 4
s_cbranch_scc1 L_Dcnt
L_Dcnt_done:
; (they also bring the mailbox lines into L2)""")
    for q in range(4): a(f"buffer_load_dword v{8+q}, v69, s[28:31], s41 offen offset:{q*1024} sc1")
    a("s_waitcnt vmcnt(0)")
    stamp(1)
    for i in range(8):
        m, half = i >> 1, i & 1
        a(f"buffer_load_dwordx4 v[{32+4*i}:{35+4*i}], v64, s[36:39], s{20 + (m>>1)} offen offset:{(m&1)*2048+half*256} {p.dmod}")
    stamp(2)
    a("s_barrier                            ; 2")
    if p.pre_sleep: a(f"s_sleep {p.pre_sleep}")
    stamp(3)
    a("L_poll2:")
    for q in range(4):
        a(f"buffer_load_dword v{8+q}, v69, s[28:31], s41 offen offset:{q*1024} sc1")
    a("s_sub_u32 s42, s42, 1\ns_cbranch_scc1 L_p2sw\ns_waitcnt vmcnt(0)")
    stamp_idx(p.na_pre+7, 42)
    a(f"""v_xor_b32 v12, v8, v70
v_add_f32 v14, v8, v9
v_bitop3_b32 v12, v9, v70, v12 bitop3:{XOR_OR:#x}
v_add_f32 v15, v10, v11
v_bitop3_b32 v12, v10, v70, v12 bitop3:{XOR_OR:#x}
v_add_f32 v8, v14, v15
v_bitop3_b32 v12, v11, v70, v12 bitop3:{XOR_OR:#x}
v_cvt_pk_bf16_f32 v8, v8, v8
v_and_b32 v12, 15, v12
v_and_b32 v8, 0xffff0000, v8
v_cmp_ne_u32 vcc, 0, v12
v_mul_f32 v9, s43, v8
s_cbranch_vccnz L_poll2
L_poll2_done:""")
    stamp(4)
    a(f"""v_exp_f32 v9, v9
s_nop 0
v_add_f32 v9, 1.0, v9
v_rcp_f32 v9, v9
s_nop 0
v_mul_f32 v9, v8, v9
v_cvt_pk_bf16_f32 v9, v9, v9
v_and_b32 v9, 0xffff0000, v9
v_mul_f32_dpp v10, v8, v9 row_shl:4 row_mask:0xf bank_mask:0x5
s_nop 0
v_mul_f32_dpp v10, v9, v8 row_shr:4 row_mask:0xf bank_mask:0xa
s_nop 1
v_mov_b32_dpp v8, v10 quad_perm:[0,0,0,0] row_mask:0xf bank_mask:0xf
v_mov_b32_dpp v11, v10 quad_perm:[1,1,1,1] row_mask:0xf bank_mask:0xf
v_mov_b32_dpp v9, v10 quad_perm:[2,2,2,2] row_mask:0xf bank_mask:0xf
v_cvt_pk_bf16_f32 v8, v8, v11
v_mov_b32_dpp v12, v10 quad_perm:[3,3,3,3] row_mask:0xf bank_mask:0xf""")
    perms(24, 8, 0)
    a("v_cvt_pk_bf16_f32 v9, v9, v12        ; m = 2, 3")
    for m in range(4):
        c = 24 + 4*(m & 1); nx = 24 + 4*((m+1) & 1)
        if m < 3: perms(nx, 8 + ((m+1) >> 1), (m+1) & 1)
        for half in range(2):
            acc = f"v[{4+8*half}:{7+8*half}]"
            i = 2*m + half
            a(f"v_mfma_f32_16x16x32_bf16 {acc}, v[{c}:{c+3}], v[{32+4*i}:{35+4*i}], {'0' if m == 0 else acc}")
    a(f"""s_cmp_ge_u32 s34, 2
s_nop 5
ds_write_b128 v66, v[4:7] offset:{L_RED2}
ds_write_b128 v66, v[12:15] offset:{L_RED2+1024}
s_waitcnt lgkmcnt(0)
s_barrier                            ; 4""")
    stamp(5)
    a(f"""s_cbranch_scc1 L_D_copy
ds_read_b128 v[4:7], v67 offset:{L_RED2}
ds_read_b128 v[8:11], v67 offset:{L_RED2+2048}
ds_read_b128 v[12:15], v67 offset:{L_RED2+4096}
ds_read_b128 v[24:27], v67 offset:{L_RED2+6144}
s_waitcnt lgkmcnt(2)
v_pk_add_f32 v[4:5], v[4:5], v[8:9]
v_pk_add_f32 v[6:7], v[6:7], v[10:11]
s_waitcnt lgkmcnt(0)
v_pk_add_f32 v[12:13], v[12:13], v[24:25]
v_pk_add_f32 v[14:15], v[14:15], v[26:27]
v_pk_add_f32 v[4:5], v[4:5], v[12:13]
v_pk_add_f32 v[6:7], v[6:7], v[14:15]
v_bfi_b32 v4, 15, v71, v4
buffer_store_dwordx4 v[4:7], v68, s[28:31], s23 offen sc1
L_D_done:""")
    stamp(6)
    if st: a("s_waitcnt vmcnt(0)"); stamp(7)
    stamp_out()
    a(f"""s_endpgm
L_D_copy:
s_cmp_lg_u32 s34, 3
s_cbranch_scc1 L_D_copy2
s_mov_b64 exec, 1
buffer_store_dword v72, v3, s[28:31], s48 offen
s_branch L_D_done
L_D_copy2:
buffer_load_dwordx4 v[8:11], v65, s[28:31], s44 offen sc1
s_add_u32 s45, s44, {WS_PREB-WS_PREA}
s_waitcnt vmcnt(0)
buffer_store_dwordx4 v[8:11], v65, s[28:31], s45 offen sc1
s_branch L_D_done""")
    with cold():
        a(f"""; the local mailbox never filled: a peer sits on another die; publish our block write-through, then read that mailbox
L_p2sw:
s_waitcnt vmcnt(0)
s_cmp_ge_u32 s41, {WS_PREB}
s_cbranch_scc1 L_poll2_done
s_mov_b32 s42, {SPIN}
s_add_u32 s40, s27, 5
s_add_u32 s46, s27, 10
s_add_u32 s47, s27, 15
L_p2own:
buffer_load_dwordx4 v[8:11], v65, s[28:31], s44 offen sc1
s_sub_u32 s42, s42, 1
s_cbranch_scc1 L_p2own_done
s_waitcnt vmcnt(0)
v_xor_b32 v12, s27, v8
v_bitop3_b32 v12, v9, s40, v12 bitop3:{XOR_OR:#x}
v_bitop3_b32 v12, v10, s46, v12 bitop3:{XOR_OR:#x}
v_bitop3_b32 v12, v11, s47, v12 bitop3:{XOR_OR:#x}
v_and_b32 v12, 15, v12
v_cmp_ne_u32 vcc, 0, v12
s_cbranch_vccnz L_p2own
L_p2own_done:
s_waitcnt vmcnt(0)
s_add_u32 s45, s44, {WS_PREB-WS_PREA}
buffer_store_dwordx4 v[8:11], v65, s[28:31], s45 offen sc1
s_add_u32 s41, s41, {WS_PREB-WS_PREA}
s_mov_b32 s42, {SPIN}
s_branch L_poll2""")

    sec("RED")
    a(f"""L_RED:
s_sub_u32 s34, s3, 1
s_sub_u32 s44, s2, 224
s_lshl_b32 s45, s44, 1
s_add_u32 s45, s45, s34
s_lshl_b32 s60, s45, 7
v_lshrrev_b32 v1, 3, v0
v_and_b32 v2, 7, v0                  ; sub
v_lshlrev_b32 v3, 13, v1
v_lshl_or_b32 v3, v2, 4, v3
s_add_u32 s36, s18, {WS_YP}
s_addc_u32 s37, s19, 0
s_mov_b32 s38, {56*8192}
s_mov_b32 s39, 0x20000""")
    for i in range(1, 7): a(f"s_add_u32 s{60+i}, s{59+i}, {8*8192}")
    a(f"""; output element of this lane: token = sub>>2, column = 16*piece + 4*(sub&3) + [0,2,1,3][lane>>4]
v_bfe_u32 v4, v0, 4, 1
v_bfe_u32 v5, v0, 5, 1
v_lshl_or_b32 v4, v4, 1, v5
v_and_b32 v40, 3, v0
v_lshl_or_b32 v4, v40, 2, v4
s_lshl_b32 s50, s45, 4
v_add_lshl_u32 v4, v4, s50, 1
v_and_b32 v5, 4, v0
v_cmp_ne_u32 s[56:57], 0, v5
s_and_b32 s48, s2, 7
s_lshl_b32 s48, s48, 7
s_add_u32 s48, s48, {WS_DONE}
v_lshlrev_b32 v41, 2, v0""")
    tags_from_epoch()
    a("s_and_b32 s27, s52, 15\nv_mad_u32_u24 v40, v40, 5, s27")
    ws_srd()
    a("s_barrier                            ; B")
    poll_result(40, 52, 44, 45)
    stamp(1)
    a(f"""s_lshr_b32 s44, s40, 5
s_and_b32 s44, s44, 0x3ff800
s_lshl_b32 s45, s40, 11
s_and_b32 s45, s45, 0x3ff800
v_mov_b32 v8, s44
v_mov_b32 v9, s45
s_and_b32 s44, s41, 0xffff0000
s_lshl_b32 s45, s41, 16
v_mov_b32 v10, s44
v_mov_b32 v11, s45
v_cndmask_b32 v8, v8, v9, s[56:57]
v_cndmask_b32 v10, v10, v11, s[56:57]
v_add_u32 v4, v4, v8
global_load_ushort v6, v4, s[4:5]
v_ashrrev_i32 v11, 31, v10
v_not_b32 v11, v11
v_or_b32 v11, 0x80000000, v11
v_xor_b32 v10, v10, v11
v_and_b32 v10, 0xffff0000, v10
v_mul_f32 v10, 0xbfb8aa3b, v10
v_exp_f32 v10, v10
s_mov_b32 s58, {SPIN}
v_add_f32 v10, 1.0, v10
v_rcp_f32 v10, v10
s_mov_b32 s59, {p.hint_max}
v_cvt_pk_bf16_f32 v10, v10, v10
v_and_b32 v7, 0xffff0000, v10
s_mov_b32 exec_lo, 0x0fffffff
s_mov_b32 exec_hi, 0
L_hint:
buffer_load_dword v8, v41, s[28:31], s48 offen sc1
s_sub_u32 s59, s59, 1
s_cbranch_scc1 L_hint_done
s_waitcnt vmcnt(0)
v_cmp_ne_u32 vcc, s52, v8
s_cbranch_vccnz L_hint
L_hint_done:
s_mov_b64 exec, -1
s_waitcnt vmcnt(0)
v_lshlrev_b32 v6, 16, v6""")
    if p.red_delay: a(f"s_sleep {p.red_delay}")
    stamp(2)
    if st: a("s_mov_b32 s72, 0\ns_mov_b32 s73, 0")
    a("L_poll3:")
    for i in range(7):
        a(f"buffer_load_dwordx4 v[{8+4*i}:{11+4*i}], v3, s[36:39], s{60+i} offen sc1")
    a("s_sub_u32 s58, s58, 1\ns_cbranch_scc1 L_poll3_done")
    a(f"""s_waitcnt vmcnt(5)
v_xor_b32 v36, v8, v40
v_xor_b32 v37, v12, v40
v_pk_add_f32 v[8:9], v[8:9], v[12:13]
v_pk_add_f32 v[10:11], v[10:11], v[14:15]""")
    for i in range(2, 7):
        a(f"""s_waitcnt vmcnt({6-i})
v_bitop3_b32 v{36+(i&1)}, v{8+4*i}, v40, v{36+(i&1)} bitop3:{XOR_OR:#x}""")
        if i == 6: a("v_bitop3_b32 v36, v36, v37, 15 bitop3:0xa8")
        a(f"""v_pk_add_f32 v[8:9], v[8:9], v[{8+4*i}:{9+4*i}]
v_pk_add_f32 v[10:11], v[10:11], v[{10+4*i}:{11+4*i}]""")
    if st: a(f"""s_memrealtime s[100:101]
s_mov_b32 s74, s73
s_mov_b32 s73, s72
s_waitcnt lgkmcnt(0)
s_mov_b32 s72, s100
v_writelane_b32 v{SV}, s73, 7
v_writelane_b32 v{SV}, s74, 8""")
    a(f"""v_cmp_ne_u32 vcc, 0, v36
v_permlane32_swap_b32 v8, v9
s_cbranch_vccnz L_poll3
L_poll3_done:""")
    stamp(3)
    a(f"""v_permlane32_swap_b32 v10, v11
v_add_f32 v8, v8, v9
v_add_f32 v10, v10, v11
s_nop 1
v_permlane16_swap_b32 v8, v10
v_add_f32 v8, v8, v10
s_nop 1
v_add_f32_dpp v5, v8, v8 row_ror:8 row_mask:0xf bank_mask:0xf
s_mov_b32 exec_lo, 0x00ff00ff
s_mov_b32 exec_hi, 0x00ff00ff
v_cvt_pk_bf16_f32 v5, v5, v5
v_and_b32 v5, 0xffff0000, v5
v_mul_f32 v5, v5, v7
v_cvt_pk_bf16_f32 v5, v5, v5
v_and_b32 v5, 0xffff0000, v5
v_add_f32 v5, v5, v6
v_cvt_pk_bf16_f32 v5, v5, v5
global_store_short v4, v5, s[14:15] {p.fmod}""")
    stamp(4)
    if st: a("s_waitcnt vmcnt(0)"); stamp(5)
    stamp_out()
    a("s_endpgm")

    sec("AGG")
    a(f"""L_AGG:
s_setprio 3
s_and_b32 s32, s2, 7
v_lshlrev_b32 v1, 7, v0              ; lane*128
s_lshl_b32 s33, s32, 13
s_add_u32 s33, s33, {WS_RES}
s_lshl_b32 s34, s32, 8
s_add_u32 s34, s34, {WS_RESF}
s_bfe_u32 s53, s2, 0x20003
s_mul_i32 s36, s32, {KSTR}
s_add_u32 s36, s36, {WS_KEYS}""")
    ws_srd()
    a(f"""s_cmp_lg_u32 s53, 0
s_cbranch_scc1 L_notouch
buffer_load_dword v3, v1, s[28:31], s33 offen sc1
L_notouch:
v_lshlrev_b32 v93, 5, v0
v_sub_u32 v88, {255*8}, v93
v_subrev_u32 v89, 8, v88
v_subrev_u32 v90, 16, v88
v_subrev_u32 v91, 24, v88
v_lshlrev_b32 v2, 4, v0""")
    tags_from_epoch()
    a(f"""v_mov_b32 v83, s52
s_mov_b32 s52, {SPIN}
v_mov_b32 v82, 0
v_mov_b32 v70, 0
v_mov_b32 v71, 0
v_mov_b32 v92, 0x07060302
v_mov_b32 v94, 0x05040100
s_mov_b32 s55, 0x07ff07ff
s_mov_b64 s[56:57], -1
s_barrier                            ; B""")
    if p.agg_d0: a(f"s_sleep {p.agg_d0}")
    if p.agg_d1:
        for k in range(3): a(f"s_cmp_eq_u32 s53, {k}\ns_cbranch_scc1 L_aggo\ns_sleep {p.agg_d1}")
    a("L_aggo:")
    stamp(1)
    def merge():
        for k, ctrl in enumerate(("quad_perm:[1,0,3,2]", "quad_perm:[2,3,0,1]", "row_half_mirror")):
            s1, s2 = ("v70", "v71") if k == 0 else ("v76", "v77")
            a(f"""s_nop {1 if k == 0 else 0}
v_min_u32_dpp v84, {s1}, {s1} {ctrl} row_mask:0xf bank_mask:0xf
v_max_u32_dpp v85, {s2}, {s2} {ctrl} row_mask:0xf bank_mask:0xf
v_max_u32_dpp v76, {s1}, {s1} {ctrl} row_mask:0xf bank_mask:0xf
v_max_u32 v77, v84, v85""")
        a("""s_nop 0
v_min_u32_dpp v84, v76, v76 row_mirror row_mask:0xf bank_mask:0xf
v_max_u32_dpp v85, v77, v77 row_mirror row_mask:0xf bank_mask:0xf
v_max_u32_dpp v78, v76, v76 row_mirror row_mask:0xf bank_mask:0xf
v_max_u32_dpp v76, v76, v76 row_mirror row_mask:0xf bank_mask:0xf
v_max_u32 v79, v84, v85
v_max_u32 v77, v84, v85
v_permlane16_swap_b32 v76, v78
s_nop 0
v_permlane16_swap_b32 v77, v79
v_min_u32 v84, v76, v78
v_max_u32 v86, v76, v78
v_max_u32 v76, v76, v78
v_max3_u32 v87, v77, v79, v84
v_max3_u32 v77, v77, v79, v84
v_permlane32_swap_b32 v76, v86
s_nop 0
v_permlane32_swap_b32 v77, v87
v_min_u32 v84, v76, v86
v_max_u32 v76, v76, v86
v_max3_u32 v77, v77, v87, v84
v_perm_b32 v80, v76, v77, v94
v_bitop3_b32 v80, v80, s55, v80 bitop3:0x0c""")
    def xprefetch():
        a("""v_bfe_u32 v4, v80, 16, 11
v_and_b32 v5, 0x7ff, v80
v_lshl_or_b32 v4, v4, 11, v2
v_lshl_or_b32 v5, v5, 11, v2
global_load_dwordx4 v[8:11], v4, s[4:5]
global_load_dwordx4 v[12:15], v5, s[4:5]
global_load_dwordx4 v[16:19], v4, s[4:5] offset:1024
global_load_dwordx4 v[20:23], v5, s[4:5] offset:1024""")
    a("""L_poll1:
buffer_load_dwordx4 v[60:63], v93, s[28:31], s36 offen sc1
buffer_load_dwordx4 v[64:67], v93, s[28:31], s36 offen offset:16 sc1
s_sub_u32 s52, s52, 1
s_cbranch_scc1 L_poll1_done
s_cmp_lg_u64 s[56:57], -1
s_cbranch_scc1 L_spec
s_waitcnt vmcnt(0)
L_specdone:""")
    with cold():
        a("; while the next look is in flight, warm this die's L2 with the rows that lead so far\nL_spec:\ns_mov_b64 exec, -1")
        merge(); xprefetch()
        a("s_mov_b64 exec, s[56:57]\ns_waitcnt vmcnt(4)\ns_branch L_specdone")
    stamp_idx(SPIN+3, 52)
    for e in range(4):
        a(f"v_xor_b32 v{60+2*e}, s50, v{60+2*e}\nv_xor_b32 v{61+2*e}, s51, v{61+2*e}")
    tt = ((0xF0 ^ 0xAA) | (0xCC ^ 0xAA)) & 0xFF
    for e in range(4):
        a(f"v_bitop3_b32 v{84+e}, v{60+2*e}, v{61+2*e}, v{88+e} bitop3:{tt:#x}")
    a(f"""v_or3_b32 v84, v84, v85, v86
v_or_b32 v84, v84, v87
v_and_b32 v84, {MASK:#x}, v84
v_cmp_ne_u32 vcc, 0, v84
v_min_u32 v84, v60, v62
v_max_u32 v60, v60, v62
v_max3_u32 v61, v61, v63, v84
v_min_u32 v85, v64, v66
v_max_u32 v64, v64, v66
v_max3_u32 v65, v65, v67, v85
s_andn2_b64 exec, exec, vcc
v_min_u32 v84, v60, v64
v_max_u32 v70, v60, v64
v_max3_u32 v71, v61, v65, v84
s_and_b64 s[56:57], s[56:57], vcc
s_mov_b64 exec, s[56:57]
s_cbranch_scc1 L_poll1
L_poll1_done:
s_mov_b64 exec, -1""")
    stamp(2)
    merge()
    a(f"""v_lshlrev_b32 v84, 5, v76
v_lshlrev_b32 v85, 5, v77
v_perm_b32 v81, v84, v85, v92
buffer_store_dwordx4 v[80:83], v1, s[28:31], s33 offen""")
    xprefetch()
    a(f"""v_mov_b32 v3, 0
s_mov_b64 exec, 1
buffer_store_dwordx4 v[80:83], v3, s[28:31], s34 offen sc1""")
    stamp(3)
    a(f"""s_cmp_lg_u32 s2, 224
s_cbranch_scc1 L_agg_done
""")
    if p.relief: a(f"""; every workgroup must have read the epoch word before it changes
s_mov_b32 exec_lo, 0x0fffffff
v_lshlrev_b32 v4, 3, v0
s_mov_b32 s52, {SPIN}
s_mov_b32 s55, {WS_ARR}
L_arr:
buffer_load_dwordx2 v[60:61], v4, s[28:31], s55 offen sc1
s_sub_u32 s52, s52, 1
s_cbranch_scc1 L_arr_done
s_waitcnt vmcnt(0)
v_xor_b32 v60, s50, v60
v_bitop3_b32 v60, v61, s51, v60 bitop3:{XOR_OR:#x}
v_cmp_ne_u32 vcc, 0, v60
s_cbranch_vccnz L_arr
L_arr_done:
s_mov_b64 exec, 1""")
    a(f"""s_add_u32 s46, s46, 1
v_mov_b32 v85, s46
buffer_store_dword v85, v3, s[28:31], 0 offen sc1
L_agg_done:""")
    stamp_out()
    a("s_endpgm")

    order = p.order.split(",")
    assert sorted(order) == sorted(S.keys()), (order, list(S.keys()))
    body = ""
    for k, name in enumerate(order):
        t = S[name].text()
        if k + 1 < len(order):
            nxt = S[order[k+1]].lines[0].strip()
            lines = t.rstrip("\n").split("\n")
            if lines[-1].strip() == "s_branch " + nxt.rstrip(":"): t = "\n".join(lines[:-1]) + "\n"
        body += f"; ---------------------------------------------------------------- {name}\n" + t
    body += "L_end:\n    s_endpgm\n"
    meta = dict(nwg=256, nwave=9, nst=12) if st else (dict(light=1) if p.light else None)
    txt = kernel_file(body, 256, 576, L_END, 104 if st else 96, meta=meta, extra_comment=DOC)
    if p.align > 8: txt = txt.replace(".text\n", f".text\n.p2align {p.align}\n", 1)
    return txt

if __name__ == "__main__":
    p = P()
    out = sys.argv[1]
    for kv in sys.argv[2:]:
        k, v = kv.split("=")
        assert hasattr(P, k), k
        setattr(p, k, type(getattr(P, k))(eval(v)) if not isinstance(getattr(P, k), str) else v.replace("+", " "))
    open(out, "w").write(gen(p))
```

```python
import sys, re
from asmlib import *

import os
CLS = os.environ.get('CLS')
def wrap(src, sel, M, agg="max", gap=False):
    m = re.search(r"; @launch grid=\((\d+),1,1\) block=\((\d+),1,1\) lds=(\d+)", src)
    g, b, l = m.groups()
    nw = int(b)//64
    src = src.replace(m.group(0), f"; @launch kernel={KNAME} grid=({g},1,1) block=({b},1,1) lds={l}\n; @launch kernel=amp_kernel grid=(1,1,1) block=(256,1,1) lds=64")
    a = Asm()
    a(f"""s_memrealtime s[24:25]
s_load_dwordx2 s[4:5], s[0:1], 56
s_cmp_ge_u32 s2, 1
s_cbranch_scc1 LA_end
v_lshlrev_b32 v1, 10, v0
v_mov_b32 v2, -1
v_mov_b32 v3, {0 if agg == 'max' else -1}
v_mov_b32 v10, 0
s_waitcnt lgkmcnt(0)
s_add_u32 s8, s4, {STAMP_OFF}
s_addc_u32 s9, s5, 0
s_mov_b32 s10, 0x100000
s_mov_b32 s11, 0x20000
ds_write_b64 v10, v[2:3]
s_waitcnt lgkmcnt(0)
s_barrier""")
    for w in range(1):
        a(f"buffer_load_dword v4, v1, s[8:11], 0 offen offset:{w*64}\ns_waitcnt vmcnt(0)\nv_min_u32 v2, v2, v4")
    for (lo, hi, w, st) in sel:
        a(f"""buffer_load_dword v4, v1, s[8:11], 0 offen offset:{w*64+st*4}
v_cmp_le_u32 vcc, {lo}, v0
v_cmp_gt_u32 s[12:13], s14, v0""".replace("v_cmp_gt_u32 s[12:13], s14, v0", f"s_mov_b32 s14, {hi}\nv_cmp_gt_u32 s[12:13], s14, v0"))
        if CLS is not None: a(f"s_and_b64 vcc, vcc, s[12:13]\nv_and_b32 v5, 7, v0\nv_cmp_eq_u32 s[12:13], {CLS}, v5\ns_nop 1")
        a(f"""s_and_b64 vcc, vcc, s[12:13]
s_waitcnt vmcnt(0)
v_cndmask_b32 v4, v3, v4, vcc
v_{agg}_u32 v3, v3, v4""")
    a(f"""ds_min_u32 v10, v2
ds_{agg}_u32 v10, v3 offset:4
s_waitcnt lgkmcnt(0)
s_barrier
ds_read_b64 v[2:3], v10
s_waitcnt lgkmcnt(0)
""" + ("v_sub_u32 v2, s24, v3" if gap == 1 else ("v_sub_u32 v2, s24, v2" if gap == 2 else "v_sub_u32 v2, v3, v2")) + f"""
s_nop 1
v_readfirstlane_b32 s16, v2
s_memrealtime s[18:19]
s_mul_i32 s16, s16, {M}
s_min_u32 s16, s16, 100000
s_waitcnt lgkmcnt(0)
LA_spin:
s_memrealtime s[20:21]
s_waitcnt lgkmcnt(0)
s_sub_u32 s22, s20, s18
s_cmp_lt_u32 s22, s16
s_cbranch_scc1 LA_spin
LA_end:
s_endpgm""")
    amp = f""".text
.globl amp_kernel
.p2align 8
.type amp_kernel,@function
amp_kernel:
{a.text()}
.section .rodata,"a"
.p2align 6
.amdhsa_kernel amp_kernel
  .amdhsa_next_free_vgpr 16
  .amdhsa_next_free_sgpr 32
  .amdhsa_accum_offset 16
  .amdhsa_group_segment_fixed_size 0
  .amdhsa_kernarg_size 64
  .amdhsa_user_sgpr_count 2
  .amdhsa_user_sgpr_kernarg_segment_ptr 1
  .amdhsa_system_sgpr_workgroup_id_x 1
.end_amdhsa_kernel
"""
    return src + amp

if __name__ == "__main__":
    src = open(sys.argv[1]).read()
    open(sys.argv[2], "w").write(wrap(src, eval(sys.argv[3]), int(sys.argv[4]), sys.argv[5] if len(sys.argv) > 5 else "max", int(sys.argv[6]) if len(sys.argv) > 6 else 0))

def sandwich(src, M=20):
    m = re.search(r"; @launch grid=\((\d+),1,1\) block=\((\d+),1,1\) lds=(\d+)", src)
    g, b, l = m.groups()
    src = src.replace(m.group(0), f"; @launch kernel=pre_kernel grid=(1,1,1) block=(64,1,1) lds=0\n; @launch kernel={KNAME} grid=({g},1,1) block=({b},1,1) lds={l}\n; @launch kernel=amp_kernel grid=(1,1,1) block=(64,1,1) lds=0")
    def kern(name, body):
        return f""".text
.globl {name}
.p2align 8
.type {name},@function
{name}:
{body}
.section .rodata,"a"
.p2align 6
.amdhsa_kernel {name}
  .amdhsa_next_free_vgpr 16
  .amdhsa_next_free_sgpr 32
  .amdhsa_accum_offset 16
  .amdhsa_group_segment_fixed_size 0
  .amdhsa_kernarg_size 64
  .amdhsa_user_sgpr_count 2
  .amdhsa_user_sgpr_kernarg_segment_ptr 1
  .amdhsa_system_sgpr_workgroup_id_x 1
.end_amdhsa_kernel
"""
    pre = f"""s_load_dwordx2 s[4:5], s[0:1], 56
s_cmp_ge_u32 s2, 1
s_cbranch_scc1 LP_end
v_mov_b32 v1, {STAMP_OFF}
s_waitcnt lgkmcnt(0)
s_memrealtime s[6:7]
s_waitcnt lgkmcnt(0)
v_mov_b32 v2, s6
global_store_dword v1, v2, s[4:5] sc1
LP_end:
s_endpgm"""
    amp = f"""s_memrealtime s[24:25]
s_load_dwordx2 s[4:5], s[0:1], 56
s_cmp_ge_u32 s2, 1
s_cbranch_scc1 LA_end
s_waitcnt lgkmcnt(0)
s_mov_b32 s8, {STAMP_OFF}
s_load_dword s16, s[4:5], s8
s_waitcnt lgkmcnt(0)
s_sub_u32 s16, s24, s16
s_mul_i32 s16, s16, {M}
s_min_u32 s16, s16, 100000
s_memrealtime s[18:19]
s_waitcnt lgkmcnt(0)
LA_spin:
s_memrealtime s[20:21]
s_waitcnt lgkmcnt(0)
s_sub_u32 s22, s20, s18
s_cmp_lt_u32 s22, s16
s_cbranch_scc1 LA_spin
LA_end:
s_endpgm"""
    return src + kern("pre_kernel", pre) + kern("amp_kernel", amp)
```

```python
import sys
from asmlib import *

WS_E    = 0
WS_RES  = 4096
WS_RESF = 73728
WS_DONE = 77824
WS_ARR  = 81920
WS_KEYS = 131072
KSTR    = 2304
WS_PREA = 393216
WS_PREB = 655360
WS_YP   = 1048576
MASK    = 0xF80007F8
SPIN    = 1 << 16
L_TAGS, L_ROUTE, L_CNT, L_RED1, L_RED2, L_END = 0, 16, 20, 64, 4608, 12800
C1, D1, X12, C2, D2 = 0x9E3779B8, 0x3C6EF372, 0xA5A5A5A8, 0x85EBCA6B, 0x27D4EB2F
XOR_OR = ((0xF0 ^ 0xCC) | 0xAA) & 0xFF

class P:
    nb1 = 5; th2 = 6; cpos = 10; relief = True; pfn = 10; pfat = 1
    xmod = ""; wmod = "nt"; dmod = "nt"; omod = "sc1"; fmod = ""
    rsleep = 12; b3 = False; w1 = True; adapt = 0; dep5 = False; depk = True; bcopy = 1; bsleep = 0; ladder = "0,4,8,11,13,14,15"; droute = 0; dummy = True; npre = 0; xoff = 4; agg_dx = 0
    stamps = False; light = False
    na_pre = 64; na_res = 63
    agg_d0 = 0; agg_d1 = 0
    pre_sleep = 2; hint_max = 200; red_delay = 12
    align = 12; nanfix = True
    order = "entry,R1,Lstart,stubs,PF,R3,R2,L2,D,RED,AGG,cold,nan"

DOC = """;
;   workgroups 224..255 (helpers): R, a second R for the rows of the workgroups with fg%8==3, an aggregator wave
"""

def gen(p):
    S = {}
    cur = [None]
    def sec(name):
        S.setdefault(name, Asm()); cur[0] = S[name]
    def a(t): cur[0](t)
    class cold:
        def __init__(s, name="cold"): s.name = name
        def __enter__(s): s.back = cur[0]; sec(s.name)
        def __exit__(s, *e): cur[0] = s.back
    nl = [0]
    def label(b):
        nl[0] += 1; return f"{b}_{nl[0]}"
    st = p.stamps
    SV = 103
    def stamp(i):
        if st: a(f"s_memrealtime s[100:101]\ns_waitcnt lgkmcnt(0)\nv_writelane_b32 v{SV}, s100, {i}")
    def stamp_idx(expr_sub, reg):
        if st: a(f"""s_memrealtime s[100:101]
s_sub_u32 s60, {expr_sub}, s{reg}
s_min_u32 s60, s60, 11
s_mov_b32 m0, s60
s_waitcnt lgkmcnt(0)
v_writelane_b32 v{SV}, s100, m0""")
    def stamp_out():
        if not (st or p.light): return
        a(f"""s_waitcnt vmcnt(0) lgkmcnt(0)
s_lshl_b32 s20, s2, 4
s_add_u32 s20, s20, s3
s_lshl_b32 s20, s20, 6
s_add_u32 s20, s20, {STAMP_OFF}""")
        if p.light:
            a(f"""s_memrealtime s[98:99]
s_mov_b64 exec, 1
v_mov_b32 v3, 0
v_mov_b32 v4, s100
s_waitcnt lgkmcnt(0)
v_mov_b32 v5, s98
buffer_store_dwordx2 v[4:5], v3, s[28:31], s20 offen""")
        else:
            a(f"""s_mov_b64 exec, 0xffff
v_mbcnt_lo_u32_b32 v3, -1, 0
v_lshlrev_b32 v3, 2, v3
buffer_store_dword v{SV}, v3, s[28:31], s20 offen""")
    def ws_srd():
        a(f"s_mov_b32 s28, s18\ns_mov_b32 s29, s19\ns_mov_b32 s30, {WS_BYTES}\ns_mov_b32 s31, 0x20000")
    def tags_from_epoch():
        a(f"""s_mul_i32 s50, s46, {C1:#x}
s_add_u32 s50, s50, {D1:#x}
s_xor_b32 s51, s50, {X12:#x}
s_mul_i32 s52, s46, {C2:#x}
s_add_u32 s52, s52, {D2:#x}""")
    def read_tags(v):
        a(f"""v_mov_b32 v{v}, 0
ds_read_b32 v{v}, v{v} offset:{L_TAGS}
s_waitcnt lgkmcnt(0)
v_readfirstlane_b32 s26, v{v}
s_and_b32 s27, s26, 15""")
    def poll_result(dst, tag, off, cnt):
        l1, l2, l2b, l3 = label("L_rp"), label("L_rf"), label("L_rg"), label("L_rd")
        a(f"""s_and_b32 s{off}, s2, 7
s_lshl_b32 s{off}, s{off}, 13
s_add_u32 s{off}, s{off}, {WS_RES}
s_mov_b32 s{cnt}, {p.na_res}
{l1}:
s_load_dwordx4 s[{dst}:{dst+3}], s[18:19], s{off}
s_add_u32 s{off}, s{off}, 128
s_sub_u32 s{cnt}, s{cnt}, 1
s_cbranch_scc1 {l2}
s_waitcnt lgkmcnt(0)
s_cmp_lg_u32 s{dst+3}, s{tag}
s_cbranch_scc1 {l1}
{l3}:""")
        with cold():
            a(f"""; the aggregator sits on another die: read the write-through copy past the caches
{l2}:
s_and_b32 s{off}, s2, 7
s_lshl_b32 s{off}, s{off}, 8
s_add_u32 s{off}, s{off}, {WS_RESF}
s_mov_b32 s{cnt}, {SPIN}
{l2b}:
s_waitcnt lgkmcnt(0)
s_load_dwordx4 s[{dst}:{dst+3}], s[18:19], s{off} glc
s_waitcnt lgkmcnt(0)
s_cmp_eq_u32 s{dst+3}, s{tag}
s_cbranch_scc1 {l3}
s_sleep 8
s_sub_u32 s{cnt}, s{cnt}, 1
s_cbranch_scc0 {l2b}
s_and_b32 s{dst}, s{dst}, 0x7ff07ff
s_branch {l3}""")
    def selectors():
        a("""; v16..v23: byte selectors that place one bf16 at element (lane&7) of an 8-element A fragment
v_and_b32 v3, 1, v0
v_cmp_eq_u32 vcc, 1, v3
v_mov_b32 v4, 0x0c0c0100
v_mov_b32 v5, 0x01000c0c
v_mov_b32 v6, 0x0c0c0302
v_mov_b32 v7, 0x03020c0c
v_cndmask_b32 v4, v4, v5, vcc
v_cndmask_b32 v5, v6, v7, vcc
v_bfe_u32 v3, v0, 1, 2
v_mov_b32 v6, 0x0c0c0c0c""")
        for d in range(4):
            a(f"""v_cmp_eq_u32 vcc, {d}, v3
s_nop 1
v_cndmask_b32 v{16+d}, v6, v4, vcc
v_cndmask_b32 v{20+d}, v6, v5, vcc""")
    def perms(dst, src, par):
        for d in range(4): a(f"v_perm_b32 v{dst+d}, v{src}, v{src}, v{16+4*par+d}")
    def fg_of_wg():
        a(f"""s_add_u32 s20, s2, {p.xoff}
s_and_b32 s20, s20, 7
s_mul_i32 s20, s20, 7
s_lshr_b32 s21, s2, 5
s_add_u32 s32, s20, s21
s_bfe_u32 s33, s2, 0x20003           ; s33 = j""")
    def lds_init():
        a(f"""v_mov_b32 v88, 0
v_mov_b32 v84, -1
v_mov_b32 v85, 0
s_mov_b64 exec, 1
ds_write_b64 v88, v[84:85] offset:{L_ROUTE}""")

    sec("entry")
    if st: a(f"v_mov_b32 v{SV}, 0")
    if p.light: a("s_memrealtime s[100:101]")
    stamp(0)
    a(f"""s_load_dwordx16 s[4:19], s[0:1], 0
v_readfirstlane_b32 s3, v0
s_cmp_ge_u32 s2, 256
s_cbranch_scc1 L_end
v_and_b32 v0, 63, v0
s_lshr_b32 s3, s3, 6                 ; wave
s_cmp_ge_u32 s3, 5
s_cbranch_scc1 L_stubD
s_cmp_lg_u32 s3, 0
s_cbranch_scc1 L_Lstart""")

    sec("R1")
    a("s_mov_b32 s35, s2")
    if p.relief:
        fg_of_wg()
        a("""; lines whose address bits 9:7 are 3 stream more slowly through one CU: a helper routes these workgroups' rows
s_cmp_ge_u32 s2, 224
s_cselect_b32 s21, 0, s32
s_and_b32 s21, s21, 7
s_cmp_eq_u32 s21, 3
s_cbranch_scc1 L_R3""")
    a("""L_R1:
s_setprio 3
s_lshl_b32 s43, s35, 14
s_add_u32 s44, s43, 4096
v_lshlrev_b32 v1, 4, v0
v_add_u32 v90, s44, v1
v_add_u32 v91, 8192, v90""")
    lds_init()
    a("s_mov_b64 exec, -1\ns_waitcnt lgkmcnt(0)")
    stamp(8)
    for i in range(16):
        a(f"global_load_dwordx4 v[{10+4*i}:{13+4*i}], v{90+i//8}, s[4:5] offset:{(i%8)*1024-4096} {p.xmod}")
        if i == 1:
            a("global_load_dwordx4 v[2:5], v1, s[6:7]\nglobal_load_dwordx4 v[6:9], v1, s[6:7] offset:1024")
    stamp(9)
    a(f"s_load_dword s46, s[18:19], {WS_E}\ns_barrier\ns_branch L_R2")

    sec("stubs")
    a(f"""L_stubD:
s_cmp_ge_u32 s2, 224
s_cbranch_scc1 L_stubA
""" + ("s_cmp_eq_u32 s3, 5\ns_cbranch_scc1 L_PF\n" if p.pfn < 16 else "") + f"""s_cmp_lg_u32 s3, 8
s_cbranch_scc1 L_nocpf
; pull the kernel's code into this die's L2
s_getpc_b64 s[22:23]
L_pc:
v_lshlrev_b32 v1, 7, v0
v_min_u32 v1, L_hot_end-L_pc, v1
global_load_dword v80, v1, s[22:23]
L_nocpf:
s_barrier                            ; A
s_branch L_D
L_stubA:
s_cmp_lg_u32 s3, 5
s_cbranch_scc1 L_end
L_stubH:
s_waitcnt lgkmcnt(0)
s_load_dword s46, s[18:19], {WS_E}
s_waitcnt lgkmcnt(0)
s_barrier                            ; A (the epoch word is read before this workgroup publishes)
s_cmp_eq_u32 s3, 5
s_cbranch_scc1 L_AGG
s_branch L_RED
L_stubR:
s_cmp_ge_u32 s3, 3
s_cbranch_scc0 L_stubH
""")
    if not p.relief: a("s_endpgm")
    else: a(f"""s_cmp_lg_u32 s3, 3
s_cbranch_scc1 L_end
s_add_u32 s20, s2, {p.xoff + 3}
s_and_b32 s20, s20, 7
s_cmp_eq_u32 s20, 7
s_cbranch_scc1 L_end
s_lshl_b32 s20, s20, 5
s_and_b32 s35, s2, 31
s_add_u32 s35, s35, s20
s_branch L_R1""")

    sec("PF")
    if p.pfn < 16:
        nm = 16 - p.pfn
        a("L_PF:")
        fg_of_wg()
        a(f"""; a CU keeps only half as many lines with address bits 9:7 == 3 in flight: the other workgroups of the die pull
s_sub_u32 s22, 3, s20
s_and_b32 s22, s22, 7
s_cmp_gt_u32 s21, s22
s_subb_u32 s23, s21, 0
s_cmp_eq_u32 s21, s22
s_cselect_b32 s23, 7, s23
s_cmp_eq_u32 s22, 7
s_cselect_b32 s23, 7, s23
s_cmp_ge_u32 s23, {nm}
s_cbranch_scc1 L_nocpf
s_add_u32 s23, s23, {p.pfn}          ; m
s_lshr_b32 s24, s23, 2
s_lshl_b32 s24, s24, 4
s_and_b32 s23, s23, 3
s_add_u32 s23, s23, s24
s_lshl_b32 s24, s33, 8
s_add_u32 s23, s23, s24
s_mul_i32 s23, s23, 7168
s_add_u32 s22, s22, s20
s_lshl_b32 s22, s22, 7
s_add_u32 s23, s23, s22
v_bfe_u32 v1, v0, 3, 2
v_mul_u32_u24 v1, {64*7168}, v1
v_bfe_u32 v2, v0, 1, 2
v_mul_u32_u24 v2, {4*7168}, v2
v_add3_u32 v1, v1, v2, s23
v_and_b32 v2, 1, v0
v_cmp_eq_u32 vcc, 0, v2
s_waitcnt lgkmcnt(0)
v_mov_b32 v4, s10
v_mov_b32 v5, s8
v_mov_b32 v6, s11
v_mov_b32 v7, s9
v_cndmask_b32 v4, v4, v5, vcc
v_cndmask_b32 v5, v6, v7, vcc
v_add_co_u32 v4, vcc, v4, v1
s_nop 1
v_addc_co_u32 v5, vcc, 0, v5, vcc
s_mov_b32 exec_hi, 0
s_barrier                            ; A""")
        a("global_load_dword v80, v[4:5], off\ns_mov_b64 exec, -1")
        a("s_branch L_D")
    else: a("s_nop 0")

    sec("R3")
    if not p.relief: a('s_nop 0')
    def r3():
        a(f"""L_R3:
s_lshr_b32 s21, s32, 3
s_lshl_b32 s21, s21, 2
s_add_u32 s21, s21, s33
s_lshl_b32 s48, s21, 3
s_add_u32 s48, s48, {WS_ARR}""")
        lds_init()
        a(f"""s_waitcnt lgkmcnt(0)
s_load_dword s46, s[18:19], {WS_E}
s_barrier                            ; A""")
        ws_srd()
        a("s_waitcnt lgkmcnt(0)")
        tags_from_epoch()
        a(f"""v_mov_b32 v84, s52
ds_write_b32 v88, v84 offset:{L_TAGS}
v_mov_b32 v74, s50
v_mov_b32 v75, s51
buffer_store_dwordx2 v[74:75], v88, s[28:31], s48 offen sc1""")
        poll_result(40, 52, 44, 45)
        a(f"""v_mov_b32 v84, s40
ds_write_b32 v88, v84 offset:{L_ROUTE}
s_barrier                            ; 2
s_barrier                            ; 4""")
        if p.b3: a("s_barrier")
        stamp_out()
        a("s_endpgm")
    if p.relief: r3()

    sec("R2")
    a("L_R2:")
    ws_srd()
    a(f"""s_mov_b32 s24, s14
s_mov_b32 s25, s15
s_mov_b32 s26, {X_BYTES}
s_mov_b32 s27, 0x20000
; row held by a lane after the reduction: lane bit5 -> row bit0, bit4 -> bit1, bit3 -> bit2
v_lshrrev_b32 v82, 5, v0
v_bfe_u32 v83, v0, 4, 1
v_lshl_or_b32 v82, v83, 1, v82
v_bfe_u32 v83, v0, 3, 1
v_lshl_or_b32 v82, v83, 2, v82
s_lshl_b32 s47, s35, 3
s_sub_u32 s47, 2047, s47
v_sub_u32 v82, s47, v82              ; 2047 - token index
v_mul_u32_u24 v92, {KSTR}, v0        ; replica stride
""" + (f"v_lshlrev_b32 v89, 2, v0\ns_and_b32 s49, s2, 7\ns_lshl_b32 s49, s49, 7\ns_add_u32 s49, s49, {WS_DONE}\n" if p.adapt else "") + f"""s_nop 0
s_lshl_b32 s48, s35, 3
s_add_u32 s48, s48, {WS_KEYS}""")
    for r in range(8): a(f"v_mov_b32 v{74+r}, 0")
    if p.nanfix: a("v_mov_b32 v93, 0x207")
    a("s_waitcnt lgkmcnt(0)")
    stamp(1)
    tags_from_epoch()
    a(f"""v_mov_b32 v84, s52
s_mov_b64 exec, 1
ds_write_b32 v88, v84 offset:{L_TAGS}
s_mov_b64 exec, -1""")
    def dots(r, lo, hi):
        for q in range(lo, hi): a(f"v_dot2c_f32_bf16 v{74+r}, v{10+8*r+q}, v{2+q}")
    for r in range(6):
        a(f"s_waitcnt vmcnt({14-2*r})"); dots(r, 0, 8)
    a("s_waitcnt vmcnt(2)"); dots(6, 0, 8)
    a("""v_permlane32_swap_b32 v74, v75
v_permlane32_swap_b32 v76, v77
v_permlane32_swap_b32 v78, v79
v_add_f32 v74, v74, v75
v_add_f32 v76, v76, v77
v_add_f32 v78, v78, v79
s_waitcnt vmcnt(1)""")
    dots(7, 0, 4)
    a("v_permlane16_swap_b32 v74, v76\ns_waitcnt vmcnt(0)")
    dots(7, 4, 8)
    stamp(2)
    a("""v_add_f32 v74, v74, v76
s_nop 1
v_permlane32_swap_b32 v80, v81
v_add_f32_dpp v75, v74, v74 row_ror:8 row_mask:0xf bank_mask:0xf
v_add_f32 v80, v80, v81
s_nop 1
v_permlane16_swap_b32 v78, v80
v_add_f32 v78, v78, v80
s_nop 1
v_add_f32_dpp v75, v78, v78 row_ror:8 row_mask:0xf bank_mask:0xc
s_nop 1
v_add_f32_dpp v75, v75, v75 row_half_mirror row_mask:0xf bank_mask:0xf
s_nop 1
v_add_f32_dpp v75, v75, v75 quad_perm:[1,0,3,2] row_mask:0xf bank_mask:0xf
s_nop 1
v_add_f32_dpp v79, v75, v75 quad_perm:[2,3,0,1] row_mask:0xf bank_mask:0xf
v_cmp_u_f32 vcc, v79, v79
v_cvt_pk_bf16_f32 v76, v79, v79
v_ashrrev_i32 v77, 31, v76
v_or_b32 v77, 0x80000000, v77
v_xor_b32 v76, v76, v77
v_lshrrev_b32 v76, 16, v76
v_cndmask_b32 v76, v76, 0, vcc
v_lshl_or_b32 v76, v76, 11, v82
s_nop 1
v_max_u32_dpp v74, v76, v76 row_ror:8 row_mask:0xf bank_mask:0xf
v_max_u32_dpp v78, v76, v76 row_ror:8 row_mask:0xf bank_mask:0xf
v_min_u32_dpp v75, v76, v76 row_ror:8 row_mask:0xf bank_mask:0xf
v_min_u32_dpp v77, v76, v76 row_ror:8 row_mask:0xf bank_mask:0xf
s_nop 0
v_permlane16_swap_b32 v74, v78
v_permlane16_swap_b32 v75, v77
v_min_u32 v80, v74, v78
v_max_u32 v76, v74, v78
v_max_u32 v74, v74, v78
v_max3_u32 v81, v75, v77, v80
v_max3_u32 v75, v75, v77, v80
v_permlane32_swap_b32 v74, v76
s_nop 0
v_permlane32_swap_b32 v75, v81
v_min_u32 v78, v74, v76
v_max_u32 v74, v74, v76
v_max3_u32 v75, v75, v81, v78
v_xor_b32 v74, s50, v74
v_xor_b32 v75, s51, v75
s_mov_b64 exec, 0xff
buffer_store_dwordx2 v[74:75], v92, s[28:31], s48 offen sc1
s_cmp_lt_u32 s2, 224
s_cbranch_scc1 L_Rnob""")
    if p.depk: a("s_waitcnt vmcnt(0)")
    a("""s_barrier
L_Rnob:""")
    stamp(3)
    if p.nanfix:
        a("""s_mov_b64 exec, -1
v_cmp_class_f32 vcc, v79, v93
s_cbranch_vccnz L_nanfix
L_nanfix_done:""")
        with cold("nan"):
            a("""L_hot_end:
L_nanfix:
s_mov_b32 s54, 0x07060302""")
            for r in range(10, 74, 2):
                a(f"""v_and_b32 v84, 0xffff0000, v{r}
v_lshlrev_b32 v85, 16, v{r}
v_and_b32 v86, 0xffff0000, v{r+1}
v_lshlrev_b32 v87, 16, v{r+1}
v_fma_f32 v84, v84, 0, v84
v_fma_f32 v85, v85, 0, v85
v_fma_f32 v86, v86, 0, v86
v_fma_f32 v87, v87, 0, v87
v_perm_b32 v{r}, v84, v85, s54
v_perm_b32 v{r+1}, v86, v87, s54""")
            a("s_branch L_nanfix_done")
    else:
        with cold("nan"): a("L_hot_end:")
    a("s_mov_b64 exec, 1")
    poll_result(40, 52, 44, 45)
    a(f"""v_mov_b32 v84, s40
ds_write_b32 v88, v84 offset:{L_ROUTE}
s_mov_b64 exec, -1
s_setprio 0
s_and_b32 s41, s40, 0x7ff
s_bfe_u32 s40, s40, 0xb0010
s_lshl_b32 s42, s35, 3""")
    stamp(4)
    a("s_cmp_ge_u32 s2, 224\ns_cbranch_scc1 L_rstore\ns_barrier                            ; 2\ns_barrier                            ; 4" + ("\ns_barrier                            ; 5" if p.dep5 else ""))
    def bulk(mod):
        a("s_lshl_b32 s43, s35, 14")
        for r in range(8):
            a(f"""s_cmp_eq_u32 s42, s40
s_cselect_b32 s54, 0x40000000, s43
s_cmp_eq_u32 s42, s41
s_cselect_b32 s54, 0x40000000, s54
buffer_store_dwordx4 v[{10+8*r}:{13+8*r}], v1, s[24:27], s54 offen {mod}
buffer_store_dwordx4 v[{14+8*r}:{17+8*r}], v1, s[24:27], s54 offen offset:1024 {mod}""")
            if r < 7: a("s_add_u32 s43, s43, 2048\ns_add_u32 s42, s42, 1")
    if p.adapt:
        a(f"""; late workgroups leave their rows in L2 (written back at the end) instead of competing with the last hand-off
s_mov_b32 exec_lo, 0x0fffffff
s_mov_b32 exec_hi, 0
buffer_load_dword v84, v89, s[28:31], s49 offen sc1
s_waitcnt vmcnt(0)
v_cmp_eq_u32 vcc, s52, v84
s_mov_b64 exec, -1
s_bcnt1_i32_b64 s54, vcc
s_cmp_ge_u32 s54, {p.adapt}
s_cbranch_scc1 L_rlate""")
        with cold(): a("L_rlate:"); bulk(""); a("s_endpgm")
    if p.rsleep: a(f"s_sleep {p.rsleep}")
    a("L_rstore:")
    stamp(5)
    bulk(p.omod)
    stamp(6)
    if p.b3: a("s_cmp_ge_u32 s2, 224\ns_cbranch_scc1 L_rfin\ns_barrier\nL_rfin:")
    if st: a("s_waitcnt vmcnt(0)"); stamp(7)
    stamp_out()
    a("s_endpgm")

    sec("Lstart")
    a("""L_Lstart:
s_cmp_ge_u32 s2, 224
s_cbranch_scc1 L_stubR""")
    fg_of_wg()
    a(f"""v_lshrrev_b32 v1, 4, v0              ; g
v_and_b32 v2, 15, v0
s_sub_u32 s34, s3, 1                 ; w
s_lshl_b32 s20, s33, 8
s_lshl_b32 s21, s34, 6
s_add_u32 s20, s20, s21
s_mul_i32 s21, s20, 7168
s_lshl_b32 s22, s32, 7
s_add_u32 s21, s21, s22
v_cmp_gt_u32 vcc, 8, v2
v_and_b32 v3, 7, v2
v_lshlrev_b32 v3, 4, v3
v_mul_u32_u24 v4, {4*7168}, v1
v_add3_u32 v3, v3, v4, s21
s_mov_b32 s22, 7168
s_mov_b32 s23, 0
s_mov_b32 s24, {7168*13}
s_mov_b32 s25, 0
s_waitcnt lgkmcnt(0)
v_mov_b32 v4, s10
v_mov_b32 v5, s8
v_mov_b32 v6, s11
v_mov_b32 v7, s9
v_cndmask_b32 v4, v4, v5, vcc
v_cndmask_b32 v5, v6, v7, vcc
v_add_co_u32 v4, vcc, v4, v3
v_mov_b32 v6, 0
v_mov_b32 v7, 1
v_addc_co_u32 v5, vcc, 0, v5, vcc""")
    stamp(8)
    a("s_barrier                            ; A")
    def gload(m):
        a(f"global_load_dwordx4 v[{32+4*m}:{35+4*m}], v[4:5], off {p.wmod}")
        if m < 15: a(f"v_lshl_add_u64 v[4:5], v[4:5], 0, s[{'24:25' if (m+1) % 4 == 0 else '22:23'}]")
    for m in range(p.nb1): gload(m)
    stamp(1); a("s_branch L_L2"); sec("L2"); a("L_L2:")
    if p.w1 and p.nb1 < p.th2: a(f"s_waitcnt vmcnt({p.nb1-1})")
    for m in range(p.nb1, 17):
        if m == p.cpos: a(f"s_mov_b64 exec, 1\nds_add_u32 v6, v7 offset:{L_CNT}\ns_mov_b64 exec, -1")
        if m == 16: break
        if p.th2 and m >= p.th2: a(f"s_waitcnt vmcnt({p.th2-1})")
        gload(m)
    stamp(2)
    selectors()
    ws_srd()
    a(f"""s_lshl_b32 s20, s20, 1
v_bfe_u32 v3, v2, 1, 2
v_lshlrev_b32 v4, 8, v3
v_and_b32 v3, 1, v2
v_lshl_or_b32 v4, v3, 7, v4
v_and_b32 v3, 1, v1
v_lshl_or_b32 v4, v3, 6, v4
v_lshrrev_b32 v3, 1, v1
v_lshl_or_b32 v4, v3, 5, v4
v_lshrrev_b32 v3, 3, v2
v_lshl_or_b32 v1, v3, 4, v4
v_lshlrev_b32 v0, 4, v0              ; lane*16
s_lshl_b32 s21, s34, 10
v_add_u32 v2, s21, v0
s_lshl_b32 s12, s32, 2
s_add_u32 s12, s12, s33
s_lshl_b32 s12, s12, 10
s_add_u32 s12, s12, {WS_PREA}
s_add_u32 s4, s4, s20
s_addc_u32 s5, s5, 0
v_mov_b32 v3, 0
s_mov_b32 s21, {SPIN*16}
L_Lroute:
ds_read_b32 v4, v3 offset:{L_ROUTE}
s_sub_u32 s21, s21, 1
s_cbranch_scc1 L_Lroute_done
s_waitcnt lgkmcnt(0)
v_readfirstlane_b32 s8, v4
s_cmp_eq_u32 s8, -1
s_cbranch_scc1 L_Lroute
L_Lroute_done:""")
    stamp(3)
    a("""s_lshr_b32 s9, s8, 5
s_and_b32 s9, s9, 0x3ff800
s_load_dwordx16 s[36:51], s[4:5], s9
s_load_dwordx16 s[52:67], s[4:5], s9 offset:64
s_lshl_b32 s8, s8, 11
s_and_b32 s8, s8, 0x3ff800
s_load_dwordx16 s[68:83], s[4:5], s8
s_load_dwordx16 s[84:99], s[4:5], s8 offset:64
ds_read_b32 v4, v3 offset:""" + str(L_TAGS) + """
s_mov_b64 exec, 0xff
s_waitcnt lgkmcnt(0)
v_readfirstlane_b32 s26, v4""")
    stamp(4)
    for g in range(4):
        for t in range(2):
            for q in range(4):
                sr = 36 + 32*t + (16*q + 4*g)//2
                a(f"v_mov_b64 v[{8+2*q}:{9+2*q}], s[{sr}:{sr+1}]")
            a("s_lshl_b64 exec, exec, 8" if (g, t) != (3, 1) else "s_mov_b64 exec, -1")
    perms(24, 8, 0)
    lad = sorted(int(x) for x in p.ladder.split(","))
    for m in range(16):
        c = 24 + 4*(m & 1); nx = 24 + 4*((m+1) & 1)
        if m < 15: perms(nx, 8 + ((m+1) >> 1), (m+1) & 1)
        elif 15 not in lad: a("s_nop 0")
        if m in lad:
            nxt = [x for x in lad if x > m]
            a(f"s_waitcnt vmcnt({16 - (nxt[0] if nxt else 16)})")
            if not nxt: stamp(5)
        a(f"v_mfma_f32_16x16x32_bf16 v[4:7], v[{c}:{c+3}], v[{32+4*m}:{35+4*m}], {'0' if m == 0 else 'v[4:7]'}")
    a(f"""s_cmp_eq_u32 s34, 0
s_cbranch_scc1 L_L0
s_nop 5
ds_write_b128 v2, v[4:7] offset:{L_RED1}
s_waitcnt lgkmcnt(0)
s_barrier                            ; 2""")
    stamp(6)
    stamp_out()
    a(f"""s_endpgm
L_L0:
s_and_b32 s27, s26, 15
s_add_u32 s14, s27, 5
s_add_u32 s15, s27, 10
s_add_u32 s16, s27, 15
s_barrier                            ; 2""")
    stamp(6)
    a(f"""ds_read_b128 v[8:11], v0 offset:{L_RED1+1024}
ds_read_b128 v[12:15], v0 offset:{L_RED1+2048}
ds_read_b128 v[24:27], v0 offset:{L_RED1+3072}
s_waitcnt lgkmcnt(2)
v_pk_add_f32 v[4:5], v[4:5], v[8:9]
v_pk_add_f32 v[6:7], v[6:7], v[10:11]
s_waitcnt lgkmcnt(0)
v_pk_add_f32 v[12:13], v[12:13], v[24:25]
v_pk_add_f32 v[14:15], v[14:15], v[26:27]
v_pk_add_f32 v[4:5], v[4:5], v[12:13]
v_pk_add_f32 v[6:7], v[6:7], v[14:15]
v_bfi_b32 v4, 15, s27, v4
v_bfi_b32 v5, 15, s14, v5
v_bfi_b32 v6, 15, s15, v6
v_bfi_b32 v7, 15, s16, v7
buffer_store_dwordx4 v[4:7], v1, s[28:31], s12 offen""")
    stamp(7)
    if p.b3: a("s_barrier")
    a("s_barrier                            ; 4")
    if p.bcopy == 2:
        a(f"s_add_u32 s12, s12, {WS_PREB-WS_PREA}")
        if p.bsleep: a(f"s_sleep {p.bsleep}")
        a("buffer_store_dwordx4 v[4:7], v1, s[28:31], s12 offen sc1")
    stamp_out()
    a("s_endpgm")

    sec("D")
    a("L_D:")
    fg_of_wg()
    a(f"""v_lshrrev_b32 v1, 4, v0              ; g
v_and_b32 v2, 15, v0                 ; jj
s_sub_u32 s34, s3, 5
v_lshlrev_b32 v64, 13, v1
v_lshl_or_b32 v64, v2, 4, v64
s_lshl_b32 s20, s32, 6
s_lshl_b32 s21, s34, 4
s_add_u32 s20, s20, s21
s_lshl_b32 s20, s20, 11
s_lshl_b32 s21, s33, 9
s_add_u32 s20, s20, s21
s_add_u32 s21, s20, 4096
s_waitcnt lgkmcnt(0)
s_mov_b32 s36, s12
s_mov_b32 s37, s13
s_mov_b32 s38, {W_BYTES}
s_mov_b32 s39, 0x20000""")
    ws_srd()
    selectors()
    a(f"""v_lshlrev_b32 v65, 4, v0             ; lane*16
s_lshl_b32 s22, s34, 11
v_add_u32 v66, s22, v65
s_lshl_b32 s22, s34, 10
v_add_u32 v67, s22, v65
s_lshl_b32 s23, s32, 2
s_add_u32 s23, s23, s33
s_lshl_b32 s23, s23, 11
s_add_u32 s23, s23, s22
s_add_u32 s23, s23, {WS_YP}
v_lshrrev_b32 v3, 1, v2
v_lshlrev_b32 v68, 7, v3
v_lshrrev_b32 v3, 1, v1
v_lshl_or_b32 v68, v3, 6, v68
v_and_b32 v3, 1, v2
v_and_b32 v4, 1, v1
v_lshl_or_b32 v3, v3, 1, v4
v_lshl_or_b32 v68, v3, 4, v68
v_mul_u32_u24 v71, 5, v3
s_and_b32 s48, s2, 7
s_lshl_b32 s48, s48, 7
s_lshr_b32 s49, s2, 3
s_lshl_b32 s49, s49, 2
s_add_u32 s48, s48, s49
s_add_u32 s48, s48, {WS_DONE}
s_lshl_b32 s22, s34, 8
v_lshl_add_u32 v69, v0, 2, s22
v_and_b32 v4, 3, v0
v_mul_u32_u24 v70, 5, v4
s_lshl_b32 s41, s32, 12
s_add_u32 s41, s41, {WS_PREA}
s_mov_b32 s42, {p.na_pre}
s_mov_b32 s43, 0xbfb8aa3b            ; -log2(e)
s_lshl_b32 s44, s33, 10
s_add_u32 s44, s44, s41
v_mov_b32 v3, 0
s_mov_b32 s22, {SPIN*4}
L_Dcnt:
s_sleep 1
ds_read_b32 v4, v3 offset:{L_CNT}
s_sub_u32 s22, s22, 1
s_cbranch_scc1 L_Dcnt_done
s_waitcnt lgkmcnt(0)
v_readfirstlane_b32 s45, v4
s_cmp_lt_u32 s45, 4
s_cbranch_scc1 L_Dcnt
L_Dcnt_done:
; (they also bring the mailbox lines into L2)""")
    for q in range(4): a(f"buffer_load_dword v{8+q}, v69, s[28:31], s41 offen offset:{q*1024} sc1")
    if p.dummy: a("s_waitcnt vmcnt(0)")
    stamp(1)
    for i in range(8):
        if p.droute and i == p.npre:
            a(f"""; the remaining down loads wait for the route: until then the slower workgroups' gate/up loads have the memory system
L_Droute:
s_sleep 1
ds_read_b32 v4, v3 offset:{L_ROUTE}
s_sub_u32 s22, s22, 1
s_cbranch_scc1 L_Droute_done
s_waitcnt lgkmcnt(0)
v_readfirstlane_b32 s45, v4
s_cmp_eq_u32 s45, -1
s_cbranch_scc1 L_Droute
L_Droute_done:""")
        m, half = i >> 1, i & 1
        a(f"buffer_load_dwordx4 v[{32+4*i}:{35+4*i}], v64, s[36:39], s{20 + (m>>1)} offen offset:{(m&1)*2048+half*256} {p.dmod}")
    stamp(2)
    a(f"""s_barrier                            ; 2
ds_read_b32 v72, v3 offset:{L_TAGS}
s_waitcnt lgkmcnt(0)
v_readfirstlane_b32 s27, v72
v_add_u32 v70, v70, v72
v_add_u32 v71, v71, v72
v_and_b32 v70, 15, v70""")
    if p.pre_sleep: a(f"s_sleep {p.pre_sleep}")
    stamp(3)
    a("L_poll2:")
    for q in range(4):
        a(f"buffer_load_dword v{8+q}, v69, s[28:31], s41 offen offset:{q*1024} sc1")
    a("s_sub_u32 s42, s42, 1\ns_cbranch_scc1 L_p2sw\ns_waitcnt vmcnt(0)")
    stamp_idx(p.na_pre+7, 42)
    a(f"""v_xor_b32 v8, v8, v70
v_xor_b32 v9, v9, v70
v_xor_b32 v10, v10, v70
v_xor_b32 v11, v11, v70
v_add_f32 v14, v8, v9
v_or3_b32 v12, v8, v9, v10
v_add_f32 v15, v10, v11
v_bitop3_b32 v12, v12, v11, 15 bitop3:0xa8
v_add_f32 v8, v14, v15
v_cvt_pk_bf16_f32 v8, v8, v8
v_and_b32 v8, 0xffff0000, v8
v_cmp_ne_u32 vcc, 0, v12
v_mul_f32 v9, s43, v8
s_cbranch_vccnz L_poll2
L_poll2_done:""")
    if p.b3: a("s_barrier")
    stamp(4)
    a(f"""v_exp_f32 v9, v9
s_nop 0
v_add_f32 v9, 1.0, v9
v_rcp_f32 v9, v9
s_nop 0
v_mul_f32 v9, v8, v9
v_cvt_pk_bf16_f32 v9, v9, v9
v_and_b32 v9, 0xffff0000, v9
v_mul_f32_dpp v10, v8, v9 row_shl:4 row_mask:0xf bank_mask:0x5
s_nop 0
v_mul_f32_dpp v10, v9, v8 row_shr:4 row_mask:0xf bank_mask:0xa
s_nop 1
v_mov_b32_dpp v8, v10 quad_perm:[0,0,0,0] row_mask:0xf bank_mask:0xf
v_mov_b32_dpp v11, v10 quad_perm:[1,1,1,1] row_mask:0xf bank_mask:0xf
v_mov_b32_dpp v9, v10 quad_perm:[2,2,2,2] row_mask:0xf bank_mask:0xf
v_cvt_pk_bf16_f32 v8, v8, v11
v_mov_b32_dpp v12, v10 quad_perm:[3,3,3,3] row_mask:0xf bank_mask:0xf""")
    perms(24, 8, 0)
    a("v_cvt_pk_bf16_f32 v9, v9, v12        ; m = 2, 3")
    for m in range(4):
        c = 24 + 4*(m & 1); nx = 24 + 4*((m+1) & 1)
        if m < 3: perms(nx, 8 + ((m+1) >> 1), (m+1) & 1)
        for half in range(2):
            acc = f"v[{4+8*half}:{7+8*half}]"
            i = 2*m + half
            a(f"v_mfma_f32_16x16x32_bf16 {acc}, v[{c}:{c+3}], v[{32+4*i}:{35+4*i}], {'0' if m == 0 else acc}")
    a(f"""s_cmp_ge_u32 s34, 2
s_nop 5
ds_write_b128 v66, v[4:7] offset:{L_RED2}
ds_write_b128 v66, v[12:15] offset:{L_RED2+1024}
s_waitcnt lgkmcnt(0)
s_barrier                            ; 4""")
    stamp(5)
    a(f"""s_cbranch_scc1 L_D_copy
ds_read_b128 v[4:7], v67 offset:{L_RED2}
ds_read_b128 v[8:11], v67 offset:{L_RED2+2048}
ds_read_b128 v[12:15], v67 offset:{L_RED2+4096}
ds_read_b128 v[24:27], v67 offset:{L_RED2+6144}
s_waitcnt lgkmcnt(2)
v_pk_add_f32 v[4:5], v[4:5], v[8:9]
v_pk_add_f32 v[6:7], v[6:7], v[10:11]
s_waitcnt lgkmcnt(0)
v_pk_add_f32 v[12:13], v[12:13], v[24:25]
v_pk_add_f32 v[14:15], v[14:15], v[26:27]
v_pk_add_f32 v[4:5], v[4:5], v[12:13]
v_pk_add_f32 v[6:7], v[6:7], v[14:15]
v_bfi_b32 v4, 15, v71, v4
buffer_store_dwordx4 v[4:7], v68, s[28:31], s23 offen sc1""")
    if p.dep5: stamp(6); a("s_waitcnt vmcnt(0)\ns_barrier")
    a("L_D_done:")
    if not p.dep5: stamp(6)
    if st: a("s_waitcnt vmcnt(0)"); stamp(7)
    stamp_out()
    a(f"""s_endpgm
L_D_copy:""")
    if p.dep5: a("s_barrier                            ; 5")
    a(f"""s_cmp_lg_u32 s34, 3
s_cbranch_scc1 L_D_copy2
s_mov_b64 exec, 1
buffer_store_dword v72, v3, s[28:31], s48 offen
s_branch L_D_done
L_D_copy2:""")
    if p.bcopy == 1: a(f"""buffer_load_dwordx4 v[8:11], v65, s[28:31], s44 offen sc1
s_add_u32 s45, s44, {WS_PREB-WS_PREA}
s_waitcnt vmcnt(0)
buffer_store_dwordx4 v[8:11], v65, s[28:31], s45 offen sc1""")
    a("s_branch L_D_done")
    with cold():
        a(f"""; the local mailbox never filled: a peer sits on another die; publish our block write-through, then read that mailbox
L_p2sw:
s_waitcnt vmcnt(0)
s_cmp_ge_u32 s41, {WS_PREB}
s_cbranch_scc1 L_poll2_done
s_mov_b32 s42, {SPIN}
s_add_u32 s40, s27, 5
s_add_u32 s46, s27, 10
s_add_u32 s47, s27, 15
L_p2own:
buffer_load_dwordx4 v[8:11], v65, s[28:31], s44 offen sc1
s_sub_u32 s42, s42, 1
s_cbranch_scc1 L_p2own_done
s_waitcnt vmcnt(0)
v_xor_b32 v12, s27, v8
v_bitop3_b32 v12, v9, s40, v12 bitop3:{XOR_OR:#x}
v_bitop3_b32 v12, v10, s46, v12 bitop3:{XOR_OR:#x}
v_bitop3_b32 v12, v11, s47, v12 bitop3:{XOR_OR:#x}
v_and_b32 v12, 15, v12
v_cmp_ne_u32 vcc, 0, v12
s_cbranch_vccnz L_p2own
L_p2own_done:
s_waitcnt vmcnt(0)
s_add_u32 s45, s44, {WS_PREB-WS_PREA}
buffer_store_dwordx4 v[8:11], v65, s[28:31], s45 offen sc1
s_add_u32 s41, s41, {WS_PREB-WS_PREA}
s_mov_b32 s42, {SPIN}
s_branch L_poll2""")

    sec("RED")
    a(f"""L_RED:
s_sub_u32 s34, s3, 1
s_sub_u32 s44, s2, 224
s_lshl_b32 s45, s44, 1
s_add_u32 s45, s45, s34
s_lshl_b32 s60, s45, 7
v_lshrrev_b32 v1, 3, v0
v_and_b32 v2, 7, v0                  ; sub
v_lshlrev_b32 v3, 13, v1
v_lshl_or_b32 v3, v2, 4, v3
s_add_u32 s36, s18, {WS_YP}
s_addc_u32 s37, s19, 0
s_mov_b32 s38, {56*8192}
s_mov_b32 s39, 0x20000""")
    for i in range(1, 7): a(f"s_add_u32 s{60+i}, s{59+i}, {8*8192}")
    a(f"""; output element of this lane: token = sub>>2, column = 16*piece + 4*(sub&3) + [0,2,1,3][lane>>4]
v_bfe_u32 v4, v0, 4, 1
v_bfe_u32 v5, v0, 5, 1
v_lshl_or_b32 v4, v4, 1, v5
v_and_b32 v40, 3, v0
v_lshl_or_b32 v4, v40, 2, v4
s_lshl_b32 s50, s45, 4
v_add_lshl_u32 v4, v4, s50, 1
v_and_b32 v5, 4, v0
v_cmp_ne_u32 s[56:57], 0, v5
s_and_b32 s48, s2, 7
s_lshl_b32 s48, s48, 7
s_add_u32 s48, s48, {WS_DONE}
v_lshlrev_b32 v41, 2, v0""")
    tags_from_epoch()
    a("s_and_b32 s27, s52, 15\nv_mad_u32_u24 v40, v40, 5, s27\nv_and_b32 v40, 15, v40")
    ws_srd()
    a("s_barrier                            ; B")
    poll_result(40, 52, 44, 45)
    stamp(1)
    a(f"""s_lshr_b32 s44, s40, 5
s_and_b32 s44, s44, 0x3ff800
s_lshl_b32 s45, s40, 11
s_and_b32 s45, s45, 0x3ff800
v_mov_b32 v8, s44
v_mov_b32 v9, s45
s_and_b32 s44, s41, 0xffff0000
s_lshl_b32 s45, s41, 16
v_mov_b32 v10, s44
v_mov_b32 v11, s45
v_cndmask_b32 v8, v8, v9, s[56:57]
v_cndmask_b32 v10, v10, v11, s[56:57]
v_add_u32 v4, v4, v8
global_load_ushort v6, v4, s[4:5]
v_ashrrev_i32 v11, 31, v10
v_not_b32 v11, v11
v_or_b32 v11, 0x80000000, v11
v_xor_b32 v10, v10, v11
v_and_b32 v10, 0xffff0000, v10
v_mul_f32 v10, 0xbfb8aa3b, v10
v_exp_f32 v10, v10
s_mov_b32 s58, {SPIN}
v_add_f32 v10, 1.0, v10
v_rcp_f32 v10, v10
s_mov_b32 s59, {p.hint_max}
v_cvt_pk_bf16_f32 v10, v10, v10
v_and_b32 v7, 0xffff0000, v10
s_mov_b32 exec_lo, 0x0fffffff
s_mov_b32 exec_hi, 0
L_hint:
buffer_load_dword v8, v41, s[28:31], s48 offen sc1
s_sub_u32 s59, s59, 1
s_cbranch_scc1 L_hint_done
s_waitcnt vmcnt(0)
v_cmp_ne_u32 vcc, s52, v8
s_cbranch_vccnz L_hint
L_hint_done:
s_mov_b64 exec, -1
s_waitcnt vmcnt(0)
v_lshlrev_b32 v6, 16, v6""")
    if p.red_delay: a(f"s_sleep {p.red_delay}")
    stamp(2)
    if st: a("s_mov_b32 s72, 0\ns_mov_b32 s73, 0")
    a("L_poll3:")
    for i in range(7):
        a(f"buffer_load_dwordx4 v[{8+4*i}:{11+4*i}], v3, s[36:39], s{60+i} offen sc1")
    a("s_sub_u32 s58, s58, 1\ns_cbranch_scc1 L_poll3_done")
    a(f"""s_waitcnt vmcnt(5)
v_xor_b32 v8, v8, v40
v_xor_b32 v12, v12, v40
v_or_b32 v36, v8, v12
v_pk_add_f32 v[8:9], v[8:9], v[12:13]
v_pk_add_f32 v[10:11], v[10:11], v[14:15]""")
    for i in range(2, 7):
        a(f"""s_waitcnt vmcnt({6-i})
v_xor_b32 v{8+4*i}, v{8+4*i}, v40
v_pk_add_f32 v[10:11], v[10:11], v[{10+4*i}:{11+4*i}]
v_pk_add_f32 v[8:9], v[8:9], v[{8+4*i}:{9+4*i}]""")
        if i == 6: a(f"v_bitop3_b32 v36, v36, v{8+4*i}, 15 bitop3:0xa8")
        else: a(f"v_or_b32 v36, v36, v{8+4*i}")
    if st: a(f"""s_memrealtime s[100:101]
s_mov_b32 s74, s73
s_mov_b32 s73, s72
s_waitcnt lgkmcnt(0)
s_mov_b32 s72, s100
v_writelane_b32 v{SV}, s73, 7
v_writelane_b32 v{SV}, s74, 8""")
    a(f"""v_cmp_ne_u32 vcc, 0, v36
v_permlane32_swap_b32 v8, v9
s_cbranch_vccnz L_poll3
L_poll3_done:""")
    stamp(3)
    a(f"""v_permlane32_swap_b32 v10, v11
v_add_f32 v8, v8, v9
v_add_f32 v10, v10, v11
s_nop 1
v_permlane16_swap_b32 v8, v10
v_add_f32 v8, v8, v10
s_nop 1
v_add_f32_dpp v5, v8, v8 row_ror:8 row_mask:0xf bank_mask:0xf
s_mov_b32 exec_lo, 0x00ff00ff
s_mov_b32 exec_hi, 0x00ff00ff
v_cvt_pk_bf16_f32 v5, v5, v5
v_and_b32 v5, 0xffff0000, v5
v_mul_f32 v5, v5, v7
v_cvt_pk_bf16_f32 v5, v5, v5
v_and_b32 v5, 0xffff0000, v5
v_add_f32 v5, v5, v6
v_cvt_pk_bf16_f32 v5, v5, v5
global_store_short v4, v5, s[14:15] {p.fmod}""")
    stamp(4)
    if st: a("s_waitcnt vmcnt(0)"); stamp(5)
    stamp_out()
    a("s_endpgm")

    sec("AGG")
    a(f"""L_AGG:
s_setprio 3
s_and_b32 s32, s2, 7
v_lshlrev_b32 v1, 7, v0              ; lane*128
s_lshl_b32 s33, s32, 13
s_add_u32 s33, s33, {WS_RES}
s_lshl_b32 s34, s32, 8
s_add_u32 s34, s34, {WS_RESF}
s_bfe_u32 s53, s2, 0x20003
s_mul_i32 s36, s32, {KSTR}
s_add_u32 s36, s36, {WS_KEYS}""")
    ws_srd()
    a(f"""s_cmp_lg_u32 s53, 0
s_cbranch_scc1 L_notouch
buffer_load_dword v3, v1, s[28:31], s33 offen sc1
L_notouch:
v_lshlrev_b32 v93, 5, v0
v_sub_u32 v88, {255*8}, v93
v_subrev_u32 v89, 8, v88
v_subrev_u32 v90, 16, v88
v_subrev_u32 v91, 24, v88
v_lshlrev_b32 v2, 4, v0""")
    tags_from_epoch()
    a(f"""v_mov_b32 v83, s52
s_mov_b32 s52, {SPIN}
v_mov_b32 v82, 0
v_mov_b32 v70, 0
v_mov_b32 v71, 0
v_mov_b32 v92, 0x07060302
v_mov_b32 v94, 0x05040100
s_mov_b32 s55, 0x07ff07ff
s_mov_b64 s[56:57], -1
s_barrier                            ; B""")
    if p.agg_dx and p.relief: a(f"""s_cmp_lg_u32 s32, {(4 - p.xoff) & 7}
s_cbranch_scc1 L_aggd
s_sleep {p.agg_dx}
L_aggd:""")
    if p.agg_d0: a(f"s_sleep {p.agg_d0}")
    if p.agg_d1:
        for k in range(3): a(f"s_cmp_eq_u32 s53, {k}\ns_cbranch_scc1 L_aggo\ns_sleep {p.agg_d1}")
    a("L_aggo:")
    stamp(1)
    def merge():
        for k, ctrl in enumerate(("quad_perm:[1,0,3,2]", "quad_perm:[2,3,0,1]", "row_half_mirror")):
            s1, s2 = ("v70", "v71") if k == 0 else ("v76", "v77")
            a(f"""s_nop {1 if k == 0 else 0}
v_min_u32_dpp v84, {s1}, {s1} {ctrl} row_mask:0xf bank_mask:0xf
v_max_u32_dpp v85, {s2}, {s2} {ctrl} row_mask:0xf bank_mask:0xf
v_max_u32_dpp v76, {s1}, {s1} {ctrl} row_mask:0xf bank_mask:0xf
v_max_u32 v77, v84, v85""")
        a("""s_nop 0
v_min_u32_dpp v84, v76, v76 row_mirror row_mask:0xf bank_mask:0xf
v_max_u32_dpp v85, v77, v77 row_mirror row_mask:0xf bank_mask:0xf
v_max_u32_dpp v78, v76, v76 row_mirror row_mask:0xf bank_mask:0xf
v_max_u32_dpp v76, v76, v76 row_mirror row_mask:0xf bank_mask:0xf
v_max_u32 v79, v84, v85
v_max_u32 v77, v84, v85
v_permlane16_swap_b32 v76, v78
s_nop 0
v_permlane16_swap_b32 v77, v79
v_min_u32 v84, v76, v78
v_max_u32 v86, v76, v78
v_max_u32 v76, v76, v78
v_max3_u32 v87, v77, v79, v84
v_max3_u32 v77, v77, v79, v84
v_permlane32_swap_b32 v76, v86
s_nop 0
v_permlane32_swap_b32 v77, v87
v_min_u32 v84, v76, v86
v_max_u32 v76, v76, v86
v_max3_u32 v77, v77, v87, v84
v_perm_b32 v80, v76, v77, v94
v_bitop3_b32 v80, v80, s55, v80 bitop3:0x0c""")
    def xprefetch():
        a("""v_bfe_u32 v4, v80, 16, 11
v_and_b32 v5, 0x7ff, v80
v_lshl_or_b32 v4, v4, 11, v2
v_lshl_or_b32 v5, v5, 11, v2
global_load_dwordx4 v[8:11], v4, s[4:5]
global_load_dwordx4 v[12:15], v5, s[4:5]
global_load_dwordx4 v[16:19], v4, s[4:5] offset:1024
global_load_dwordx4 v[20:23], v5, s[4:5] offset:1024""")
    a("""L_poll1:
buffer_load_dwordx4 v[60:63], v93, s[28:31], s36 offen sc1
buffer_load_dwordx4 v[64:67], v93, s[28:31], s36 offen offset:16 sc1
s_sub_u32 s52, s52, 1
s_cbranch_scc1 L_poll1_done
s_cmp_lg_u64 s[56:57], -1
s_cbranch_scc1 L_spec
s_waitcnt vmcnt(0)
L_specdone:""")
    with cold():
        a("; while the next look is in flight, warm this die's L2 with the rows that lead so far\nL_spec:\ns_mov_b64 exec, -1")
        merge(); xprefetch()
        a("s_mov_b64 exec, s[56:57]\ns_waitcnt vmcnt(4)\ns_branch L_specdone")
    stamp_idx(SPIN+3, 52)
    for e in range(4):
        a(f"v_xor_b32 v{60+2*e}, s50, v{60+2*e}\nv_xor_b32 v{61+2*e}, s51, v{61+2*e}")
    tt = ((0xF0 ^ 0xAA) | (0xCC ^ 0xAA)) & 0xFF
    for e in range(4):
        a(f"v_bitop3_b32 v{84+e}, v{60+2*e}, v{61+2*e}, v{88+e} bitop3:{tt:#x}")
    a(f"""v_or3_b32 v84, v84, v85, v86
v_or_b32 v84, v84, v87
v_and_b32 v84, {MASK:#x}, v84
v_cmp_ne_u32 vcc, 0, v84
v_min_u32 v84, v60, v62
v_max_u32 v60, v60, v62
v_max3_u32 v61, v61, v63, v84
v_min_u32 v85, v64, v66
v_max_u32 v64, v64, v66
v_max3_u32 v65, v65, v67, v85
s_andn2_b64 exec, exec, vcc
v_min_u32 v84, v60, v64
v_max_u32 v70, v60, v64
v_max3_u32 v71, v61, v65, v84
s_and_b64 s[56:57], s[56:57], vcc
s_mov_b64 exec, s[56:57]
s_cbranch_scc1 L_poll1
L_poll1_done:
s_mov_b64 exec, -1""")
    stamp(2)
    merge()
    a(f"""v_lshlrev_b32 v84, 5, v76
v_lshlrev_b32 v85, 5, v77
v_perm_b32 v81, v84, v85, v92
buffer_store_dwordx4 v[80:83], v1, s[28:31], s33 offen""")
    xprefetch()
    a(f"""v_mov_b32 v3, 0
s_mov_b64 exec, 1
buffer_store_dwordx4 v[80:83], v3, s[28:31], s34 offen sc1""")
    stamp(3)
    a(f"""s_cmp_lg_u32 s2, 224
s_cbranch_scc1 L_agg_done
""")
    if p.relief: a(f"""; every workgroup must have read the epoch word before it changes
s_mov_b32 exec_lo, 0x0fffffff
v_lshlrev_b32 v4, 3, v0
s_mov_b32 s52, {SPIN}
s_mov_b32 s55, {WS_ARR}
L_arr:
buffer_load_dwordx2 v[60:61], v4, s[28:31], s55 offen sc1
s_sub_u32 s52, s52, 1
s_cbranch_scc1 L_arr_done
s_waitcnt vmcnt(0)
v_xor_b32 v60, s50, v60
v_bitop3_b32 v60, v61, s51, v60 bitop3:{XOR_OR:#x}
v_cmp_ne_u32 vcc, 0, v60
s_cbranch_vccnz L_arr
L_arr_done:
s_mov_b64 exec, 1""")
    a(f"""s_add_u32 s46, s46, 1
v_mov_b32 v85, s46
buffer_store_dword v85, v3, s[28:31], 0 offen sc1
L_agg_done:""")
    stamp_out()
    a("s_endpgm")

    order = p.order.split(",")
    assert sorted(order) == sorted(S.keys()), (order, list(S.keys()))
    body = ""
    for k, name in enumerate(order):
        t = S[name].text()
        if k + 1 < len(order):
            nxt = S[order[k+1]].lines[0].strip()
            lines = t.rstrip("\n").split("\n")
            if lines[-1].strip() == "s_branch " + nxt.rstrip(":"): t = "\n".join(lines[:-1]) + "\n"
        body += f"; ---------------------------------------------------------------- {name}\n" + t
    body += "L_end:\n    s_endpgm\n"
    meta = dict(nwg=256, nwave=9, nst=12) if st else (dict(light=1) if p.light else None)
    txt = kernel_file(body, 256, 576, L_END, 104 if st else 96, meta=meta, extra_comment=DOC)
    if p.align > 8: txt = txt.replace(".text\n", f".text\n.p2align {p.align}\n", 1)
    return txt

if __name__ == "__main__":
    p = P()
    out = sys.argv[1]
    for kv in sys.argv[2:]:
        k, v = kv.split("=")
        assert hasattr(P, k), k
        setattr(p, k, type(getattr(P, k))(eval(v)) if not isinstance(getattr(P, k), str) else v.replace("+", " "))
    open(out, "w").write(gen(p))
```

```python
import sys
from asmlib import *

def prologue(a, nwg):
    a(f"""s_memrealtime s[60:61]
s_load_dwordx8 s[4:11], s[0:1], 0
s_load_dwordx8 s[12:19], s[0:1], 32
s_cmp_ge_u32 s2, {nwg}
s_cbranch_scc1 L_end
v_lshrrev_b32 v1, 6, v0
v_and_b32 v2, 63, v0
s_nop 0
v_readfirstlane_b32 s3, v1
s_waitcnt lgkmcnt(0)""")
    srd(a, 20, 4, X_BYTES); srd(a, 24, 8, W_BYTES); srd(a, 28, 10, W_BYTES); srd(a, 32, 12, W_BYTES); srd(a, 36, 14, X_BYTES); srd(a, 40, 18, WS_BYTES)

def epilogue(a):
    a("""s_getreg_b32 s70, hwreg(HW_REG_XCC_ID)
s_getreg_b32 s71, hwreg(HW_REG_HW_ID)
s_waitcnt lgkmcnt(0)
s_lshl_b32 s44, s2, 4
s_add_u32 s44, s44, s3
s_lshl_b32 s44, s44, 6""")
    a(f"""s_add_u32 s44, s44, {STAMP_OFF}
v_mov_b32 v4, s60
v_mov_b32 v5, s62
v_mov_b32 v6, s64
v_mov_b32 v7, s66
v_mov_b32 v8, s68
v_mov_b32 v9, s70
v_mov_b32 v10, s71
v_mov_b32 v11, s71
v_mov_b32 v3, 0
s_mov_b64 exec, 1
buffer_store_dwordx4 v[4:7], v3, s[40:43], s44 offen
buffer_store_dwordx4 v[8:11], v3, s[40:43], s44 offen offset:16
L_end:
s_endpgm""")

def gu_pass(a, nwave, w, vb, mod, rot, lds=False, nshare=None):
    seg = w*2; lpr = seg//16; rpi = 64//lpr; tot = 2*1024//rpi; per = tot//nwave
    nshare = nshare or 128//seg
    a(f"""s_and_b32 s48, s3, 1
s_lshr_b32 s49, s3, 1
s_cmp_eq_u32 s48, 0
s_cselect_b32 s52, s24, s28
s_cselect_b32 s53, s25, s29
s_mov_b32 s54, {W_BYTES}
s_mov_b32 s55, 0x20000
s_mul_i32 s49, s49, {rpi}
s_mul_i32 s51, s46, {seg}
v_and_b32 v3, {lpr-1}, v2
v_lshlrev_b32 v3, 4, v3
v_lshrrev_b32 v1, {lpr.bit_length()-1}, v2
s_mov_b32 s50, 7168
v_mad_u32_u24 v1, v1, s50, v3""")
    if rot:
        a(f"""s_and_b32 s48, s46, {nshare-1}
s_mul_i32 s48, s48, {1024//nshare}
s_add_u32 s49, s49, s48""")
    for i in range(per):
        a(f"""s_and_b32 s56, s49, 1023
s_mul_i32 s56, s56, 7168
s_add_u32 s56, s56, s51""")
        if lds:
            a(f"""s_mul_i32 s57, s3, {per*1024}
s_add_u32 m0, s57, {i*1024}
s_nop 0
buffer_load_dwordx4 v1, s[52:55], s56 offen {mod} lds""")
        else:
            a(f"buffer_load_dwordx4 v[{vb+4*i}:{vb+4*i+3}], v1, s[52:55], s56 offen {mod}")
        a(f"s_add_u32 s49, s49, {rpi*(nwave//2)}")
    return per

def lin_pass(a, nwave, srdn, wgbytes, vb, mod, lds=False, ldsoff=0):
    per = wgbytes//1024//nwave
    a(f"""s_mul_i32 s49, s46, {wgbytes}
s_mul_i32 s48, s3, 1024
s_add_u32 s49, s49, s48
v_lshlrev_b32 v1, 4, v2""")
    for i in range(per):
        if lds:
            a(f"""s_mul_i32 s57, s3, {per*1024}
s_add_u32 m0, s57, {ldsoff+i*1024}
s_nop 0
buffer_load_dwordx4 v1, s[{srdn}:{srdn+3}], s49 offen {mod} lds""")
        else:
            a(f"buffer_load_dwordx4 v[{vb+4*i}:{vb+4*i+3}], v1, s[{srdn}:{srdn+3}], s49 offen {mod}")
        a(f"s_add_u32 s49, s49, {1024*nwave}")
    return per

def xmap(a, n):
    a(f"""s_and_b32 s47, s46, 7
s_lshr_b32 s46, s46, 3
s_mul_i32 s47, s47, {n//8}
s_add_u32 s46, s46, s47""")

def gen_gu(name, n, w, threads, mod="", rot=False, twice=False, lds=False, ldsb=83200, vg=128):
    a = Asm(); nwave = threads//64
    prologue(a, n)
    a("s_mov_b32 s46, s2"); xmap(a, n)
    gu_pass(a, nwave, w, 12, mod, rot, lds)
    a("s_memrealtime s[62:63]\ns_waitcnt vmcnt(0)\ns_memrealtime s[64:65]")
    if twice:
        a("s_barrier")
        gu_pass(a, nwave, w, 12, mod, rot, lds)
    a("s_memrealtime s[66:67]\ns_waitcnt vmcnt(0)\ns_memrealtime s[68:69]")
    epilogue(a)
    meta = dict(nwg=n, nwave=nwave, nst=5, names=["start", "iss1", "land1", "iss2", "land2"])
    open(name, "w").write(kernel_file(a.text(), n, threads, ldsb, vg, meta=meta))

def gen_lin(name, threads, mod="", lds=False, ldsb=83200, vg=128, passes=((20,16384),(24,28672),(28,28672),(32,28672)), n=256):
    a = Asm(); nwave = threads//64
    prologue(a, n)
    a("s_mov_b32 s46, s2")
    vb = 12; off = 0
    for i, (s, b) in enumerate(passes):
        per = lin_pass(a, nwave, s, b, vb, mod, lds, off)
        vb += 4*per; off += b
    assert vb <= vg or lds
    a("s_memrealtime s[62:63]\ns_waitcnt vmcnt(0)\ns_memrealtime s[64:65]\ns_memrealtime s[66:67]\ns_memrealtime s[68:69]")
    epilogue(a)
    meta = dict(nwg=n, nwave=nwave, nst=3, names=["start", "iss1", "land1"])
    open(name, "w").write(kernel_file(a.text(), n, threads, ldsb, vg, meta=meta))

def gen_empty(name, n, threads, ldsb, vg):
    a = Asm(); nwave = threads//64
    prologue(a, n)
    a("s_memrealtime s[62:63]\ns_memrealtime s[64:65]\ns_memrealtime s[66:67]\ns_memrealtime s[68:69]")
    epilogue(a)
    meta = dict(nwg=n, nwave=nwave, nst=2, names=["start", "s1"])
    open(name, "w").write(kernel_file(a.text(), n, threads, ldsb, vg, meta=meta))

if __name__ == "__main__":
    gen_gu("n_gu16_2.s", 224, 16, 512, twice=True)
    gen_gu("n_gu16_rot.s", 224, 16, 512, rot=True, twice=True)
    gen_gu("n_gu16_nt.s", 224, 16, 512, mod="nt", twice=True)
    gen_gu("n_gu16_sc1.s", 224, 16, 512, mod="sc1", twice=True)
    gen_gu("n_gu16_lds.s", 224, 16, 512, lds=True, twice=True)
    gen_gu("n_gu16_rotlds.s", 224, 16, 512, lds=True, rot=True, twice=True)
    gen_gu("n_gu32_rot.s", 112, 32, 512, rot=True, twice=True)
    gen_gu("n_gu64.s", 56, 64, 512, twice=True, vg=256)
    gen_lin("n_lin256.s", 256, vg=256)
    gen_lin("n_lin256nt.s", 256, mod="nt", vg=256)
    gen_lin("n_lin256lds.s", 256, lds=True, ldsb=102400+1280)
    gen_lin("n_lin256ldsnt.s", 256, lds=True, mod="nt", ldsb=102400+1280)
    gen_empty("n_e64.s", 256, 64, 0, 32)
    gen_empty("n_e256.s", 256, 256, 0, 32)
    gen_empty("n_e256b.s", 256, 256, 83200, 256)
    gen_empty("n_e512.s", 256, 512, 0, 32)
    gen_empty("n_e1024.s", 256, 1024, 83200, 128)
```

```python
from asmlib import *
from mb2 import prologue

def epi(a, nst):
    a(f"""s_waitcnt lgkmcnt(0)
s_lshl_b32 s44, s2, 4
s_add_u32 s44, s44, s3
s_lshl_b32 s44, s44, 6
s_add_u32 s44, s44, {STAMP_OFF}""")
    for i in range(12):
        a(f"v_mov_b32 v{4+i}, s{60+2*min(i,nst-1)}")
    a(f"""v_mov_b32 v3, 0
s_mov_b64 exec, 1
buffer_store_dwordx4 v[4:7], v3, s[40:43], s44 offen
buffer_store_dwordx4 v[8:11], v3, s[40:43], s44 offen offset:16
buffer_store_dwordx4 v[12:15], v3, s[40:43], s44 offen offset:32
L_end:
s_endpgm""")

def gen(name, stream_mask, kind="vec", throttle=0, mod="nt", prio=True, delay=0):
    a = Asm(); n = 256
    prologue(a, n)
    for i in range(1, 12): a(f"s_mov_b32 s{60+2*i}, 0")
    a("s_cmp_ge_u32 s3, 4\ns_cbranch_scc1 L_stream\ns_cmp_lg_u32 s3, 0\ns_cbranch_scc1 L_fin")
    if prio: a("s_setprio 3")
    a(f"""s_mul_i32 s46, s2, 65536
v_lshlrev_b32 v1, 4, v2""")
    if delay: a(f"s_sleep {delay}")
    for i in range(10):
        a(f"s_memrealtime s[{62+2*i}:{63+2*i}]")
        if i == 9: break
        if kind == "vec":
            a(f"buffer_load_dwordx4 v[4:7], v1, s[40:43], s46 offen sc1\ns_add_u32 s46, s46, 1024\ns_waitcnt vmcnt(0)")
        elif kind == "sca":
            a(f"s_waitcnt lgkmcnt(0)\ns_load_dwordx16 s[84:99], s[18:19], s46 glc\ns_add_u32 s46, s46, 1024\ns_waitcnt lgkmcnt(0)")
        elif kind == "sat":
            a(f"s_waitcnt lgkmcnt(0)\ns_mov_b32 s84, 0\ns_atomic_add s84, s[18:19], s46 glc\ns_add_u32 s46, s46, 1024\ns_waitcnt lgkmcnt(0)")
    a("s_branch L_fin")
    a("L_stream:")
    if stream_mask == "none": a("s_branch L_fin")
    elif stream_mask == "half":
        a("s_and_b32 s46, s2, 8\ns_cmp_eq_u32 s46, 0\ns_cbranch_scc1 L_fin")
    a("s_sub_u32 s45, s3, 4\nv_lshlrev_b32 v1, 4, v2")
    reps = 2 if stream_mask == "half" else 1
    cnt = 0
    for rep in range(reps):
        for s in (24, 28, 32):
            if reps == 2: a(f"s_xor_b32 s47, s2, {8*rep}")
            else: a("s_mov_b32 s47, s2")
            a(f"s_mul_i32 s49, s47, 28672\ns_mul_i32 s48, s45, 1024\ns_add_u32 s49, s49, s48")
            for i in range(7):
                r = 12 + 4*(cnt % 21)
                a(f"buffer_load_dwordx4 v[{r}:{r+3}], v1, s[{s}:{s+3}], s49 offen {mod}\ns_add_u32 s49, s49, 4096")
                cnt += 1
                if throttle: a(f"s_waitcnt vmcnt({throttle-1})")
    a("s_memrealtime s[62:63]\ns_waitcnt vmcnt(0)\ns_memrealtime s[64:65]")
    a("L_fin:")
    epi(a, 11)
    meta = dict(nwg=n, nwave=8, nst=11)
    open(name, "w").write(kernel_file(a.text(), n, 512, 83200, 128, meta=meta))

if __name__ == "__main__":
    names = []
    for kind in ("vec", "sca", "sat"):
        for sm in ("none", "half", "all"):
            nm = f"p_{kind}_{sm}.s"; gen(nm, sm, kind); names.append(nm)
    for th in (3, 4, 5, 6):
        nm = f"p_vec_all_th{th}.s"; gen(nm, "all", "vec", throttle=th); names.append(nm)
    nm = f"p_vec_all_noprio.s"; gen(nm, "all", "vec", prio=False); names.append(nm)
    print(" ".join(names))
```

```python
from asmlib import *
from mb2 import prologue
from mb4 import epi
def gen(name, nw, nper, batch, cls, half=0, n=8):
    a = Asm()
    prologue(a, n)
    a(f"""s_mul_i32 s46, s3, {nper*7168}
s_lshl_b32 s47, s2, 10
s_add_u32 s46, s46, s47
s_add_u32 s46, s46, {cls*128}
s_barrier
s_memrealtime s[62:63]
s_waitcnt lgkmcnt(0)""")
    for i in range(nper):
        a(f"s_load_dword s84, s[8:9], s46 offset:{(i%128)*7168}")
        if (i+1) % batch == 0: a("s_waitcnt lgkmcnt(0)")
    a("s_waitcnt lgkmcnt(0)\ns_memrealtime s[64:65]\ns_barrier")
    a(f"""v_mul_u32_u24 v1, 7168, v2
v_add_u32 v1, {64*half}, v1
s_memrealtime s[66:67]
s_waitcnt lgkmcnt(0)""")
    for i in range((nper+63)//64):
        a(f"buffer_load_dword v{10+i}, v1, s[24:27], s46 offen\ns_add_u32 s46, s46, {64*7168}")
    a("s_waitcnt vmcnt(0)\ns_memrealtime s[68:69]")
    epi(a, 5)
    open(name, "w").write(kernel_file(a.text(), n, 64*nw, 0, 32, meta=dict(nwg=n, nwave=nw, nst=5, rel=1, names=["start","t0","sdone","v0","vdone"])))
names = []
for nw, nper, batch in ((1, 64, 8), (1, 64, 15), (1, 64, 64), (4, 64, 15), (4, 64, 64), (8, 64, 15)):
    for cls in (2, 3):
        nm = f"k_{nw}_{batch}_c{cls}.s"; gen(nm, nw, nper, batch, cls); names.append(nm)
gen("k_4_15_c3_h1.s", 4, 64, 15, 3, half=1); names.append("k_4_15_c3_h1.s")
print(" ".join(names))
```

```python
import sys
from asmlib import *

WS_E    = 0
WS_RES  = 4096
WS_RESF = 73728
WS_DONE = 77824
WS_ARR  = 81920
WS_KEYS = 131072
KSTR    = 2304
WS_PREA = 393216
WS_PREB = 655360
WS_YP   = 1048576
MASK    = 0xF80007F8
SPIN    = 1 << 16
L_TAGS, L_ROUTE, L_CNT, L_RED1, L_RED2, L_END = 0, 16, 20, 64, 4608, 12800
C1, D1, X12, C2, D2 = 0x9E3779B8, 0x3C6EF372, 0xA5A5A5A8, 0x85EBCA6B, 0x27D4EB2F
XOR_OR = ((0xF0 ^ 0xCC) | 0xAA) & 0xFF

class P:
    nb1 = 5; th2 = 6; cpos = 10; relief = True; pfn = 10; pfat = 1
    xmod = ""; wmod = "nt"; dmod = "nt"; omod = "sc1"; fmod = ""
    rsleep = 12; b3 = False; w1 = True; adapt = 0; dep5 = False; depk = True; bcopy = 1; bsleep = 0; ladder = "0,4,8,11,13,14,15"; droute = 0; dummy = True; npre = 0; xoff = 4; agg_dx = 0
    stamps = False; light = False
    na_pre = 64; na_res = 63
    agg_d0 = 0; agg_d1 = 0
    pre_sleep = 2; hint_max = 200; red_delay = 12
    align = 12; nanfix = True
    order = "entry,R1,Lstart,stubs,PF,R3,R2,L2,D,RED,AGG,cold,nan"

DOC = """;
;   workgroups 224..255 (helpers): R, a second R for the rows of the workgroups with fg%8==3, an aggregator wave
"""

def gen(p):
    S = {}
    cur = [None]
    def sec(name):
        S.setdefault(name, Asm()); cur[0] = S[name]
    def a(t): cur[0](t)
    class cold:
        def __init__(s, name="cold"): s.name = name
        def __enter__(s): s.back = cur[0]; sec(s.name)
        def __exit__(s, *e): cur[0] = s.back
    nl = [0]
    def label(b):
        nl[0] += 1; return f"{b}_{nl[0]}"
    st = p.stamps
    SV = 103
    def stamp(i):
        if st: a(f"s_memrealtime s[100:101]\ns_waitcnt lgkmcnt(0)\nv_writelane_b32 v{SV}, s100, {i}")
    def stamp_idx(expr_sub, reg):
        if st: a(f"""s_memrealtime s[100:101]
s_sub_u32 s60, {expr_sub}, s{reg}
s_min_u32 s60, s60, 11
s_mov_b32 m0, s60
s_waitcnt lgkmcnt(0)
v_writelane_b32 v{SV}, s100, m0""")
    def stamp_out():
        if not (st or p.light): return
        a(f"""s_waitcnt vmcnt(0) lgkmcnt(0)
s_lshl_b32 s20, s2, 4
s_add_u32 s20, s20, s3
s_lshl_b32 s20, s20, 6
s_add_u32 s20, s20, {STAMP_OFF}""")
        if p.light:
            a(f"""s_memrealtime s[98:99]
s_mov_b64 exec, 1
v_mov_b32 v3, 0
v_mov_b32 v4, s100
s_waitcnt lgkmcnt(0)
v_mov_b32 v5, s98
buffer_store_dwordx2 v[4:5], v3, s[28:31], s20 offen""")
        else:
            a(f"""s_mov_b64 exec, 0xffff
v_mbcnt_lo_u32_b32 v3, -1, 0
v_lshlrev_b32 v3, 2, v3
buffer_store_dword v{SV}, v3, s[28:31], s20 offen""")
    def ws_srd():
        a(f"s_mov_b32 s28, s18\ns_mov_b32 s29, s19\ns_mov_b32 s30, {WS_BYTES}\ns_mov_b32 s31, 0x20000")
    def tags_from_epoch():
        a(f"""s_mul_i32 s50, s46, {C1:#x}
s_add_u32 s50, s50, {D1:#x}
s_xor_b32 s51, s50, {X12:#x}
s_mul_i32 s52, s46, {C2:#x}
s_add_u32 s52, s52, {D2:#x}""")
    def read_tags(v):
        a(f"""v_mov_b32 v{v}, 0
ds_read_b32 v{v}, v{v} offset:{L_TAGS}
s_waitcnt lgkmcnt(0)
v_readfirstlane_b32 s26, v{v}
s_and_b32 s27, s26, 15""")
    def poll_result(dst, tag, off, cnt):
        l1, l2, l2b, l3 = label("L_rp"), label("L_rf"), label("L_rg"), label("L_rd")
        a(f"""s_and_b32 s{off}, s2, 7
s_lshl_b32 s{off}, s{off}, 13
s_add_u32 s{off}, s{off}, {WS_RES}
s_mov_b32 s{cnt}, {p.na_res}
{l1}:
s_load_dwordx4 s[{dst}:{dst+3}], s[18:19], s{off}
s_add_u32 s{off}, s{off}, 128
s_sub_u32 s{cnt}, s{cnt}, 1
s_cbranch_scc1 {l2}
s_waitcnt lgkmcnt(0)
s_cmp_lg_u32 s{dst+3}, s{tag}
s_cbranch_scc1 {l1}
{l3}:""")
        with cold():
            a(f"""; the aggregator sits on another die: read the write-through copy past the caches
{l2}:
s_and_b32 s{off}, s2, 7
s_lshl_b32 s{off}, s{off}, 8
s_add_u32 s{off}, s{off}, {WS_RESF}
s_mov_b32 s{cnt}, {SPIN}
{l2b}:
s_waitcnt lgkmcnt(0)
s_load_dwordx4 s[{dst}:{dst+3}], s[18:19], s{off} glc
s_waitcnt lgkmcnt(0)
s_cmp_eq_u32 s{dst+3}, s{tag}
s_cbranch_scc1 {l3}
s_sleep 8
s_sub_u32 s{cnt}, s{cnt}, 1
s_cbranch_scc0 {l2b}
s_and_b32 s{dst}, s{dst}, 0x7ff07ff
s_branch {l3}""")
    def selectors():
        a("""; v16..v23: byte selectors that place one bf16 at element (lane&7) of an 8-element A fragment
v_and_b32 v3, 1, v0
v_cmp_eq_u32 vcc, 1, v3
v_mov_b32 v4, 0x0c0c0100
v_mov_b32 v5, 0x01000c0c
v_mov_b32 v6, 0x0c0c0302
v_mov_b32 v7, 0x03020c0c
v_cndmask_b32 v4, v4, v5, vcc
v_cndmask_b32 v5, v6, v7, vcc
v_bfe_u32 v3, v0, 1, 2
v_mov_b32 v6, 0x0c0c0c0c""")
        for d in range(4):
            a(f"""v_cmp_eq_u32 vcc, {d}, v3
s_nop 1
v_cndmask_b32 v{16+d}, v6, v4, vcc
v_cndmask_b32 v{20+d}, v6, v5, vcc""")
    def perms(dst, src, par):
        for d in range(4): a(f"v_perm_b32 v{dst+d}, v{src}, v{src}, v{16+4*par+d}")
    def fg_of_wg():
        a(f"""s_add_u32 s20, s2, {p.xoff}
s_and_b32 s20, s20, 7
s_mul_i32 s20, s20, 7
s_lshr_b32 s21, s2, 5
s_add_u32 s32, s20, s21
s_bfe_u32 s33, s2, 0x20003           ; s33 = j""")
    def lds_init():
        a(f"""v_mov_b32 v88, 0
v_mov_b32 v84, -1
v_mov_b32 v85, 0
s_mov_b64 exec, 1
ds_write_b64 v88, v[84:85] offset:{L_ROUTE}""")

    sec("entry")
    if st: a(f"v_mov_b32 v{SV}, 0")
    if p.light: a("s_memrealtime s[100:101]")
    stamp(0)
    a(f"""s_load_dwordx16 s[4:19], s[0:1], 0
v_readfirstlane_b32 s3, v0
s_cmp_ge_u32 s2, 256
s_cbranch_scc1 L_end
v_and_b32 v0, 63, v0
s_lshr_b32 s3, s3, 6                 ; wave
s_cmp_ge_u32 s3, 5
s_cbranch_scc1 L_stubD
s_cmp_lg_u32 s3, 0
s_cbranch_scc1 L_Lstart""")

    sec("R1")
    a("s_mov_b32 s35, s2")
    if p.relief:
        fg_of_wg()
        a("""; lines whose address bits 9:7 are 3 stream more slowly through one CU: a helper routes these workgroups' rows
s_cmp_ge_u32 s2, 224
s_cselect_b32 s21, 0, s32
s_and_b32 s21, s21, 7
s_cmp_eq_u32 s21, 3
s_cbranch_scc1 L_R3""")
    a("""L_R1:
s_setprio 3
s_lshl_b32 s43, s35, 14
s_add_u32 s44, s43, 4096
v_lshlrev_b32 v1, 4, v0
v_add_u32 v90, s44, v1
v_add_u32 v91, 8192, v90""")
    lds_init()
    a("s_mov_b64 exec, -1\ns_waitcnt lgkmcnt(0)")
    stamp(8)
    for i in range(16):
        a(f"global_load_dwordx4 v[{10+4*i}:{13+4*i}], v{90+i//8}, s[4:5] offset:{(i%8)*1024-4096} {p.xmod}")
        if i == 1:
            a("global_load_dwordx4 v[2:5], v1, s[6:7]\nglobal_load_dwordx4 v[6:9], v1, s[6:7] offset:1024")
    stamp(9)
    a(f"s_load_dword s46, s[18:19], {WS_E}\ns_barrier\ns_branch L_R2")

    sec("stubs")
    a(f"""L_stubD:
s_cmp_ge_u32 s2, 224
s_cbranch_scc1 L_stubA
""" + ("s_cmp_eq_u32 s3, 5\ns_cbranch_scc1 L_PF\n" if p.pfn < 16 else "") + f"""s_cmp_lg_u32 s3, 8
s_cbranch_scc1 L_nocpf
; pull the kernel's code into this die's L2
s_getpc_b64 s[22:23]
L_pc:
v_lshlrev_b32 v1, 7, v0
v_min_u32 v1, L_hot_end-L_pc, v1
global_load_dword v80, v1, s[22:23]
L_nocpf:
s_barrier                            ; A
s_branch L_D
L_stubA:
s_cmp_lg_u32 s3, 5
s_cbranch_scc1 L_end
L_stubH:
s_waitcnt lgkmcnt(0)
s_load_dword s46, s[18:19], {WS_E}
s_waitcnt lgkmcnt(0)
s_barrier                            ; A (the epoch word is read before this workgroup publishes)
s_cmp_eq_u32 s3, 5
s_cbranch_scc1 L_AGG
s_branch L_RED
L_stubR:
s_cmp_ge_u32 s3, 3
s_cbranch_scc0 L_stubH
""")
    if not p.relief: a("s_endpgm")
    else: a(f"""s_cmp_lg_u32 s3, 3
s_cbranch_scc1 L_end
s_add_u32 s20, s2, {p.xoff + 3}
s_and_b32 s20, s20, 7
s_cmp_eq_u32 s20, 7
s_cbranch_scc1 L_end
s_lshl_b32 s20, s20, 5
s_and_b32 s35, s2, 31
s_add_u32 s35, s35, s20
s_branch L_R1""")

    sec("PF")
    if p.pfn < 16:
        nm = 16 - p.pfn
        a("L_PF:")
        fg_of_wg()
        a(f"""; a CU keeps only half as many lines with address bits 9:7 == 3 in flight: the other workgroups of the die pull
s_sub_u32 s22, 3, s20
s_and_b32 s22, s22, 7
s_cmp_gt_u32 s21, s22
s_subb_u32 s23, s21, 0
s_cmp_eq_u32 s21, s22
s_cselect_b32 s23, 7, s23
s_cmp_eq_u32 s22, 7
s_cselect_b32 s23, 7, s23
s_cmp_ge_u32 s23, {nm}
s_cbranch_scc1 L_nocpf
s_add_u32 s23, s23, {p.pfn}          ; m
s_lshr_b32 s24, s23, 2
s_lshl_b32 s24, s24, 4
s_and_b32 s23, s23, 3
s_add_u32 s23, s23, s24
s_lshl_b32 s24, s33, 8
s_add_u32 s23, s23, s24
s_mul_i32 s23, s23, 7168
s_add_u32 s22, s22, s20
s_lshl_b32 s22, s22, 7
s_add_u32 s23, s23, s22
v_bfe_u32 v1, v0, 3, 2
v_mul_u32_u24 v1, {64*7168}, v1
v_bfe_u32 v2, v0, 1, 2
v_mul_u32_u24 v2, {4*7168}, v2
v_add3_u32 v1, v1, v2, s23
v_and_b32 v2, 1, v0
v_cmp_eq_u32 vcc, 0, v2
s_waitcnt lgkmcnt(0)
v_mov_b32 v4, s10
v_mov_b32 v5, s8
v_mov_b32 v6, s11
v_mov_b32 v7, s9
v_cndmask_b32 v4, v4, v5, vcc
v_cndmask_b32 v5, v6, v7, vcc
v_add_co_u32 v4, vcc, v4, v1
s_nop 1
v_addc_co_u32 v5, vcc, 0, v5, vcc
s_mov_b32 exec_hi, 0
s_barrier                            ; A""")
        a("global_load_dword v80, v[4:5], off\ns_mov_b64 exec, -1")
        a("s_branch L_D")
    else: a("s_nop 0")

    sec("R3")
    if not p.relief: a('s_nop 0')
    def r3():
        a(f"""L_R3:
s_lshr_b32 s21, s32, 3
s_lshl_b32 s21, s21, 2
s_add_u32 s21, s21, s33
s_lshl_b32 s48, s21, 3
s_add_u32 s48, s48, {WS_ARR}""")
        lds_init()
        a(f"""s_waitcnt lgkmcnt(0)
s_load_dword s46, s[18:19], {WS_E}
s_barrier                            ; A""")
        ws_srd()
        a("s_waitcnt lgkmcnt(0)")
        tags_from_epoch()
        a(f"""v_mov_b32 v84, s52
ds_write_b32 v88, v84 offset:{L_TAGS}
v_mov_b32 v74, s50
v_mov_b32 v75, s51
buffer_store_dwordx2 v[74:75], v88, s[28:31], s48 offen sc1""")
        poll_result(40, 52, 44, 45)
        a(f"""v_mov_b32 v84, s40
ds_write_b32 v88, v84 offset:{L_ROUTE}
s_barrier                            ; 2
s_barrier                            ; 4""")
        if p.b3: a("s_barrier")
        stamp_out()
        a("s_endpgm")
    if p.relief: r3()

    sec("R2")
    a("L_R2:")
    ws_srd()
    a(f"""s_mov_b32 s24, s14
s_mov_b32 s25, s15
s_mov_b32 s26, {X_BYTES}
s_mov_b32 s27, 0x20000
; row held by a lane after the reduction: lane bit5 -> row bit0, bit4 -> bit1, bit3 -> bit2
v_lshrrev_b32 v82, 5, v0
v_bfe_u32 v83, v0, 4, 1
v_lshl_or_b32 v82, v83, 1, v82
v_bfe_u32 v83, v0, 3, 1
v_lshl_or_b32 v82, v83, 2, v82
s_lshl_b32 s47, s35, 3
s_sub_u32 s47, 2047, s47
v_sub_u32 v82, s47, v82              ; 2047 - token index
v_mul_u32_u24 v92, {KSTR}, v0        ; replica stride
""" + (f"v_lshlrev_b32 v89, 2, v0\ns_and_b32 s49, s2, 7\ns_lshl_b32 s49, s49, 7\ns_add_u32 s49, s49, {WS_DONE}\n" if p.adapt else "") + f"""s_lshl_b32 s48, s35, 3
s_add_u32 s48, s48, {WS_KEYS}""")
    for r in range(8): a(f"v_mov_b32 v{74+r}, 0")
    if p.nanfix: a("v_mov_b32 v93, 0x207")
    a("s_waitcnt lgkmcnt(0)")
    stamp(1)
    tags_from_epoch()
    a(f"""v_mov_b32 v84, s52
s_mov_b64 exec, 1
ds_write_b32 v88, v84 offset:{L_TAGS}
s_mov_b64 exec, -1""")
    def dots(r, lo, hi):
        for q in range(lo, hi): a(f"v_dot2c_f32_bf16 v{74+r}, v{10+8*r+q}, v{2+q}")
    for r in range(6):
        a(f"s_waitcnt vmcnt({14-2*r})"); dots(r, 0, 8)
    a("s_waitcnt vmcnt(2)"); dots(6, 0, 8)
    a("""v_permlane32_swap_b32 v74, v75
v_permlane32_swap_b32 v76, v77
v_permlane32_swap_b32 v78, v79
v_add_f32 v74, v74, v75
v_add_f32 v76, v76, v77
v_add_f32 v78, v78, v79
s_waitcnt vmcnt(1)""")
    dots(7, 0, 4)
    a("v_permlane16_swap_b32 v74, v76\ns_waitcnt vmcnt(0)")
    dots(7, 4, 8)
    stamp(2)
    a("""v_add_f32 v74, v74, v76
s_nop 1
v_permlane32_swap_b32 v80, v81
v_add_f32_dpp v75, v74, v74 row_ror:8 row_mask:0xf bank_mask:0xf
v_add_f32 v80, v80, v81
s_nop 1
v_permlane16_swap_b32 v78, v80
v_add_f32 v78, v78, v80
s_nop 1
v_add_f32_dpp v75, v78, v78 row_ror:8 row_mask:0xf bank_mask:0xc
s_nop 1
v_add_f32_dpp v75, v75, v75 row_half_mirror row_mask:0xf bank_mask:0xf
s_nop 1
v_add_f32_dpp v75, v75, v75 quad_perm:[1,0,3,2] row_mask:0xf bank_mask:0xf
s_nop 1
v_add_f32_dpp v79, v75, v75 quad_perm:[2,3,0,1] row_mask:0xf bank_mask:0xf
v_cmp_u_f32 vcc, v79, v79
v_cvt_pk_bf16_f32 v76, v79, v79
v_ashrrev_i32 v77, 31, v76
v_or_b32 v77, 0x80000000, v77
v_xor_b32 v76, v76, v77
v_lshrrev_b32 v76, 16, v76
v_cndmask_b32 v76, v76, 0, vcc
v_lshl_or_b32 v76, v76, 11, v82
s_nop 1
v_max_u32_dpp v74, v76, v76 row_ror:8 row_mask:0xf bank_mask:0xf
v_max_u32_dpp v78, v76, v76 row_ror:8 row_mask:0xf bank_mask:0xf
v_min_u32_dpp v75, v76, v76 row_ror:8 row_mask:0xf bank_mask:0xf
v_min_u32_dpp v77, v76, v76 row_ror:8 row_mask:0xf bank_mask:0xf
s_nop 0
v_permlane16_swap_b32 v74, v78
v_permlane16_swap_b32 v75, v77
v_min_u32 v80, v74, v78
v_max_u32 v76, v74, v78
v_max_u32 v74, v74, v78
v_max3_u32 v81, v75, v77, v80
v_max3_u32 v75, v75, v77, v80
v_permlane32_swap_b32 v74, v76
s_nop 0
v_permlane32_swap_b32 v75, v81
v_min_u32 v78, v74, v76
v_max_u32 v74, v74, v76
v_max3_u32 v75, v75, v81, v78
v_xor_b32 v74, s50, v74
v_xor_b32 v75, s51, v75
s_mov_b64 exec, 0xff
buffer_store_dwordx2 v[74:75], v92, s[28:31], s48 offen sc1
s_cmp_lt_u32 s2, 224
s_cbranch_scc1 L_Rnob""")
    if p.depk: a("s_waitcnt vmcnt(0)")
    a("""s_barrier
L_Rnob:""")
    stamp(3)
    if p.nanfix:
        a("""s_mov_b64 exec, -1
v_cmp_class_f32 vcc, v79, v93
s_cbranch_vccnz L_nanfix
L_nanfix_done:""")
        with cold("nan"):
            a("""L_hot_end:
L_nanfix:
s_mov_b32 s54, 0x07060302""")
            for r in range(10, 74, 2):
                a(f"""v_and_b32 v84, 0xffff0000, v{r}
v_lshlrev_b32 v85, 16, v{r}
v_and_b32 v86, 0xffff0000, v{r+1}
v_lshlrev_b32 v87, 16, v{r+1}
v_fma_f32 v84, v84, 0, v84
v_fma_f32 v85, v85, 0, v85
v_fma_f32 v86, v86, 0, v86
v_fma_f32 v87, v87, 0, v87
v_perm_b32 v{r}, v84, v85, s54
v_perm_b32 v{r+1}, v86, v87, s54""")
            a("s_branch L_nanfix_done")
    else:
        with cold("nan"): a("L_hot_end:")
    a("s_mov_b64 exec, 1")
    poll_result(40, 52, 44, 45)
    a(f"""v_mov_b32 v84, s40
ds_write_b32 v88, v84 offset:{L_ROUTE}
s_mov_b64 exec, -1
s_setprio 0
s_and_b32 s41, s40, 0x7ff
s_bfe_u32 s40, s40, 0xb0010
s_lshl_b32 s42, s35, 3
s_lshl_b32 s43, s35, 14
; row offsets; routed rows are written by the reducers (an out-of-range offset drops the store)""")
    for r in range(8):
        a(f"""s_cmp_eq_u32 s42, s40
s_cselect_b32 s{60+r}, 0x40000000, s43
s_cmp_eq_u32 s42, s41
s_cselect_b32 s{60+r}, 0x40000000, s{60+r}""")
        if r < 7: a("s_add_u32 s43, s43, 2048\ns_add_u32 s42, s42, 1")
    stamp(4)
    a("s_cmp_ge_u32 s2, 224\ns_cbranch_scc1 L_rstore\ns_barrier                            ; 2\ns_barrier                            ; 4" + ("\ns_barrier                            ; 5" if p.dep5 else ""))
    def bulk(mod):
        for r in range(8):
            a(f"""buffer_store_dwordx4 v[{10+8*r}:{13+8*r}], v1, s[24:27], s{60+r} offen {mod}
buffer_store_dwordx4 v[{14+8*r}:{17+8*r}], v1, s[24:27], s{60+r} offen offset:1024 {mod}""")
    if p.adapt:
        a(f"""; late workgroups leave their rows in L2 (written back at the end) instead of competing with the last hand-off
s_mov_b32 exec_lo, 0x0fffffff
s_mov_b32 exec_hi, 0
buffer_load_dword v84, v89, s[28:31], s49 offen sc1
s_waitcnt vmcnt(0)
v_cmp_eq_u32 vcc, s52, v84
s_mov_b64 exec, -1
s_bcnt1_i32_b64 s54, vcc
s_cmp_ge_u32 s54, {p.adapt}
s_cbranch_scc1 L_rlate""")
        with cold(): a("L_rlate:"); bulk(""); a("s_endpgm")
    if p.rsleep: a(f"s_sleep {p.rsleep}")
    a("L_rstore:")
    stamp(5)
    bulk(p.omod)
    stamp(6)
    if p.b3: a("s_cmp_ge_u32 s2, 224\ns_cbranch_scc1 L_rfin\ns_barrier\nL_rfin:")
    if st: a("s_waitcnt vmcnt(0)"); stamp(7)
    stamp_out()
    a("s_endpgm")

    sec("Lstart")
    a("""L_Lstart:
s_cmp_ge_u32 s2, 224
s_cbranch_scc1 L_stubR""")
    fg_of_wg()
    a(f"""v_lshrrev_b32 v1, 4, v0              ; g
v_and_b32 v2, 15, v0
s_sub_u32 s34, s3, 1                 ; w
s_lshl_b32 s20, s33, 8
s_lshl_b32 s21, s34, 6
s_add_u32 s20, s20, s21
s_mul_i32 s21, s20, 7168
s_lshl_b32 s22, s32, 7
s_add_u32 s21, s21, s22
v_cmp_gt_u32 vcc, 8, v2
v_and_b32 v3, 7, v2
v_lshlrev_b32 v3, 4, v3
v_mul_u32_u24 v4, {4*7168}, v1
v_add3_u32 v3, v3, v4, s21
s_mov_b32 s22, 7168
s_mov_b32 s23, 0
s_mov_b32 s24, {7168*13}
s_mov_b32 s25, 0
s_waitcnt lgkmcnt(0)
v_mov_b32 v4, s10
v_mov_b32 v5, s8
v_mov_b32 v6, s11
v_mov_b32 v7, s9
v_cndmask_b32 v4, v4, v5, vcc
v_cndmask_b32 v5, v6, v7, vcc
v_add_co_u32 v4, vcc, v4, v3
v_mov_b32 v6, 0
v_mov_b32 v7, 1
v_addc_co_u32 v5, vcc, 0, v5, vcc""")
    stamp(8)
    a("s_barrier                            ; A")
    def gload(m):
        a(f"global_load_dwordx4 v[{32+4*m}:{35+4*m}], v[4:5], off {p.wmod}")
        if m < 15: a(f"v_lshl_add_u64 v[4:5], v[4:5], 0, s[{'24:25' if (m+1) % 4 == 0 else '22:23'}]")
    for m in range(p.nb1): gload(m)
    stamp(1); a("s_branch L_L2"); sec("L2"); a("L_L2:")
    if p.w1 and p.nb1 < p.th2: a(f"s_waitcnt vmcnt({p.nb1-1})")
    for m in range(p.nb1, 17):
        if m == p.cpos: a(f"s_mov_b64 exec, 1\nds_add_u32 v6, v7 offset:{L_CNT}\ns_mov_b64 exec, -1")
        if m == 16: break
        if p.th2 and m >= p.th2: a(f"s_waitcnt vmcnt({p.th2-1})")
        gload(m)
    stamp(2)
    selectors()
    ws_srd()
    a(f"""s_lshl_b32 s20, s20, 1
v_bfe_u32 v3, v2, 1, 2
v_lshlrev_b32 v4, 8, v3
v_and_b32 v3, 1, v2
v_lshl_or_b32 v4, v3, 7, v4
v_and_b32 v3, 1, v1
v_lshl_or_b32 v4, v3, 6, v4
v_lshrrev_b32 v3, 1, v1
v_lshl_or_b32 v4, v3, 5, v4
v_lshrrev_b32 v3, 3, v2
v_lshl_or_b32 v1, v3, 4, v4
v_lshlrev_b32 v0, 4, v0              ; lane*16
s_lshl_b32 s21, s34, 10
v_add_u32 v2, s21, v0
s_lshl_b32 s12, s32, 2
s_add_u32 s12, s12, s33
s_lshl_b32 s12, s12, 10
s_add_u32 s12, s12, {WS_PREA}
s_add_u32 s4, s4, s20
s_addc_u32 s5, s5, 0
v_mov_b32 v3, 0
s_mov_b32 s21, {SPIN*16}
L_Lroute:
ds_read_b32 v4, v3 offset:{L_ROUTE}
s_sub_u32 s21, s21, 1
s_cbranch_scc1 L_Lroute_done
s_waitcnt lgkmcnt(0)
v_readfirstlane_b32 s8, v4
s_cmp_eq_u32 s8, -1
s_cbranch_scc1 L_Lroute
L_Lroute_done:""")
    stamp(3)
    a("""s_lshr_b32 s9, s8, 5
s_and_b32 s9, s9, 0x3ff800
s_load_dwordx16 s[36:51], s[4:5], s9
s_load_dwordx16 s[52:67], s[4:5], s9 offset:64
s_lshl_b32 s8, s8, 11
s_and_b32 s8, s8, 0x3ff800
s_load_dwordx16 s[68:83], s[4:5], s8
s_load_dwordx16 s[84:99], s[4:5], s8 offset:64
ds_read_b32 v4, v3 offset:""" + str(L_TAGS) + """
s_mov_b64 exec, 0xff
s_waitcnt lgkmcnt(0)
v_readfirstlane_b32 s26, v4""")
    stamp(4)
    for g in range(4):
        for t in range(2):
            for q in range(4):
                sr = 36 + 32*t + (16*q + 4*g)//2
                a(f"v_mov_b64 v[{8+2*q}:{9+2*q}], s[{sr}:{sr+1}]")
            a("s_lshl_b64 exec, exec, 8" if (g, t) != (3, 1) else "s_mov_b64 exec, -1")
    perms(24, 8, 0)
    lad = sorted(int(x) for x in p.ladder.split(","))
    for m in range(16):
        c = 24 + 4*(m & 1); nx = 24 + 4*((m+1) & 1)
        if m < 15: perms(nx, 8 + ((m+1) >> 1), (m+1) & 1)
        elif 15 not in lad: a("s_nop 0")
        if m in lad:
            nxt = [x for x in lad if x > m]
            a(f"s_waitcnt vmcnt({16 - (nxt[0] if nxt else 16)})")
            if not nxt: stamp(5)
        a(f"v_mfma_f32_16x16x32_bf16 v[4:7], v[{c}:{c+3}], v[{32+4*m}:{35+4*m}], {'0' if m == 0 else 'v[4:7]'}")
    a(f"""s_cmp_eq_u32 s34, 0
s_cbranch_scc1 L_L0
s_nop 5
ds_write_b128 v2, v[4:7] offset:{L_RED1}
s_waitcnt lgkmcnt(0)
s_barrier                            ; 2""")
    stamp(6)
    stamp_out()
    a(f"""s_endpgm
L_L0:
s_and_b32 s27, s26, 15
s_add_u32 s14, s27, 5
s_add_u32 s15, s27, 10
s_add_u32 s16, s27, 15
s_barrier                            ; 2""")
    stamp(6)
    a(f"""ds_read_b128 v[8:11], v0 offset:{L_RED1+1024}
ds_read_b128 v[12:15], v0 offset:{L_RED1+2048}
ds_read_b128 v[24:27], v0 offset:{L_RED1+3072}
s_waitcnt lgkmcnt(2)
v_pk_add_f32 v[4:5], v[4:5], v[8:9]
v_pk_add_f32 v[6:7], v[6:7], v[10:11]
s_waitcnt lgkmcnt(0)
v_pk_add_f32 v[12:13], v[12:13], v[24:25]
v_pk_add_f32 v[14:15], v[14:15], v[26:27]
v_pk_add_f32 v[4:5], v[4:5], v[12:13]
v_pk_add_f32 v[6:7], v[6:7], v[14:15]
v_bfi_b32 v4, 15, s27, v4
v_bfi_b32 v5, 15, s14, v5
v_bfi_b32 v6, 15, s15, v6
v_bfi_b32 v7, 15, s16, v7
buffer_store_dwordx4 v[4:7], v1, s[28:31], s12 offen""")
    stamp(7)
    if p.b3: a("s_barrier")
    a("s_barrier                            ; 4")
    if p.bcopy == 2:
        a(f"s_add_u32 s12, s12, {WS_PREB-WS_PREA}")
        if p.bsleep: a(f"s_sleep {p.bsleep}")
        a("buffer_store_dwordx4 v[4:7], v1, s[28:31], s12 offen sc1")
    stamp_out()
    a("s_endpgm")

    sec("D")
    a("L_D:")
    fg_of_wg()
    a(f"""v_lshrrev_b32 v1, 4, v0              ; g
v_and_b32 v2, 15, v0                 ; jj
s_sub_u32 s34, s3, 5
v_lshlrev_b32 v64, 13, v1
v_lshl_or_b32 v64, v2, 4, v64
s_lshl_b32 s20, s32, 6
s_lshl_b32 s21, s34, 4
s_add_u32 s20, s20, s21
s_lshl_b32 s20, s20, 11
s_lshl_b32 s21, s33, 9
s_add_u32 s20, s20, s21
s_add_u32 s21, s20, 4096
s_waitcnt lgkmcnt(0)
s_mov_b32 s36, s12
s_mov_b32 s37, s13
s_mov_b32 s38, {W_BYTES}
s_mov_b32 s39, 0x20000""")
    ws_srd()
    selectors()
    a(f"""v_lshlrev_b32 v65, 4, v0             ; lane*16
s_lshl_b32 s22, s34, 11
v_add_u32 v66, s22, v65
s_lshl_b32 s22, s34, 10
v_add_u32 v67, s22, v65
s_lshl_b32 s23, s32, 2
s_add_u32 s23, s23, s33
s_lshl_b32 s23, s23, 11
s_add_u32 s23, s23, s22
s_add_u32 s23, s23, {WS_YP}
v_lshrrev_b32 v3, 1, v2
v_lshlrev_b32 v68, 7, v3
v_lshrrev_b32 v3, 1, v1
v_lshl_or_b32 v68, v3, 6, v68
v_and_b32 v3, 1, v2
v_and_b32 v4, 1, v1
v_lshl_or_b32 v3, v3, 1, v4
v_lshl_or_b32 v68, v3, 4, v68
v_mul_u32_u24 v71, 5, v3
s_and_b32 s48, s2, 7
s_lshl_b32 s48, s48, 7
s_lshr_b32 s49, s2, 3
s_lshl_b32 s49, s49, 2
s_add_u32 s48, s48, s49
s_add_u32 s48, s48, {WS_DONE}
s_lshl_b32 s22, s34, 8
v_lshl_add_u32 v69, v0, 2, s22
v_and_b32 v4, 3, v0
v_mul_u32_u24 v70, 5, v4
s_lshl_b32 s41, s32, 12
s_add_u32 s41, s41, {WS_PREA}
s_mov_b32 s42, {p.na_pre}
s_mov_b32 s43, 0xbfb8aa3b            ; -log2(e)
s_lshl_b32 s44, s33, 10
s_add_u32 s44, s44, s41
v_mov_b32 v3, 0
s_mov_b32 s22, {SPIN*4}
L_Dcnt:
s_sleep 1
ds_read_b32 v4, v3 offset:{L_CNT}
s_sub_u32 s22, s22, 1
s_cbranch_scc1 L_Dcnt_done
s_waitcnt lgkmcnt(0)
v_readfirstlane_b32 s45, v4
s_cmp_lt_u32 s45, 4
s_cbranch_scc1 L_Dcnt
L_Dcnt_done:
; (they also bring the mailbox lines into L2)""")
    for q in range(4): a(f"buffer_load_dword v{8+q}, v69, s[28:31], s41 offen offset:{q*1024} sc1")
    if p.dummy: a("s_waitcnt vmcnt(0)")
    stamp(1)
    for i in range(8):
        if p.droute and i == p.npre:
            a(f"""; the remaining down loads wait for the route: until then the slower workgroups' gate/up loads have the memory system
L_Droute:
s_sleep 1
ds_read_b32 v4, v3 offset:{L_ROUTE}
s_sub_u32 s22, s22, 1
s_cbranch_scc1 L_Droute_done
s_waitcnt lgkmcnt(0)
v_readfirstlane_b32 s45, v4
s_cmp_eq_u32 s45, -1
s_cbranch_scc1 L_Droute
L_Droute_done:""")
        m, half = i >> 1, i & 1
        a(f"buffer_load_dwordx4 v[{32+4*i}:{35+4*i}], v64, s[36:39], s{20 + (m>>1)} offen offset:{(m&1)*2048+half*256} {p.dmod}")
    stamp(2)
    a(f"""s_barrier                            ; 2
ds_read_b32 v72, v3 offset:{L_TAGS}
s_waitcnt lgkmcnt(0)
v_readfirstlane_b32 s27, v72
v_add_u32 v70, v70, v72
v_add_u32 v71, v71, v72
v_and_b32 v70, 15, v70""")
    if p.pre_sleep: a(f"s_sleep {p.pre_sleep}")
    stamp(3)
    a("L_poll2:")
    for q in range(4):
        a(f"buffer_load_dword v{8+q}, v69, s[28:31], s41 offen offset:{q*1024} sc1")
    a("s_sub_u32 s42, s42, 1\ns_cbranch_scc1 L_p2sw\ns_waitcnt vmcnt(0)")
    stamp_idx(p.na_pre+7, 42)
    a(f"""v_xor_b32 v8, v8, v70
v_xor_b32 v9, v9, v70
v_xor_b32 v10, v10, v70
v_xor_b32 v11, v11, v70
v_add_f32 v14, v8, v9
v_or3_b32 v12, v8, v9, v10
v_add_f32 v15, v10, v11
v_bitop3_b32 v12, v12, v11, 15 bitop3:0xa8
v_add_f32 v8, v14, v15
v_cvt_pk_bf16_f32 v8, v8, v8
v_and_b32 v8, 0xffff0000, v8
v_cmp_ne_u32 vcc, 0, v12
v_mul_f32 v9, s43, v8
s_cbranch_vccnz L_poll2
L_poll2_done:""")
    if p.b3: a("s_barrier")
    stamp(4)
    a(f"""v_exp_f32 v9, v9
s_nop 0
v_add_f32 v9, 1.0, v9
v_rcp_f32 v9, v9
s_nop 0
v_mul_f32 v9, v8, v9
v_cvt_pk_bf16_f32 v9, v9, v9
v_and_b32 v9, 0xffff0000, v9
v_mul_f32_dpp v10, v8, v9 row_shl:4 row_mask:0xf bank_mask:0x5
s_nop 0
v_mul_f32_dpp v10, v9, v8 row_shr:4 row_mask:0xf bank_mask:0xa
s_nop 1
v_mov_b32_dpp v8, v10 quad_perm:[0,0,0,0] row_mask:0xf bank_mask:0xf
v_mov_b32_dpp v11, v10 quad_perm:[1,1,1,1] row_mask:0xf bank_mask:0xf
v_mov_b32_dpp v9, v10 quad_perm:[2,2,2,2] row_mask:0xf bank_mask:0xf
v_cvt_pk_bf16_f32 v8, v8, v11
v_mov_b32_dpp v12, v10 quad_perm:[3,3,3,3] row_mask:0xf bank_mask:0xf""")
    perms(24, 8, 0)
    a("v_cvt_pk_bf16_f32 v9, v9, v12        ; m = 2, 3")
    for m in range(4):
        c = 24 + 4*(m & 1); nx = 24 + 4*((m+1) & 1)
        if m < 3: perms(nx, 8 + ((m+1) >> 1), (m+1) & 1)
        for half in range(2):
            acc = f"v[{4+8*half}:{7+8*half}]"
            i = 2*m + half
            a(f"v_mfma_f32_16x16x32_bf16 {acc}, v[{c}:{c+3}], v[{32+4*i}:{35+4*i}], {'0' if m == 0 else acc}")
    a(f"""s_cmp_ge_u32 s34, 2
s_nop 5
ds_write_b128 v66, v[4:7] offset:{L_RED2}
ds_write_b128 v66, v[12:15] offset:{L_RED2+1024}
s_waitcnt lgkmcnt(0)
s_barrier                            ; 4""")
    stamp(5)
    a(f"""s_cbranch_scc1 L_D_copy
ds_read_b128 v[4:7], v67 offset:{L_RED2}
ds_read_b128 v[8:11], v67 offset:{L_RED2+2048}
ds_read_b128 v[12:15], v67 offset:{L_RED2+4096}
ds_read_b128 v[24:27], v67 offset:{L_RED2+6144}
s_waitcnt lgkmcnt(2)
v_pk_add_f32 v[4:5], v[4:5], v[8:9]
v_pk_add_f32 v[6:7], v[6:7], v[10:11]
s_waitcnt lgkmcnt(0)
v_pk_add_f32 v[12:13], v[12:13], v[24:25]
v_pk_add_f32 v[14:15], v[14:15], v[26:27]
v_pk_add_f32 v[4:5], v[4:5], v[12:13]
v_pk_add_f32 v[6:7], v[6:7], v[14:15]
v_bfi_b32 v4, 15, v71, v4
buffer_store_dwordx4 v[4:7], v68, s[28:31], s23 offen sc1""")
    if p.dep5: stamp(6); a("s_waitcnt vmcnt(0)\ns_barrier")
    a("L_D_done:")
    if not p.dep5: stamp(6)
    if st: a("s_waitcnt vmcnt(0)"); stamp(7)
    stamp_out()
    a(f"""s_endpgm
L_D_copy:""")
    if p.dep5: a("s_barrier                            ; 5")
    a(f"""s_cmp_lg_u32 s34, 3
s_cbranch_scc1 L_D_copy2
s_mov_b64 exec, 1
buffer_store_dword v72, v3, s[28:31], s48 offen
s_branch L_D_done
L_D_copy2:""")
    if p.bcopy == 1: a(f"""buffer_load_dwordx4 v[8:11], v65, s[28:31], s44 offen sc1
s_add_u32 s45, s44, {WS_PREB-WS_PREA}
s_waitcnt vmcnt(0)
buffer_store_dwordx4 v[8:11], v65, s[28:31], s45 offen sc1""")
    a("s_branch L_D_done")
    with cold():
        a(f"""; the local mailbox never filled: a peer sits on another die; publish our block write-through, then read that mailbox
L_p2sw:
s_waitcnt vmcnt(0)
s_cmp_ge_u32 s41, {WS_PREB}
s_cbranch_scc1 L_poll2_done
s_mov_b32 s42, {SPIN}
s_add_u32 s40, s27, 5
s_add_u32 s46, s27, 10
s_add_u32 s47, s27, 15
L_p2own:
buffer_load_dwordx4 v[8:11], v65, s[28:31], s44 offen sc1
s_sub_u32 s42, s42, 1
s_cbranch_scc1 L_p2own_done
s_waitcnt vmcnt(0)
v_xor_b32 v12, s27, v8
v_bitop3_b32 v12, v9, s40, v12 bitop3:{XOR_OR:#x}
v_bitop3_b32 v12, v10, s46, v12 bitop3:{XOR_OR:#x}
v_bitop3_b32 v12, v11, s47, v12 bitop3:{XOR_OR:#x}
v_and_b32 v12, 15, v12
v_cmp_ne_u32 vcc, 0, v12
s_cbranch_vccnz L_p2own
L_p2own_done:
s_waitcnt vmcnt(0)
s_add_u32 s45, s44, {WS_PREB-WS_PREA}
buffer_store_dwordx4 v[8:11], v65, s[28:31], s45 offen sc1
s_add_u32 s41, s41, {WS_PREB-WS_PREA}
s_mov_b32 s42, {SPIN}
s_branch L_poll2""")

    sec("RED")
    a(f"""L_RED:
s_sub_u32 s34, s3, 1
s_sub_u32 s44, s2, 224
s_lshl_b32 s45, s44, 1
s_add_u32 s45, s45, s34
s_lshl_b32 s60, s45, 7
v_lshrrev_b32 v1, 3, v0
v_and_b32 v2, 7, v0                  ; sub
v_lshlrev_b32 v3, 13, v1
v_lshl_or_b32 v3, v2, 4, v3
s_add_u32 s36, s18, {WS_YP}
s_addc_u32 s37, s19, 0
s_mov_b32 s38, {56*8192}
s_mov_b32 s39, 0x20000""")
    for i in range(1, 7): a(f"s_add_u32 s{60+i}, s{59+i}, {8*8192}")
    a(f"""; output element of this lane: token = sub>>2, column = 16*piece + 4*(sub&3) + [0,2,1,3][lane>>4]
v_bfe_u32 v4, v0, 4, 1
v_bfe_u32 v5, v0, 5, 1
v_lshl_or_b32 v4, v4, 1, v5
v_and_b32 v40, 3, v0
v_lshl_or_b32 v4, v40, 2, v4
s_lshl_b32 s50, s45, 4
v_add_lshl_u32 v4, v4, s50, 1
v_and_b32 v5, 4, v0
v_cmp_ne_u32 s[56:57], 0, v5
s_and_b32 s48, s2, 7
s_lshl_b32 s48, s48, 7
s_add_u32 s48, s48, {WS_DONE}
v_lshlrev_b32 v41, 2, v0""")
    tags_from_epoch()
    a("s_and_b32 s27, s52, 15\nv_mad_u32_u24 v40, v40, 5, s27\nv_and_b32 v40, 15, v40")
    ws_srd()
    a("s_barrier                            ; B")
    poll_result(40, 52, 44, 45)
    stamp(1)
    a(f"""s_lshr_b32 s44, s40, 5
s_and_b32 s44, s44, 0x3ff800
s_lshl_b32 s45, s40, 11
s_and_b32 s45, s45, 0x3ff800
v_mov_b32 v8, s44
v_mov_b32 v9, s45
s_and_b32 s44, s41, 0xffff0000
s_lshl_b32 s45, s41, 16
v_mov_b32 v10, s44
v_mov_b32 v11, s45
v_cndmask_b32 v8, v8, v9, s[56:57]
v_cndmask_b32 v10, v10, v11, s[56:57]
v_add_u32 v4, v4, v8
global_load_ushort v6, v4, s[4:5]
v_ashrrev_i32 v11, 31, v10
v_not_b32 v11, v11
v_or_b32 v11, 0x80000000, v11
v_xor_b32 v10, v10, v11
v_and_b32 v10, 0xffff0000, v10
v_mul_f32 v10, 0xbfb8aa3b, v10
v_exp_f32 v10, v10
s_mov_b32 s58, {SPIN}
v_add_f32 v10, 1.0, v10
v_rcp_f32 v10, v10
s_mov_b32 s59, {p.hint_max}
v_cvt_pk_bf16_f32 v10, v10, v10
v_and_b32 v7, 0xffff0000, v10
s_mov_b32 exec_lo, 0x0fffffff
s_mov_b32 exec_hi, 0
L_hint:
buffer_load_dword v8, v41, s[28:31], s48 offen sc1
s_sub_u32 s59, s59, 1
s_cbranch_scc1 L_hint_done
s_waitcnt vmcnt(0)
v_cmp_ne_u32 vcc, s52, v8
s_cbranch_vccnz L_hint
L_hint_done:
s_mov_b64 exec, -1
s_waitcnt vmcnt(0)
v_lshlrev_b32 v6, 16, v6""")
    if p.red_delay: a(f"s_sleep {p.red_delay}")
    stamp(2)
    if st: a("s_mov_b32 s72, 0\ns_mov_b32 s73, 0")
    a("L_poll3:")
    for i in range(7):
        a(f"buffer_load_dwordx4 v[{8+4*i}:{11+4*i}], v3, s[36:39], s{60+i} offen sc1")
    a("s_sub_u32 s58, s58, 1\ns_cbranch_scc1 L_poll3_done")
    a(f"""s_waitcnt vmcnt(5)
v_xor_b32 v8, v8, v40
v_xor_b32 v12, v12, v40
v_or_b32 v36, v8, v12
v_pk_add_f32 v[8:9], v[8:9], v[12:13]
v_pk_add_f32 v[10:11], v[10:11], v[14:15]""")
    for i in range(2, 7):
        a(f"""s_waitcnt vmcnt({6-i})
v_xor_b32 v{8+4*i}, v{8+4*i}, v40
v_pk_add_f32 v[10:11], v[10:11], v[{10+4*i}:{11+4*i}]
v_pk_add_f32 v[8:9], v[8:9], v[{8+4*i}:{9+4*i}]""")
        if i == 6: a(f"v_bitop3_b32 v36, v36, v{8+4*i}, 15 bitop3:0xa8")
        else: a(f"v_or_b32 v36, v36, v{8+4*i}")
    if st: a(f"""s_memrealtime s[100:101]
s_mov_b32 s74, s73
s_mov_b32 s73, s72
s_waitcnt lgkmcnt(0)
s_mov_b32 s72, s100
v_writelane_b32 v{SV}, s73, 7
v_writelane_b32 v{SV}, s74, 8""")
    a(f"""v_cmp_ne_u32 vcc, 0, v36
v_permlane32_swap_b32 v8, v9
s_cbranch_vccnz L_poll3
L_poll3_done:""")
    stamp(3)
    a(f"""v_permlane32_swap_b32 v10, v11
v_add_f32 v8, v8, v9
v_add_f32 v10, v10, v11
s_nop 1
v_permlane16_swap_b32 v8, v10
v_add_f32 v8, v8, v10
s_nop 1
v_add_f32_dpp v5, v8, v8 row_ror:8 row_mask:0xf bank_mask:0xf
s_mov_b32 exec_lo, 0x00ff00ff
s_mov_b32 exec_hi, 0x00ff00ff
v_cvt_pk_bf16_f32 v5, v5, v5
v_and_b32 v5, 0xffff0000, v5
v_mul_f32 v5, v5, v7
v_cvt_pk_bf16_f32 v5, v5, v5
v_and_b32 v5, 0xffff0000, v5
v_add_f32 v5, v5, v6
v_cvt_pk_bf16_f32 v5, v5, v5
global_store_short v4, v5, s[14:15] {p.fmod}""")
    stamp(4)
    if st: a("s_waitcnt vmcnt(0)"); stamp(5)
    stamp_out()
    a("s_endpgm")

    sec("AGG")
    a(f"""L_AGG:
s_setprio 3
s_and_b32 s32, s2, 7
v_lshlrev_b32 v1, 7, v0              ; lane*128
s_lshl_b32 s33, s32, 13
s_add_u32 s33, s33, {WS_RES}
s_lshl_b32 s34, s32, 8
s_add_u32 s34, s34, {WS_RESF}
s_bfe_u32 s53, s2, 0x20003
s_mul_i32 s36, s32, {KSTR}
s_add_u32 s36, s36, {WS_KEYS}""")
    ws_srd()
    a(f"""s_cmp_lg_u32 s53, 0
s_cbranch_scc1 L_notouch
buffer_load_dword v3, v1, s[28:31], s33 offen sc1
L_notouch:
v_lshlrev_b32 v93, 5, v0
v_sub_u32 v88, {255*8}, v93
v_subrev_u32 v89, 8, v88
v_subrev_u32 v90, 16, v88
v_subrev_u32 v91, 24, v88
v_lshlrev_b32 v2, 4, v0""")
    tags_from_epoch()
    a(f"""v_mov_b32 v83, s52
s_mov_b32 s52, {SPIN}
v_mov_b32 v82, 0
v_mov_b32 v70, 0
v_mov_b32 v71, 0
v_mov_b32 v92, 0x07060302
v_mov_b32 v94, 0x05040100
s_mov_b32 s55, 0x07ff07ff
s_mov_b64 s[56:57], -1
s_barrier                            ; B""")
    if p.agg_dx and p.relief: a(f"""s_cmp_lg_u32 s32, {(4 - p.xoff) & 7}
s_cbranch_scc1 L_aggd
s_sleep {p.agg_dx}
L_aggd:""")
    if p.agg_d0: a(f"s_sleep {p.agg_d0}")
    if p.agg_d1:
        for k in range(3): a(f"s_cmp_eq_u32 s53, {k}\ns_cbranch_scc1 L_aggo\ns_sleep {p.agg_d1}")
    if p.agg_d1: a("L_aggo:")
    stamp(1)
    def merge():
        for k, ctrl in enumerate(("quad_perm:[1,0,3,2]", "quad_perm:[2,3,0,1]", "row_half_mirror")):
            s1, s2 = ("v70", "v71") if k == 0 else ("v76", "v77")
            a(f"""s_nop {1 if k == 0 else 0}
v_min_u32_dpp v84, {s1}, {s1} {ctrl} row_mask:0xf bank_mask:0xf
v_max_u32_dpp v85, {s2}, {s2} {ctrl} row_mask:0xf bank_mask:0xf
v_max_u32_dpp v76, {s1}, {s1} {ctrl} row_mask:0xf bank_mask:0xf
v_max_u32 v77, v84, v85""")
        a("""s_nop 0
v_min_u32_dpp v84, v76, v76 row_mirror row_mask:0xf bank_mask:0xf
v_max_u32_dpp v85, v77, v77 row_mirror row_mask:0xf bank_mask:0xf
v_max_u32_dpp v78, v76, v76 row_mirror row_mask:0xf bank_mask:0xf
v_max_u32_dpp v76, v76, v76 row_mirror row_mask:0xf bank_mask:0xf
v_max_u32 v79, v84, v85
v_max_u32 v77, v84, v85
v_permlane16_swap_b32 v76, v78
s_nop 0
v_permlane16_swap_b32 v77, v79
v_min_u32 v84, v76, v78
v_max_u32 v86, v76, v78
v_max_u32 v76, v76, v78
v_max3_u32 v87, v77, v79, v84
v_max3_u32 v77, v77, v79, v84
v_permlane32_swap_b32 v76, v86
s_nop 0
v_permlane32_swap_b32 v77, v87
v_min_u32 v84, v76, v86
v_max_u32 v76, v76, v86
v_max3_u32 v77, v77, v87, v84
v_perm_b32 v80, v76, v77, v94
v_bitop3_b32 v80, v80, s55, v80 bitop3:0x0c""")
    def xprefetch():
        a("""v_bfe_u32 v4, v80, 16, 11
v_and_b32 v5, 0x7ff, v80
v_lshl_or_b32 v4, v4, 11, v2
v_lshl_or_b32 v5, v5, 11, v2
global_load_dwordx4 v[8:11], v4, s[4:5]
global_load_dwordx4 v[12:15], v5, s[4:5]
global_load_dwordx4 v[16:19], v4, s[4:5] offset:1024
global_load_dwordx4 v[20:23], v5, s[4:5] offset:1024""")
    a("""L_poll1:
buffer_load_dwordx4 v[60:63], v93, s[28:31], s36 offen sc1
buffer_load_dwordx4 v[64:67], v93, s[28:31], s36 offen offset:16 sc1
s_sub_u32 s52, s52, 1
s_cbranch_scc1 L_poll1_done
s_cmp_lg_u64 s[56:57], -1
s_cbranch_scc1 L_spec
s_waitcnt vmcnt(0)
L_specdone:""")
    with cold():
        a("; while the next look is in flight, warm this die's L2 with the rows that lead so far\nL_spec:\ns_mov_b64 exec, -1")
        merge(); xprefetch()
        a("s_mov_b64 exec, s[56:57]\ns_waitcnt vmcnt(4)\ns_branch L_specdone")
    stamp_idx(SPIN+3, 52)
    for e in range(4):
        a(f"v_xor_b32 v{60+2*e}, s50, v{60+2*e}\nv_xor_b32 v{61+2*e}, s51, v{61+2*e}")
    tt = ((0xF0 ^ 0xAA) | (0xCC ^ 0xAA)) & 0xFF
    for e in range(4):
        a(f"v_bitop3_b32 v{84+e}, v{60+2*e}, v{61+2*e}, v{88+e} bitop3:{tt:#x}")
    a(f"""v_or3_b32 v84, v84, v85, v86
v_or_b32 v84, v84, v87
v_and_b32 v84, {MASK:#x}, v84
v_cmp_ne_u32 vcc, 0, v84
v_min_u32 v84, v60, v62
v_max_u32 v60, v60, v62
v_max3_u32 v61, v61, v63, v84
v_min_u32 v85, v64, v66
v_max_u32 v64, v64, v66
v_max3_u32 v65, v65, v67, v85
s_andn2_b64 exec, exec, vcc
v_min_u32 v84, v60, v64
v_max_u32 v70, v60, v64
v_max3_u32 v71, v61, v65, v84
s_and_b64 s[56:57], s[56:57], vcc
s_mov_b64 exec, s[56:57]
s_cbranch_scc1 L_poll1
L_poll1_done:
s_mov_b64 exec, -1""")
    stamp(2)
    merge()
    a(f"""v_lshlrev_b32 v84, 5, v76
v_lshlrev_b32 v85, 5, v77
v_perm_b32 v81, v84, v85, v92
buffer_store_dwordx4 v[80:83], v1, s[28:31], s33 offen""")
    xprefetch()
    a(f"""v_mov_b32 v3, 0
s_mov_b64 exec, 1
buffer_store_dwordx4 v[80:83], v3, s[28:31], s34 offen sc1""")
    stamp(3)
    a(f"""s_cmp_lg_u32 s2, 224
s_cbranch_scc1 L_agg_done
""")
    if p.relief: a(f"""; every workgroup must have read the epoch word before it changes
s_mov_b32 exec_lo, 0x0fffffff
v_lshlrev_b32 v4, 3, v0
s_mov_b32 s52, {SPIN}
s_mov_b32 s55, {WS_ARR}
L_arr:
buffer_load_dwordx2 v[60:61], v4, s[28:31], s55 offen sc1
s_sub_u32 s52, s52, 1
s_cbranch_scc1 L_arr_done
s_waitcnt vmcnt(0)
v_xor_b32 v60, s50, v60
v_bitop3_b32 v60, v61, s51, v60 bitop3:{XOR_OR:#x}
v_cmp_ne_u32 vcc, 0, v60
s_cbranch_vccnz L_arr
L_arr_done:
s_mov_b64 exec, 1""")
    a(f"""s_add_u32 s46, s46, 1
v_mov_b32 v85, s46
buffer_store_dword v85, v3, s[28:31], 0 offen sc1
L_agg_done:""")
    stamp_out()
    a("s_endpgm")

    order = p.order.split(",")
    assert sorted(order) == sorted(S.keys()), (order, list(S.keys()))
    body = ""
    for k, name in enumerate(order):
        t = S[name].text()
        if k + 1 < len(order):
            nxt = S[order[k+1]].lines[0].strip()
            lines = t.rstrip("\n").split("\n")
            if lines[-1].strip() == "s_branch " + nxt.rstrip(":"): t = "\n".join(lines[:-1]) + "\n"
        body += f"; ---------------------------------------------------------------- {name}\n" + t
    body += "L_end:\n    s_endpgm\n"
    meta = dict(nwg=256, nwave=9, nst=12) if st else (dict(light=1) if p.light else None)
    txt = kernel_file(body, 256, 576, L_END, 104 if st else 96, meta=meta, extra_comment=DOC)
    if p.align > 8: txt = txt.replace(".text\n", f".text\n.p2align {p.align}\n", 1)
    return txt

if __name__ == "__main__":
    p = P()
    out = sys.argv[1]
    for kv in sys.argv[2:]:
        k, v = kv.split("=")
        assert hasattr(P, k), k
        setattr(p, k, type(getattr(P, k))(eval(v)) if not isinstance(getattr(P, k), str) else v.replace("+", " "))
    open(out, "w").write(gen(p))
```

```python
import sys
from asmlib import *

WS_E    = 0
WS_RES  = 196608
WS_RESF = 73728
WS_DONE = 77824
WS_ARR  = 81920
WS_KEYS = 131072
KSTR    = 2304
WS_PREA = 393216
WS_PREB = 655360
WS_YP   = 1048576
MASK    = 0xF80007F8
SPIN    = 1 << 16
L_TAGS, L_ROUTE, L_CNT, L_RED1, L_RED2, L_END = 0, 16, 20, 64, 4608, 12800
C1, D1, X12, C2, D2 = 0x9E3779B8, 0x3C6EF372, 0xA5A5A5A8, 0x85EBCA6B, 0x27D4EB2F
XOR_OR = ((0xF0 ^ 0xCC) | 0xAA) & 0xFF

class P:
    nb1 = 5; th2 = 6; cpos = 10; relief = True; pfn = 10; pfat = 1
    xmod = ""; wmod = "nt"; dmod = "nt"; omod = "sc1"; fmod = ""
    rsleep = 12; b3 = False; w1 = True; adapt = 0; dep5 = False; depk = True; bcopy = 1; bsleep = 0; ladder = "0,4,8,11,13,14,15"; droute = 0; dummy = True; npre = 0; xoff = 4; agg_dx = 0
    stamps = False; light = False
    na_pre = 64; na_res = 127
    agg_d0 = 0; agg_d1 = 0
    pre_sleep = 2; hint_max = 200; red_delay = 12
    align = 12; nanfix = True
    order = "entry,R1,Lstart,stubs,PF,R3,R2,L2,D,RED,AGG,cold,nan"

DOC = """;
;   workgroups 224..255 (helpers): R, a second R for the rows of the workgroups with fg%8==3, an aggregator wave
"""

def gen(p):
    S = {}
    cur = [None]
    def sec(name):
        S.setdefault(name, Asm()); cur[0] = S[name]
    def a(t): cur[0](t)
    class cold:
        def __init__(s, name="cold"): s.name = name
        def __enter__(s): s.back = cur[0]; sec(s.name)
        def __exit__(s, *e): cur[0] = s.back
    nl = [0]
    def label(b):
        nl[0] += 1; return f"{b}_{nl[0]}"
    st = p.stamps
    SV = 103
    def stamp(i):
        if st: a(f"s_memrealtime s[100:101]\ns_waitcnt lgkmcnt(0)\nv_writelane_b32 v{SV}, s100, {i}")
    def stamp_idx(expr_sub, reg):
        if st: a(f"""s_memrealtime s[100:101]
s_sub_u32 s60, {expr_sub}, s{reg}
s_min_u32 s60, s60, 11
s_mov_b32 m0, s60
s_waitcnt lgkmcnt(0)
v_writelane_b32 v{SV}, s100, m0""")
    def stamp_out():
        if not (st or p.light): return
        a(f"""s_waitcnt vmcnt(0) lgkmcnt(0)
s_lshl_b32 s20, s2, 4
s_add_u32 s20, s20, s3
s_lshl_b32 s20, s20, 6
s_add_u32 s20, s20, {STAMP_OFF}""")
        if p.light:
            a(f"""s_memrealtime s[98:99]
s_mov_b64 exec, 1
v_mov_b32 v3, 0
v_mov_b32 v4, s100
s_waitcnt lgkmcnt(0)
v_mov_b32 v5, s98
buffer_store_dwordx2 v[4:5], v3, s[28:31], s20 offen""")
        else:
            a(f"""s_mov_b64 exec, 0xffff
v_mbcnt_lo_u32_b32 v3, -1, 0
v_lshlrev_b32 v3, 2, v3
buffer_store_dword v{SV}, v3, s[28:31], s20 offen""")
    def ws_srd():
        a(f"s_mov_b32 s28, s18\ns_mov_b32 s29, s19\ns_mov_b32 s30, {WS_BYTES}\ns_mov_b32 s31, 0x20000")
    def tags_from_epoch():
        a(f"""s_mul_i32 s50, s46, {C1:#x}
s_add_u32 s50, s50, {D1:#x}
s_xor_b32 s51, s50, {X12:#x}
s_mul_i32 s52, s46, {C2:#x}
s_add_u32 s52, s52, {D2:#x}""")
    def read_tags(v):
        a(f"""v_mov_b32 v{v}, 0
ds_read_b32 v{v}, v{v} offset:{L_TAGS}
s_waitcnt lgkmcnt(0)
v_readfirstlane_b32 s26, v{v}
s_and_b32 s27, s26, 15""")
    def poll_result(dst, tag, off, cnt):
        l1, l2, l2b, l3 = label("L_rp"), label("L_rf"), label("L_rg"), label("L_rd")
        a(f"""s_and_b32 s{off}, s2, 7
s_lshl_b32 s{off}, s{off}, 14
s_add_u32 s{off}, s{off}, {WS_RES}
s_mov_b32 s{cnt}, {p.na_res}
{l1}:
s_load_dwordx4 s[{dst}:{dst+3}], s[18:19], s{off}
s_add_u32 s{off}, s{off}, 128
s_sub_u32 s{cnt}, s{cnt}, 1
s_cbranch_scc1 {l2}
s_waitcnt lgkmcnt(0)
s_cmp_lg_u32 s{dst+3}, s{tag}
s_cbranch_scc1 {l1}
{l3}:""")
        with cold():
            a(f"""; the aggregator sits on another die: read the write-through copy past the caches
{l2}:
s_and_b32 s{off}, s2, 7
s_lshl_b32 s{off}, s{off}, 8
s_add_u32 s{off}, s{off}, {WS_RESF}
s_mov_b32 s{cnt}, {SPIN}
{l2b}:
s_waitcnt lgkmcnt(0)
s_load_dwordx4 s[{dst}:{dst+3}], s[18:19], s{off} glc
s_waitcnt lgkmcnt(0)
s_cmp_eq_u32 s{dst+3}, s{tag}
s_cbranch_scc1 {l3}
s_sleep 8
s_sub_u32 s{cnt}, s{cnt}, 1
s_cbranch_scc0 {l2b}
s_and_b32 s{dst}, s{dst}, 0x7ff07ff
s_branch {l3}""")
    def selectors():
        a("""; v16..v23: byte selectors that place one bf16 at element (lane&7) of an 8-element A fragment
v_and_b32 v3, 1, v0
v_cmp_eq_u32 vcc, 1, v3
v_mov_b32 v4, 0x0c0c0100
v_mov_b32 v5, 0x01000c0c
v_mov_b32 v6, 0x0c0c0302
v_mov_b32 v7, 0x03020c0c
v_cndmask_b32 v4, v4, v5, vcc
v_cndmask_b32 v5, v6, v7, vcc
v_bfe_u32 v3, v0, 1, 2
v_mov_b32 v6, 0x0c0c0c0c""")
        for d in range(4):
            a(f"""v_cmp_eq_u32 vcc, {d}, v3
s_nop 1
v_cndmask_b32 v{16+d}, v6, v4, vcc
v_cndmask_b32 v{20+d}, v6, v5, vcc""")
    def perms(dst, src, par):
        for d in range(4): a(f"v_perm_b32 v{dst+d}, v{src}, v{src}, v{16+4*par+d}")
    def fg_of_wg():
        a(f"""s_add_u32 s20, s2, {p.xoff}
s_and_b32 s20, s20, 7
s_mul_i32 s20, s20, 7
s_lshr_b32 s21, s2, 5
s_add_u32 s32, s20, s21
s_bfe_u32 s33, s2, 0x20003           ; s33 = j""")
    def lds_init():
        a(f"""v_mov_b32 v88, 0
v_mov_b32 v84, -1
v_mov_b32 v85, 0
s_mov_b64 exec, 1
ds_write_b64 v88, v[84:85] offset:{L_ROUTE}""")

    sec("entry")
    if st: a(f"v_mov_b32 v{SV}, 0")
    if p.light: a("s_memrealtime s[100:101]")
    stamp(0)
    a(f"""s_load_dwordx16 s[4:19], s[0:1], 0
v_readfirstlane_b32 s3, v0
s_cmp_ge_u32 s2, 256
s_cbranch_scc1 L_end
v_and_b32 v0, 63, v0
s_lshr_b32 s3, s3, 6                 ; wave
s_cmp_ge_u32 s3, 5
s_cbranch_scc1 L_stubD
s_cmp_lg_u32 s3, 0
s_cbranch_scc1 L_Lstart""")

    sec("R1")
    a("s_mov_b32 s35, s2")
    if p.relief:
        fg_of_wg()
        a("""; lines whose address bits 9:7 are 3 stream more slowly through one CU: a helper routes these workgroups' rows
s_cmp_ge_u32 s2, 224
s_cselect_b32 s21, 0, s32
s_and_b32 s21, s21, 7
s_cmp_eq_u32 s21, 3
s_cbranch_scc1 L_R3""")
    a("""L_R1:
s_setprio 3
s_lshl_b32 s43, s35, 14
s_add_u32 s44, s43, 4096
v_lshlrev_b32 v1, 4, v0
v_add_u32 v90, s44, v1
v_add_u32 v91, 8192, v90""")
    lds_init()
    a("s_mov_b64 exec, -1\ns_waitcnt lgkmcnt(0)")
    stamp(8)
    for i in range(16):
        a(f"global_load_dwordx4 v[{10+4*i}:{13+4*i}], v{90+i//8}, s[4:5] offset:{(i%8)*1024-4096} {p.xmod}")
        if i == 1:
            a("global_load_dwordx4 v[2:5], v1, s[6:7]\nglobal_load_dwordx4 v[6:9], v1, s[6:7] offset:1024")
    stamp(9)
    a(f"s_load_dword s46, s[18:19], {WS_E}\ns_barrier\ns_branch L_R2")

    sec("stubs")
    a(f"""L_stubD:
s_cmp_ge_u32 s2, 224
s_cbranch_scc1 L_stubA
""" + ("s_cmp_eq_u32 s3, 5\ns_cbranch_scc1 L_PF\n" if p.pfn < 16 else "") + f"""s_cmp_lg_u32 s3, 8
s_cbranch_scc1 L_nocpf
; pull the kernel's code into this die's L2
s_getpc_b64 s[22:23]
L_pc:
v_lshlrev_b32 v1, 7, v0
v_min_u32 v1, L_hot_end-L_pc, v1
global_load_dword v80, v1, s[22:23]
L_nocpf:
s_barrier                            ; A
s_branch L_D
L_stubA:
s_cmp_lg_u32 s3, 5
s_cbranch_scc1 L_end
L_stubH:
s_waitcnt lgkmcnt(0)
s_load_dword s46, s[18:19], {WS_E}
s_waitcnt lgkmcnt(0)
s_barrier                            ; A (the epoch word is read before this workgroup publishes)
s_cmp_eq_u32 s3, 5
s_cbranch_scc1 L_AGG
s_branch L_RED
L_stubR:
s_cmp_ge_u32 s3, 3
s_cbranch_scc0 L_stubH
""")
    if not p.relief: a("s_endpgm")
    else: a(f"""s_cmp_lg_u32 s3, 3
s_cbranch_scc1 L_end
s_add_u32 s20, s2, {p.xoff + 3}
s_and_b32 s20, s20, 7
s_cmp_eq_u32 s20, 7
s_cbranch_scc1 L_end
s_lshl_b32 s20, s20, 5
s_and_b32 s35, s2, 31
s_add_u32 s35, s35, s20
s_branch L_R1""")

    sec("PF")
    if p.pfn < 16:
        nm = 16 - p.pfn
        a("L_PF:")
        fg_of_wg()
        a(f"""; a CU keeps only half as many lines with address bits 9:7 == 3 in flight: the other workgroups of the die pull
s_sub_u32 s22, 3, s20
s_and_b32 s22, s22, 7
s_cmp_gt_u32 s21, s22
s_subb_u32 s23, s21, 0
s_cmp_eq_u32 s21, s22
s_cselect_b32 s23, 7, s23
s_cmp_eq_u32 s22, 7
s_cselect_b32 s23, 7, s23
s_cmp_ge_u32 s23, {nm}
s_cbranch_scc1 L_nocpf
s_add_u32 s23, s23, {p.pfn}          ; m
s_lshr_b32 s24, s23, 2
s_lshl_b32 s24, s24, 4
s_and_b32 s23, s23, 3
s_add_u32 s23, s23, s24
s_lshl_b32 s24, s33, 8
s_add_u32 s23, s23, s24
s_mul_i32 s23, s23, 7168
s_add_u32 s22, s22, s20
s_lshl_b32 s22, s22, 7
s_add_u32 s23, s23, s22
v_bfe_u32 v1, v0, 3, 2
v_mul_u32_u24 v1, {64*7168}, v1
v_bfe_u32 v2, v0, 1, 2
v_mul_u32_u24 v2, {4*7168}, v2
v_add3_u32 v1, v1, v2, s23
v_and_b32 v2, 1, v0
v_cmp_eq_u32 vcc, 0, v2
s_waitcnt lgkmcnt(0)
v_mov_b32 v4, s10
v_mov_b32 v5, s8
v_mov_b32 v6, s11
v_mov_b32 v7, s9
v_cndmask_b32 v4, v4, v5, vcc
v_cndmask_b32 v5, v6, v7, vcc
v_add_co_u32 v4, vcc, v4, v1
s_nop 1
v_addc_co_u32 v5, vcc, 0, v5, vcc
s_mov_b32 exec_hi, 0
s_barrier                            ; A""")
        a("global_load_dword v80, v[4:5], off\ns_mov_b64 exec, -1")
        a("s_branch L_D")
    else: a("s_nop 0")

    sec("R3")
    if not p.relief: a('s_nop 0')
    def r3():
        a(f"""L_R3:
s_lshr_b32 s21, s32, 3
s_lshl_b32 s21, s21, 2
s_add_u32 s21, s21, s33
s_lshl_b32 s48, s21, 3
s_add_u32 s48, s48, {WS_ARR}""")
        lds_init()
        a(f"""s_waitcnt lgkmcnt(0)
s_load_dword s46, s[18:19], {WS_E}
s_barrier                            ; A""")
        ws_srd()
        a("s_waitcnt lgkmcnt(0)")
        tags_from_epoch()
        a(f"""v_mov_b32 v84, s52
ds_write_b32 v88, v84 offset:{L_TAGS}
v_mov_b32 v74, s50
v_mov_b32 v75, s51
buffer_store_dwordx2 v[74:75], v88, s[28:31], s48 offen sc1""")
        poll_result(40, 52, 44, 45)
        a(f"""v_mov_b32 v84, s40
ds_write_b32 v88, v84 offset:{L_ROUTE}
s_barrier                            ; 2
s_barrier                            ; 4""")
        if p.b3: a("s_barrier")
        stamp_out()
        a("s_endpgm")
    if p.relief: r3()

    sec("R2")
    a("L_R2:")
    ws_srd()
    a(f"""s_mov_b32 s24, s14
s_mov_b32 s25, s15
s_mov_b32 s26, {X_BYTES}
s_mov_b32 s27, 0x20000
; row held by a lane after the reduction: lane bit5 -> row bit0, bit4 -> bit1, bit3 -> bit2
v_lshrrev_b32 v82, 5, v0
v_bfe_u32 v83, v0, 4, 1
v_lshl_or_b32 v82, v83, 1, v82
v_bfe_u32 v83, v0, 3, 1
v_lshl_or_b32 v82, v83, 2, v82
s_lshl_b32 s47, s35, 3
s_sub_u32 s47, 2047, s47
v_sub_u32 v82, s47, v82              ; 2047 - token index
v_mul_u32_u24 v92, {KSTR}, v0        ; replica stride
""" + (f"v_lshlrev_b32 v89, 2, v0\ns_and_b32 s49, s2, 7\ns_lshl_b32 s49, s49, 7\ns_add_u32 s49, s49, {WS_DONE}\n" if p.adapt else "") + f"""s_lshl_b32 s48, s35, 3
s_add_u32 s48, s48, {WS_KEYS}""")
    for r in range(8): a(f"v_mov_b32 v{74+r}, 0")
    if p.nanfix: a("v_mov_b32 v93, 0x207")
    a("s_waitcnt lgkmcnt(0)")
    stamp(1)
    tags_from_epoch()
    a(f"""v_mov_b32 v84, s52
s_mov_b64 exec, 1
ds_write_b32 v88, v84 offset:{L_TAGS}
s_mov_b64 exec, -1""")
    def dots(r, lo, hi):
        for q in range(lo, hi): a(f"v_dot2c_f32_bf16 v{74+r}, v{10+8*r+q}, v{2+q}")
    for r in range(6):
        a(f"s_waitcnt vmcnt({14-2*r})"); dots(r, 0, 8)
    a("s_waitcnt vmcnt(2)"); dots(6, 0, 8)
    a("""v_permlane32_swap_b32 v74, v75
v_permlane32_swap_b32 v76, v77
v_permlane32_swap_b32 v78, v79
v_add_f32 v74, v74, v75
v_add_f32 v76, v76, v77
v_add_f32 v78, v78, v79
s_waitcnt vmcnt(1)""")
    dots(7, 0, 4)
    a("v_permlane16_swap_b32 v74, v76\ns_waitcnt vmcnt(0)")
    dots(7, 4, 8)
    stamp(2)
    a("""v_add_f32 v74, v74, v76
s_nop 1
v_permlane32_swap_b32 v80, v81
v_add_f32_dpp v75, v74, v74 row_ror:8 row_mask:0xf bank_mask:0xf
v_add_f32 v80, v80, v81
s_nop 1
v_permlane16_swap_b32 v78, v80
v_add_f32 v78, v78, v80
s_nop 1
v_add_f32_dpp v75, v78, v78 row_ror:8 row_mask:0xf bank_mask:0xc
s_nop 1
v_add_f32_dpp v75, v75, v75 row_half_mirror row_mask:0xf bank_mask:0xf
s_nop 1
v_add_f32_dpp v75, v75, v75 quad_perm:[1,0,3,2] row_mask:0xf bank_mask:0xf
s_nop 1
v_add_f32_dpp v79, v75, v75 quad_perm:[2,3,0,1] row_mask:0xf bank_mask:0xf
v_cmp_u_f32 vcc, v79, v79
v_cvt_pk_bf16_f32 v76, v79, v79
v_ashrrev_i32 v77, 31, v76
v_or_b32 v77, 0x80000000, v77
v_xor_b32 v76, v76, v77
v_lshrrev_b32 v76, 16, v76
v_cndmask_b32 v76, v76, 0, vcc
v_lshl_or_b32 v76, v76, 11, v82
s_nop 1
v_max_u32_dpp v74, v76, v76 row_ror:8 row_mask:0xf bank_mask:0xf
v_max_u32_dpp v78, v76, v76 row_ror:8 row_mask:0xf bank_mask:0xf
v_min_u32_dpp v75, v76, v76 row_ror:8 row_mask:0xf bank_mask:0xf
v_min_u32_dpp v77, v76, v76 row_ror:8 row_mask:0xf bank_mask:0xf
s_nop 0
v_permlane16_swap_b32 v74, v78
v_permlane16_swap_b32 v75, v77
v_min_u32 v80, v74, v78
v_max_u32 v76, v74, v78
v_max_u32 v74, v74, v78
v_max3_u32 v81, v75, v77, v80
v_max3_u32 v75, v75, v77, v80
v_permlane32_swap_b32 v74, v76
s_nop 0
v_permlane32_swap_b32 v75, v81
v_min_u32 v78, v74, v76
v_max_u32 v74, v74, v76
v_max3_u32 v75, v75, v81, v78
v_xor_b32 v74, s50, v74
v_xor_b32 v75, s51, v75
s_mov_b64 exec, 0xff
buffer_store_dwordx2 v[74:75], v92, s[28:31], s48 offen sc1
s_cmp_lt_u32 s2, 224
s_cbranch_scc1 L_Rnob""")
    if p.depk: a("s_waitcnt vmcnt(0)")
    a("""s_barrier
L_Rnob:""")
    stamp(3)
    if p.nanfix:
        a("""s_mov_b64 exec, -1
v_cmp_class_f32 vcc, v79, v93
s_cbranch_vccnz L_nanfix
L_nanfix_done:""")
        with cold("nan"):
            a("""L_hot_end:
L_nanfix:
s_mov_b32 s54, 0x07060302""")
            for r in range(10, 74, 2):
                a(f"""v_and_b32 v84, 0xffff0000, v{r}
v_lshlrev_b32 v85, 16, v{r}
v_and_b32 v86, 0xffff0000, v{r+1}
v_lshlrev_b32 v87, 16, v{r+1}
v_fma_f32 v84, v84, 0, v84
v_fma_f32 v85, v85, 0, v85
v_fma_f32 v86, v86, 0, v86
v_fma_f32 v87, v87, 0, v87
v_perm_b32 v{r}, v84, v85, s54
v_perm_b32 v{r+1}, v86, v87, s54""")
            a("s_branch L_nanfix_done")
    else:
        with cold("nan"): a("L_hot_end:")
    a("s_mov_b64 exec, 1")
    poll_result(40, 52, 44, 45)
    a(f"""v_mov_b32 v84, s40
ds_write_b32 v88, v84 offset:{L_ROUTE}
s_mov_b64 exec, -1
s_setprio 0
s_and_b32 s41, s40, 0x7ff
s_bfe_u32 s40, s40, 0xb0010
s_lshl_b32 s42, s35, 3
s_lshl_b32 s43, s35, 14
; row offsets; routed rows are written by the reducers (an out-of-range offset drops the store)""")
    for r in range(8):
        a(f"""s_cmp_eq_u32 s42, s40
s_cselect_b32 s{60+r}, 0x40000000, s43
s_cmp_eq_u32 s42, s41
s_cselect_b32 s{60+r}, 0x40000000, s{60+r}""")
        if r < 7: a("s_add_u32 s43, s43, 2048\ns_add_u32 s42, s42, 1")
    stamp(4)
    a("s_cmp_ge_u32 s2, 224\ns_cbranch_scc1 L_rstore\ns_barrier                            ; 2\ns_barrier                            ; 4" + ("\ns_barrier                            ; 5" if p.dep5 else ""))
    def bulk(mod):
        for r in range(8):
            a(f"""buffer_store_dwordx4 v[{10+8*r}:{13+8*r}], v1, s[24:27], s{60+r} offen {mod}
buffer_store_dwordx4 v[{14+8*r}:{17+8*r}], v1, s[24:27], s{60+r} offen offset:1024 {mod}""")
    if p.adapt:
        a(f"""; late workgroups leave their rows in L2 (written back at the end) instead of competing with the last hand-off
s_mov_b32 exec_lo, 0x0fffffff
s_mov_b32 exec_hi, 0
buffer_load_dword v84, v89, s[28:31], s49 offen sc1
s_waitcnt vmcnt(0)
v_cmp_eq_u32 vcc, s52, v84
s_mov_b64 exec, -1
s_bcnt1_i32_b64 s54, vcc
s_cmp_ge_u32 s54, {p.adapt}
s_cbranch_scc1 L_rlate""")
        with cold(): a("L_rlate:"); bulk(""); a("s_endpgm")
    if p.rsleep: a(f"s_sleep {p.rsleep}")
    a("L_rstore:")
    stamp(5)
    bulk(p.omod)
    stamp(6)
    if p.b3: a("s_cmp_ge_u32 s2, 224\ns_cbranch_scc1 L_rfin\ns_barrier\nL_rfin:")
    if st: a("s_waitcnt vmcnt(0)"); stamp(7)
    stamp_out()
    a("s_endpgm")

    sec("Lstart")
    a("""L_Lstart:
s_cmp_ge_u32 s2, 224
s_cbranch_scc1 L_stubR""")
    fg_of_wg()
    a(f"""v_lshrrev_b32 v1, 4, v0              ; g
v_and_b32 v2, 15, v0
s_sub_u32 s34, s3, 1                 ; w
s_lshl_b32 s20, s33, 8
s_lshl_b32 s21, s34, 6
s_add_u32 s20, s20, s21
s_mul_i32 s21, s20, 7168
s_lshl_b32 s22, s32, 7
s_add_u32 s21, s21, s22
v_cmp_gt_u32 vcc, 8, v2
v_and_b32 v3, 7, v2
v_lshlrev_b32 v3, 4, v3
v_mul_u32_u24 v4, {4*7168}, v1
v_add3_u32 v3, v3, v4, s21
s_mov_b32 s22, 7168
s_mov_b32 s23, 0
s_mov_b32 s24, {7168*13}
s_mov_b32 s25, 0
s_waitcnt lgkmcnt(0)
v_mov_b32 v4, s10
v_mov_b32 v5, s8
v_mov_b32 v6, s11
v_mov_b32 v7, s9
v_cndmask_b32 v4, v4, v5, vcc
v_cndmask_b32 v5, v6, v7, vcc
v_add_co_u32 v4, vcc, v4, v3
v_mov_b32 v6, 0
v_mov_b32 v7, 1
v_addc_co_u32 v5, vcc, 0, v5, vcc""")
    stamp(8)
    a("s_barrier                            ; A")
    def gload(m):
        a(f"global_load_dwordx4 v[{32+4*m}:{35+4*m}], v[4:5], off {p.wmod}")
        if m < 15: a(f"v_lshl_add_u64 v[4:5], v[4:5], 0, s[{'24:25' if (m+1) % 4 == 0 else '22:23'}]")
    for m in range(p.nb1): gload(m)
    stamp(1); a("s_branch L_L2"); sec("L2"); a("L_L2:")
    if p.w1 and p.nb1 < p.th2: a(f"s_waitcnt vmcnt({p.nb1-1})")
    for m in range(p.nb1, 17):
        if m == p.cpos: a(f"s_mov_b64 exec, 1\nds_add_u32 v6, v7 offset:{L_CNT}\ns_mov_b64 exec, -1")
        if m == 16: break
        if p.th2 and m >= p.th2: a(f"s_waitcnt vmcnt({p.th2-1})")
        gload(m)
    stamp(2)
    selectors()
    ws_srd()
    a(f"""s_lshl_b32 s20, s20, 1
v_bfe_u32 v3, v2, 1, 2
v_lshlrev_b32 v4, 8, v3
v_and_b32 v3, 1, v2
v_lshl_or_b32 v4, v3, 7, v4
v_and_b32 v3, 1, v1
v_lshl_or_b32 v4, v3, 6, v4
v_lshrrev_b32 v3, 1, v1
v_lshl_or_b32 v4, v3, 5, v4
v_lshrrev_b32 v3, 3, v2
v_lshl_or_b32 v1, v3, 4, v4
v_lshlrev_b32 v0, 4, v0              ; lane*16
s_lshl_b32 s21, s34, 10
v_add_u32 v2, s21, v0
s_lshl_b32 s12, s32, 2
s_add_u32 s12, s12, s33
s_lshl_b32 s12, s12, 10
s_add_u32 s12, s12, {WS_PREA}
s_add_u32 s4, s4, s20
s_addc_u32 s5, s5, 0
v_mov_b32 v3, 0
s_mov_b32 s21, {SPIN*16}
L_Lroute:
ds_read_b32 v4, v3 offset:{L_ROUTE}
s_sub_u32 s21, s21, 1
s_cbranch_scc1 L_Lroute_done
s_waitcnt lgkmcnt(0)
v_readfirstlane_b32 s8, v4
s_cmp_eq_u32 s8, -1
s_cbranch_scc1 L_Lroute
L_Lroute_done:""")
    stamp(3)
    a("""s_lshr_b32 s9, s8, 5
s_and_b32 s9, s9, 0x3ff800
s_load_dwordx16 s[36:51], s[4:5], s9
s_load_dwordx16 s[52:67], s[4:5], s9 offset:64
s_lshl_b32 s8, s8, 11
s_and_b32 s8, s8, 0x3ff800
s_load_dwordx16 s[68:83], s[4:5], s8
s_load_dwordx16 s[84:99], s[4:5], s8 offset:64
ds_read_b32 v4, v3 offset:""" + str(L_TAGS) + """
s_mov_b64 exec, 0xff
s_waitcnt lgkmcnt(0)
v_readfirstlane_b32 s26, v4""")
    stamp(4)
    for g in range(4):
        for t in range(2):
            for q in range(4):
                sr = 36 + 32*t + (16*q + 4*g)//2
                a(f"v_mov_b64 v[{8+2*q}:{9+2*q}], s[{sr}:{sr+1}]")
            a("s_lshl_b64 exec, exec, 8" if (g, t) != (3, 1) else "s_mov_b64 exec, -1")
    perms(24, 8, 0)
    lad = sorted(int(x) for x in p.ladder.split(","))
    for m in range(16):
        c = 24 + 4*(m & 1); nx = 24 + 4*((m+1) & 1)
        if m < 15: perms(nx, 8 + ((m+1) >> 1), (m+1) & 1)
        elif 15 not in lad: a("s_nop 0")
        if m in lad:
            nxt = [x for x in lad if x > m]
            a(f"s_waitcnt vmcnt({16 - (nxt[0] if nxt else 16)})")
            if not nxt: stamp(5)
        a(f"v_mfma_f32_16x16x32_bf16 v[4:7], v[{c}:{c+3}], v[{32+4*m}:{35+4*m}], {'0' if m == 0 else 'v[4:7]'}")
    a(f"""s_cmp_eq_u32 s34, 0
s_cbranch_scc1 L_L0
s_nop 5
ds_write_b128 v2, v[4:7] offset:{L_RED1}
s_waitcnt lgkmcnt(0)
s_barrier                            ; 2""")
    stamp(6)
    stamp_out()
    a(f"""s_endpgm
L_L0:
s_and_b32 s27, s26, 15
s_add_u32 s14, s27, 5
s_add_u32 s15, s27, 10
s_add_u32 s16, s27, 15
s_barrier                            ; 2""")
    stamp(6)
    a(f"""ds_read_b128 v[8:11], v0 offset:{L_RED1+1024}
ds_read_b128 v[12:15], v0 offset:{L_RED1+2048}
ds_read_b128 v[24:27], v0 offset:{L_RED1+3072}
s_waitcnt lgkmcnt(2)
v_pk_add_f32 v[4:5], v[4:5], v[8:9]
v_pk_add_f32 v[6:7], v[6:7], v[10:11]
s_waitcnt lgkmcnt(0)
v_pk_add_f32 v[12:13], v[12:13], v[24:25]
v_pk_add_f32 v[14:15], v[14:15], v[26:27]
v_pk_add_f32 v[4:5], v[4:5], v[12:13]
v_pk_add_f32 v[6:7], v[6:7], v[14:15]
v_bfi_b32 v4, 15, s27, v4
v_bfi_b32 v5, 15, s14, v5
v_bfi_b32 v6, 15, s15, v6
v_bfi_b32 v7, 15, s16, v7
buffer_store_dwordx4 v[4:7], v1, s[28:31], s12 offen""")
    stamp(7)
    if p.b3: a("s_barrier")
    a("s_barrier                            ; 4")
    if p.bcopy == 2:
        a(f"s_add_u32 s12, s12, {WS_PREB-WS_PREA}")
        if p.bsleep: a(f"s_sleep {p.bsleep}")
        a("buffer_store_dwordx4 v[4:7], v1, s[28:31], s12 offen sc1")
    stamp_out()
    a("s_endpgm")

    sec("D")
    a("L_D:")
    fg_of_wg()
    a(f"""v_lshrrev_b32 v1, 4, v0              ; g
v_and_b32 v2, 15, v0                 ; jj
s_sub_u32 s34, s3, 5
v_lshlrev_b32 v64, 13, v1
v_lshl_or_b32 v64, v2, 4, v64
s_lshl_b32 s20, s32, 6
s_lshl_b32 s21, s34, 4
s_add_u32 s20, s20, s21
s_lshl_b32 s20, s20, 11
s_lshl_b32 s21, s33, 9
s_add_u32 s20, s20, s21
s_add_u32 s21, s20, 4096
s_waitcnt lgkmcnt(0)
s_mov_b32 s36, s12
s_mov_b32 s37, s13
s_mov_b32 s38, {W_BYTES}
s_mov_b32 s39, 0x20000""")
    ws_srd()
    selectors()
    a(f"""v_lshlrev_b32 v65, 4, v0             ; lane*16
s_lshl_b32 s22, s34, 11
v_add_u32 v66, s22, v65
s_lshl_b32 s22, s34, 10
v_add_u32 v67, s22, v65
s_lshl_b32 s23, s32, 2
s_add_u32 s23, s23, s33
s_lshl_b32 s23, s23, 11
s_add_u32 s23, s23, s22
s_add_u32 s23, s23, {WS_YP}
v_lshrrev_b32 v3, 1, v2
v_lshlrev_b32 v68, 7, v3
v_lshrrev_b32 v3, 1, v1
v_lshl_or_b32 v68, v3, 6, v68
v_and_b32 v3, 1, v2
v_and_b32 v4, 1, v1
v_lshl_or_b32 v3, v3, 1, v4
v_lshl_or_b32 v68, v3, 4, v68
v_mul_u32_u24 v71, 5, v3
s_and_b32 s48, s2, 7
s_lshl_b32 s48, s48, 7
s_lshr_b32 s49, s2, 3
s_lshl_b32 s49, s49, 2
s_add_u32 s48, s48, s49
s_add_u32 s48, s48, {WS_DONE}
s_lshl_b32 s22, s34, 8
v_lshl_add_u32 v69, v0, 2, s22
v_and_b32 v4, 3, v0
v_mul_u32_u24 v70, 5, v4
s_lshl_b32 s41, s32, 12
s_add_u32 s41, s41, {WS_PREA}
s_mov_b32 s42, {p.na_pre}
s_mov_b32 s43, 0xbfb8aa3b            ; -log2(e)
s_lshl_b32 s44, s33, 10
s_add_u32 s44, s44, s41
v_mov_b32 v3, 0
s_mov_b32 s22, {SPIN*4}
L_Dcnt:
s_sleep 1
ds_read_b32 v4, v3 offset:{L_CNT}
s_sub_u32 s22, s22, 1
s_cbranch_scc1 L_Dcnt_done
s_waitcnt lgkmcnt(0)
v_readfirstlane_b32 s45, v4
s_cmp_lt_u32 s45, 4
s_cbranch_scc1 L_Dcnt
L_Dcnt_done:
; (they also bring the mailbox lines into L2)""")
    for q in range(4): a(f"buffer_load_dword v{8+q}, v69, s[28:31], s41 offen offset:{q*1024} sc1")
    if p.dummy: a("s_waitcnt vmcnt(0)")
    stamp(1)
    for i in range(8):
        if p.droute and i == p.npre:
            a(f"""; the remaining down loads wait for the route: until then the slower workgroups' gate/up loads have the memory system
L_Droute:
s_sleep 1
ds_read_b32 v4, v3 offset:{L_ROUTE}
s_sub_u32 s22, s22, 1
s_cbranch_scc1 L_Droute_done
s_waitcnt lgkmcnt(0)
v_readfirstlane_b32 s45, v4
s_cmp_eq_u32 s45, -1
s_cbranch_scc1 L_Droute
L_Droute_done:""")
        m, half = i >> 1, i & 1
        a(f"buffer_load_dwordx4 v[{32+4*i}:{35+4*i}], v64, s[36:39], s{20 + (m>>1)} offen offset:{(m&1)*2048+half*256} {p.dmod}")
    stamp(2)
    a(f"""s_barrier                            ; 2
ds_read_b32 v72, v3 offset:{L_TAGS}
s_waitcnt lgkmcnt(0)
v_readfirstlane_b32 s27, v72
v_add_u32 v70, v70, v72
v_add_u32 v71, v71, v72
v_and_b32 v70, 15, v70""")
    if p.pre_sleep: a(f"s_sleep {p.pre_sleep}")
    stamp(3)
    a("L_poll2:")
    for q in range(4):
        a(f"buffer_load_dword v{8+q}, v69, s[28:31], s41 offen offset:{q*1024} sc1")
    a("s_sub_u32 s42, s42, 1\ns_cbranch_scc1 L_p2sw\ns_waitcnt vmcnt(0)")
    stamp_idx(p.na_pre+7, 42)
    a(f"""v_xor_b32 v8, v8, v70
v_xor_b32 v9, v9, v70
v_xor_b32 v10, v10, v70
v_xor_b32 v11, v11, v70
v_add_f32 v14, v8, v9
v_or3_b32 v12, v8, v9, v10
v_add_f32 v15, v10, v11
v_bitop3_b32 v12, v12, v11, 15 bitop3:0xa8
v_add_f32 v8, v14, v15
v_cvt_pk_bf16_f32 v8, v8, v8
v_and_b32 v8, 0xffff0000, v8
v_cmp_ne_u32 vcc, 0, v12
v_mul_f32 v9, s43, v8
s_cbranch_vccnz L_poll2
L_poll2_done:""")
    if p.b3: a("s_barrier")
    stamp(4)
    a(f"""v_exp_f32 v9, v9
s_nop 0
v_add_f32 v9, 1.0, v9
v_rcp_f32 v9, v9
s_nop 0
v_mul_f32 v9, v8, v9
v_cvt_pk_bf16_f32 v9, v9, v9
v_and_b32 v9, 0xffff0000, v9
v_mul_f32_dpp v10, v8, v9 row_shl:4 row_mask:0xf bank_mask:0x5
s_nop 0
v_mul_f32_dpp v10, v9, v8 row_shr:4 row_mask:0xf bank_mask:0xa
s_nop 1
v_mov_b32_dpp v8, v10 quad_perm:[0,0,0,0] row_mask:0xf bank_mask:0xf
v_mov_b32_dpp v11, v10 quad_perm:[1,1,1,1] row_mask:0xf bank_mask:0xf
v_mov_b32_dpp v9, v10 quad_perm:[2,2,2,2] row_mask:0xf bank_mask:0xf
v_cvt_pk_bf16_f32 v8, v8, v11
v_mov_b32_dpp v12, v10 quad_perm:[3,3,3,3] row_mask:0xf bank_mask:0xf""")
    perms(24, 8, 0)
    a("v_cvt_pk_bf16_f32 v9, v9, v12        ; m = 2, 3")
    for m in range(4):
        c = 24 + 4*(m & 1); nx = 24 + 4*((m+1) & 1)
        if m < 3: perms(nx, 8 + ((m+1) >> 1), (m+1) & 1)
        for half in range(2):
            acc = f"v[{4+8*half}:{7+8*half}]"
            i = 2*m + half
            a(f"v_mfma_f32_16x16x32_bf16 {acc}, v[{c}:{c+3}], v[{32+4*i}:{35+4*i}], {'0' if m == 0 else acc}")
    a(f"""s_cmp_ge_u32 s34, 2
s_nop 5
ds_write_b128 v66, v[4:7] offset:{L_RED2}
ds_write_b128 v66, v[12:15] offset:{L_RED2+1024}
s_waitcnt lgkmcnt(0)
s_barrier                            ; 4""")
    stamp(5)
    a(f"""s_cbranch_scc1 L_D_copy
ds_read_b128 v[4:7], v67 offset:{L_RED2}
ds_read_b128 v[8:11], v67 offset:{L_RED2+2048}
ds_read_b128 v[12:15], v67 offset:{L_RED2+4096}
ds_read_b128 v[24:27], v67 offset:{L_RED2+6144}
s_waitcnt lgkmcnt(2)
v_pk_add_f32 v[4:5], v[4:5], v[8:9]
v_pk_add_f32 v[6:7], v[6:7], v[10:11]
s_waitcnt lgkmcnt(0)
v_pk_add_f32 v[12:13], v[12:13], v[24:25]
v_pk_add_f32 v[14:15], v[14:15], v[26:27]
v_pk_add_f32 v[4:5], v[4:5], v[12:13]
v_pk_add_f32 v[6:7], v[6:7], v[14:15]
v_bfi_b32 v4, 15, v71, v4
buffer_store_dwordx4 v[4:7], v68, s[28:31], s23 offen sc1""")
    if p.dep5: stamp(6); a("s_waitcnt vmcnt(0)\ns_barrier")
    a("L_D_done:")
    if not p.dep5: stamp(6)
    if st: a("s_waitcnt vmcnt(0)"); stamp(7)
    stamp_out()
    a(f"""s_endpgm
L_D_copy:""")
    if p.dep5: a("s_barrier                            ; 5")
    a(f"""s_cmp_lg_u32 s34, 3
s_cbranch_scc1 L_D_copy2
s_mov_b64 exec, 1
buffer_store_dword v72, v3, s[28:31], s48 offen
s_branch L_D_done
L_D_copy2:""")
    if p.bcopy == 1: a(f"""buffer_load_dwordx4 v[8:11], v65, s[28:31], s44 offen sc1
s_add_u32 s45, s44, {WS_PREB-WS_PREA}
s_waitcnt vmcnt(0)
buffer_store_dwordx4 v[8:11], v65, s[28:31], s45 offen sc1""")
    a("s_branch L_D_done")
    with cold():
        a(f"""; the local mailbox never filled: a peer sits on another die; publish our block write-through, then read that mailbox
L_p2sw:
s_waitcnt vmcnt(0)
s_cmp_ge_u32 s41, {WS_PREB}
s_cbranch_scc1 L_poll2_done
s_mov_b32 s42, {SPIN}
s_add_u32 s40, s27, 5
s_add_u32 s46, s27, 10
s_add_u32 s47, s27, 15
L_p2own:
buffer_load_dwordx4 v[8:11], v65, s[28:31], s44 offen sc1
s_sub_u32 s42, s42, 1
s_cbranch_scc1 L_p2own_done
s_waitcnt vmcnt(0)
v_xor_b32 v12, s27, v8
v_bitop3_b32 v12, v9, s40, v12 bitop3:{XOR_OR:#x}
v_bitop3_b32 v12, v10, s46, v12 bitop3:{XOR_OR:#x}
v_bitop3_b32 v12, v11, s47, v12 bitop3:{XOR_OR:#x}
v_and_b32 v12, 15, v12
v_cmp_ne_u32 vcc, 0, v12
s_cbranch_vccnz L_p2own
L_p2own_done:
s_waitcnt vmcnt(0)
s_add_u32 s45, s44, {WS_PREB-WS_PREA}
buffer_store_dwordx4 v[8:11], v65, s[28:31], s45 offen sc1
s_add_u32 s41, s41, {WS_PREB-WS_PREA}
s_mov_b32 s42, {SPIN}
s_branch L_poll2""")

    sec("RED")
    a(f"""L_RED:
s_sub_u32 s34, s3, 1
s_sub_u32 s44, s2, 224
s_lshl_b32 s45, s44, 1
s_add_u32 s45, s45, s34
s_lshl_b32 s60, s45, 7
v_lshrrev_b32 v1, 3, v0
v_and_b32 v2, 7, v0                  ; sub
v_lshlrev_b32 v3, 13, v1
v_lshl_or_b32 v3, v2, 4, v3
s_add_u32 s36, s18, {WS_YP}
s_addc_u32 s37, s19, 0
s_mov_b32 s38, {56*8192}
s_mov_b32 s39, 0x20000""")
    for i in range(1, 7): a(f"s_add_u32 s{60+i}, s{59+i}, {8*8192}")
    a(f"""; output element of this lane: token = sub>>2, column = 16*piece + 4*(sub&3) + [0,2,1,3][lane>>4]
v_bfe_u32 v4, v0, 4, 1
v_bfe_u32 v5, v0, 5, 1
v_lshl_or_b32 v4, v4, 1, v5
v_and_b32 v40, 3, v0
v_lshl_or_b32 v4, v40, 2, v4
s_lshl_b32 s50, s45, 4
v_add_lshl_u32 v4, v4, s50, 1
v_and_b32 v5, 4, v0
v_cmp_ne_u32 s[56:57], 0, v5
s_and_b32 s48, s2, 7
s_lshl_b32 s48, s48, 7
s_add_u32 s48, s48, {WS_DONE}
v_lshlrev_b32 v41, 2, v0""")
    tags_from_epoch()
    a("s_and_b32 s27, s52, 15\nv_mad_u32_u24 v40, v40, 5, s27\nv_and_b32 v40, 15, v40")
    ws_srd()
    a("s_barrier                            ; B")
    poll_result(40, 52, 44, 45)
    stamp(1)
    a(f"""s_lshr_b32 s44, s40, 5
s_and_b32 s44, s44, 0x3ff800
s_lshl_b32 s45, s40, 11
s_and_b32 s45, s45, 0x3ff800
v_mov_b32 v8, s44
v_mov_b32 v9, s45
s_and_b32 s44, s41, 0xffff0000
s_lshl_b32 s45, s41, 16
v_mov_b32 v10, s44
v_mov_b32 v11, s45
v_cndmask_b32 v8, v8, v9, s[56:57]
v_cndmask_b32 v10, v10, v11, s[56:57]
v_add_u32 v4, v4, v8
global_load_ushort v6, v4, s[4:5]
v_ashrrev_i32 v11, 31, v10
v_not_b32 v11, v11
v_or_b32 v11, 0x80000000, v11
v_xor_b32 v10, v10, v11
v_and_b32 v10, 0xffff0000, v10
v_mul_f32 v10, 0xbfb8aa3b, v10
v_exp_f32 v10, v10
s_mov_b32 s58, {SPIN}
v_add_f32 v10, 1.0, v10
v_rcp_f32 v10, v10
s_mov_b32 s59, {p.hint_max}
v_cvt_pk_bf16_f32 v10, v10, v10
v_and_b32 v7, 0xffff0000, v10
s_mov_b32 exec_lo, 0x0fffffff
s_mov_b32 exec_hi, 0
L_hint:
buffer_load_dword v8, v41, s[28:31], s48 offen sc1
s_sub_u32 s59, s59, 1
s_cbranch_scc1 L_hint_done
s_waitcnt vmcnt(0)
v_cmp_ne_u32 vcc, s52, v8
s_cbranch_vccnz L_hint
L_hint_done:
s_mov_b64 exec, -1
s_waitcnt vmcnt(0)
v_lshlrev_b32 v6, 16, v6""")
    if p.red_delay: a(f"s_sleep {p.red_delay}")
    stamp(2)
    if st: a("s_mov_b32 s72, 0\ns_mov_b32 s73, 0")
    a("L_poll3:")
    for i in range(7):
        a(f"buffer_load_dwordx4 v[{8+4*i}:{11+4*i}], v3, s[36:39], s{60+i} offen sc1")
    a("s_sub_u32 s58, s58, 1\ns_cbranch_scc1 L_poll3_done")
    a(f"""s_waitcnt vmcnt(5)
v_xor_b32 v8, v8, v40
v_xor_b32 v12, v12, v40
v_or_b32 v36, v8, v12
v_pk_add_f32 v[8:9], v[8:9], v[12:13]
v_pk_add_f32 v[10:11], v[10:11], v[14:15]""")
    for i in range(2, 7):
        a(f"""s_waitcnt vmcnt({6-i})
v_xor_b32 v{8+4*i}, v{8+4*i}, v40
v_pk_add_f32 v[10:11], v[10:11], v[{10+4*i}:{11+4*i}]
v_pk_add_f32 v[8:9], v[8:9], v[{8+4*i}:{9+4*i}]""")
        if i == 6: a(f"v_bitop3_b32 v36, v36, v{8+4*i}, 15 bitop3:0xa8")
        else: a(f"v_or_b32 v36, v36, v{8+4*i}")
    if st: a(f"""s_memrealtime s[100:101]
s_mov_b32 s74, s73
s_mov_b32 s73, s72
s_waitcnt lgkmcnt(0)
s_mov_b32 s72, s100
v_writelane_b32 v{SV}, s73, 7
v_writelane_b32 v{SV}, s74, 8""")
    a(f"""v_cmp_ne_u32 vcc, 0, v36
v_permlane32_swap_b32 v8, v9
s_cbranch_vccnz L_poll3
L_poll3_done:""")
    stamp(3)
    a(f"""v_permlane32_swap_b32 v10, v11
v_add_f32 v8, v8, v9
v_add_f32 v10, v10, v11
s_nop 1
v_permlane16_swap_b32 v8, v10
v_add_f32 v8, v8, v10
s_nop 1
v_add_f32_dpp v5, v8, v8 row_ror:8 row_mask:0xf bank_mask:0xf
s_mov_b32 exec_lo, 0x00ff00ff
s_mov_b32 exec_hi, 0x00ff00ff
v_cvt_pk_bf16_f32 v5, v5, v5
v_and_b32 v5, 0xffff0000, v5
v_mul_f32 v5, v5, v7
v_cvt_pk_bf16_f32 v5, v5, v5
v_and_b32 v5, 0xffff0000, v5
v_add_f32 v5, v5, v6
v_cvt_pk_bf16_f32 v5, v5, v5
global_store_short v4, v5, s[14:15] {p.fmod}""")
    stamp(4)
    if st: a("s_waitcnt vmcnt(0)"); stamp(5)
    stamp_out()
    a("s_endpgm")

    sec("AGG")
    a(f"""L_AGG:
s_setprio 3
s_and_b32 s32, s2, 7
v_lshlrev_b32 v1, 7, v0              ; lane*128
s_lshl_b32 s33, s32, 14
s_add_u32 s33, s33, {WS_RES}
s_add_u32 s37, s33, 8192
s_lshl_b32 s34, s32, 8
s_add_u32 s34, s34, {WS_RESF}
s_bfe_u32 s53, s2, 0x20003
s_mul_i32 s36, s32, {KSTR}
s_add_u32 s36, s36, {WS_KEYS}""")
    ws_srd()
    a(f"""s_cmp_gt_u32 s53, 1
s_cbranch_scc1 L_notouch
s_cmp_eq_u32 s53, 0
s_cselect_b32 s38, s33, s37
buffer_load_dword v3, v1, s[28:31], s38 offen sc1
L_notouch:
v_lshlrev_b32 v93, 5, v0
v_sub_u32 v88, {255*8}, v93
v_subrev_u32 v89, 8, v88
v_subrev_u32 v90, 16, v88
v_subrev_u32 v91, 24, v88
v_lshlrev_b32 v2, 4, v0""")
    tags_from_epoch()
    a(f"""v_mov_b32 v83, s52
s_mov_b32 s52, {SPIN}
v_mov_b32 v82, 0
v_mov_b32 v70, 0
v_mov_b32 v71, 0
v_mov_b32 v92, 0x07060302
v_mov_b32 v94, 0x05040100
s_mov_b32 s55, 0x07ff07ff
s_mov_b64 s[56:57], -1
s_barrier                            ; B""")
    if p.agg_dx and p.relief: a(f"""s_cmp_lg_u32 s32, {(4 - p.xoff) & 7}
s_cbranch_scc1 L_aggd
s_sleep {p.agg_dx}
L_aggd:""")
    if p.agg_d0: a(f"s_sleep {p.agg_d0}")
    if p.agg_d1:
        for k in range(3): a(f"s_cmp_eq_u32 s53, {k}\ns_cbranch_scc1 L_aggo\ns_sleep {p.agg_d1}")
    if p.agg_d1: a("L_aggo:")
    stamp(1)
    def merge():
        for k, ctrl in enumerate(("quad_perm:[1,0,3,2]", "quad_perm:[2,3,0,1]", "row_half_mirror")):
            s1, s2 = ("v70", "v71") if k == 0 else ("v76", "v77")
            a(f"""s_nop {1 if k == 0 else 0}
v_min_u32_dpp v84, {s1}, {s1} {ctrl} row_mask:0xf bank_mask:0xf
v_max_u32_dpp v85, {s2}, {s2} {ctrl} row_mask:0xf bank_mask:0xf
v_max_u32_dpp v76, {s1}, {s1} {ctrl} row_mask:0xf bank_mask:0xf
v_max_u32 v77, v84, v85""")
        a("""s_nop 0
v_min_u32_dpp v84, v76, v76 row_mirror row_mask:0xf bank_mask:0xf
v_max_u32_dpp v85, v77, v77 row_mirror row_mask:0xf bank_mask:0xf
v_max_u32_dpp v78, v76, v76 row_mirror row_mask:0xf bank_mask:0xf
v_max_u32_dpp v76, v76, v76 row_mirror row_mask:0xf bank_mask:0xf
v_max_u32 v79, v84, v85
v_max_u32 v77, v84, v85
v_permlane16_swap_b32 v76, v78
s_nop 0
v_permlane16_swap_b32 v77, v79
v_min_u32 v84, v76, v78
v_max_u32 v86, v76, v78
v_max_u32 v76, v76, v78
v_max3_u32 v87, v77, v79, v84
v_max3_u32 v77, v77, v79, v84
v_permlane32_swap_b32 v76, v86
s_nop 0
v_permlane32_swap_b32 v77, v87
v_min_u32 v84, v76, v86
v_max_u32 v76, v76, v86
v_max3_u32 v77, v77, v87, v84
v_perm_b32 v80, v76, v77, v94
v_bitop3_b32 v80, v80, s55, v80 bitop3:0x0c""")
    def xprefetch():
        a("""v_bfe_u32 v4, v80, 16, 11
v_and_b32 v5, 0x7ff, v80
v_lshl_or_b32 v4, v4, 11, v2
v_lshl_or_b32 v5, v5, 11, v2
global_load_dwordx4 v[8:11], v4, s[4:5]
global_load_dwordx4 v[12:15], v5, s[4:5]
global_load_dwordx4 v[16:19], v4, s[4:5] offset:1024
global_load_dwordx4 v[20:23], v5, s[4:5] offset:1024""")
    a("""L_poll1:
buffer_load_dwordx4 v[60:63], v93, s[28:31], s36 offen sc1
buffer_load_dwordx4 v[64:67], v93, s[28:31], s36 offen offset:16 sc1
s_sub_u32 s52, s52, 1
s_cbranch_scc1 L_poll1_done
s_cmp_lg_u64 s[56:57], -1
s_cbranch_scc1 L_spec
s_waitcnt vmcnt(0)
L_specdone:""")
    with cold():
        a("; while the next look is in flight, warm this die's L2 with the rows that lead so far\nL_spec:\ns_mov_b64 exec, -1")
        merge(); xprefetch()
        a("s_mov_b64 exec, s[56:57]\ns_waitcnt vmcnt(4)\ns_branch L_specdone")
    stamp_idx(SPIN+3, 52)
    for e in range(4):
        a(f"v_xor_b32 v{60+2*e}, s50, v{60+2*e}\nv_xor_b32 v{61+2*e}, s51, v{61+2*e}")
    tt = ((0xF0 ^ 0xAA) | (0xCC ^ 0xAA)) & 0xFF
    for e in range(4):
        a(f"v_bitop3_b32 v{84+e}, v{60+2*e}, v{61+2*e}, v{88+e} bitop3:{tt:#x}")
    a(f"""v_or3_b32 v84, v84, v85, v86
v_or_b32 v84, v84, v87
v_and_b32 v84, {MASK:#x}, v84
v_cmp_ne_u32 vcc, 0, v84
v_min_u32 v84, v60, v62
v_max_u32 v60, v60, v62
v_max3_u32 v61, v61, v63, v84
v_min_u32 v85, v64, v66
v_max_u32 v64, v64, v66
v_max3_u32 v65, v65, v67, v85
s_andn2_b64 exec, exec, vcc
v_min_u32 v84, v60, v64
v_max_u32 v70, v60, v64
v_max3_u32 v71, v61, v65, v84
s_and_b64 s[56:57], s[56:57], vcc
s_mov_b64 exec, s[56:57]
s_cbranch_scc1 L_poll1
L_poll1_done:
s_mov_b64 exec, -1""")
    stamp(2)
    merge()
    a(f"""v_lshlrev_b32 v84, 5, v76
v_lshlrev_b32 v85, 5, v77
v_perm_b32 v81, v84, v85, v92
buffer_store_dwordx4 v[80:83], v1, s[28:31], s33 offen""")
    xprefetch()
    a("buffer_store_dwordx4 v[80:83], v1, s[28:31], s37 offen")
    a(f"""v_mov_b32 v3, 0
s_mov_b64 exec, 1
buffer_store_dwordx4 v[80:83], v3, s[28:31], s34 offen sc1""")
    stamp(3)
    a(f"""s_cmp_lg_u32 s2, 224
s_cbranch_scc1 L_agg_done
""")
    if p.relief: a(f"""; every workgroup must have read the epoch word before it changes
s_mov_b32 exec_lo, 0x0fffffff
v_lshlrev_b32 v4, 3, v0
s_mov_b32 s52, {SPIN}
s_mov_b32 s55, {WS_ARR}
L_arr:
buffer_load_dwordx2 v[60:61], v4, s[28:31], s55 offen sc1
s_sub_u32 s52, s52, 1
s_cbranch_scc1 L_arr_done
s_waitcnt vmcnt(0)
v_xor_b32 v60, s50, v60
v_bitop3_b32 v60, v61, s51, v60 bitop3:{XOR_OR:#x}
v_cmp_ne_u32 vcc, 0, v60
s_cbranch_vccnz L_arr
L_arr_done:
s_mov_b64 exec, 1""")
    a(f"""s_add_u32 s46, s46, 1
v_mov_b32 v85, s46
buffer_store_dword v85, v3, s[28:31], 0 offen sc1
L_agg_done:""")
    stamp_out()
    a("s_endpgm")

    order = p.order.split(",")
    assert sorted(order) == sorted(S.keys()), (order, list(S.keys()))
    body = ""
    for k, name in enumerate(order):
        t = S[name].text()
        if k + 1 < len(order):
            nxt = S[order[k+1]].lines[0].strip()
            lines = t.rstrip("\n").split("\n")
            if lines[-1].strip() == "s_branch " + nxt.rstrip(":"): t = "\n".join(lines[:-1]) + "\n"
        body += f"; ---------------------------------------------------------------- {name}\n" + t
    body += "L_end:\n    s_endpgm\n"
    meta = dict(nwg=256, nwave=9, nst=12) if st else (dict(light=1) if p.light else None)
    txt = kernel_file(body, 256, 576, L_END, 104 if st else 96, meta=meta, extra_comment=DOC)
    if p.align > 8: txt = txt.replace(".text\n", f".text\n.p2align {p.align}\n", 1)
    return txt

if __name__ == "__main__":
    p = P()
    out = sys.argv[1]
    for kv in sys.argv[2:]:
        k, v = kv.split("=")
        assert hasattr(P, k), k
        setattr(p, k, type(getattr(P, k))(eval(v)) if not isinstance(getattr(P, k), str) else v.replace("+", " "))
    open(out, "w").write(gen(p))
```

```python
import sys
from asmlib import *

WS_E    = 0
WS_RES  = 4096
WS_RESF = 73728
WS_DONE = 77824
WS_ARR  = 81920
WS_KEYS = 131072
KSTR    = 2304
WS_PREA = 393216
WS_PREB = 655360
WS_YP   = 1048576
MASK    = 0xF80007F8
SPIN    = 1 << 16
L_TAGS, L_ROUTE, L_CNT, L_RED1, L_RED2, L_END = 0, 16, 20, 64, 4608, 12800
C1, D1, X12, C2, D2 = 0x9E3779B8, 0x3C6EF372, 0xA5A5A5A8, 0x85EBCA6B, 0x27D4EB2F
XOR_OR = ((0xF0 ^ 0xCC) | 0xAA) & 0xFF

class P:
    nb1 = 5; th2 = 6; cpos = 10; relief = True; pfn = 10; pfat = 1
    xmod = ""; wmod = "nt"; dmod = "nt"; omod = "sc1"; fmod = ""
    rsleep = 12; b3 = False; w1 = True; adapt = 0; tlbw = 0; mchk = 16; touch = 1; dep5 = False; depk = True; bcopy = 1; bsleep = 0; ladder = "0,4,8,11,13,14,15"; droute = 0; dummy = True; npre = 0; xoff = 4; agg_dx = 0
    stamps = False; light = False
    na_pre = 64; na_res = 63
    agg_d0 = 0; agg_d1 = 0
    pre_sleep = 2; hint_max = 200; red_delay = 12
    align = 12; nanfix = True
    order = "entry,R1,Lstart,stubs,PF,R3,R2,L2,D,RED,AGG,cold,nan"

DOC = """;
;   workgroups 224..255 (helpers): R, a second R for the rows of the workgroups with fg%8==3, an aggregator wave
"""

def gen(p):
    S = {}
    cur = [None]
    def sec(name):
        S.setdefault(name, Asm()); cur[0] = S[name]
    def a(t): cur[0](t)
    class cold:
        def __init__(s, name="cold"): s.name = name
        def __enter__(s): s.back = cur[0]; sec(s.name)
        def __exit__(s, *e): cur[0] = s.back
    nl = [0]
    def label(b):
        nl[0] += 1; return f"{b}_{nl[0]}"
    st = p.stamps
    SV = 103
    def stamp(i):
        if st: a(f"s_memrealtime s[100:101]\ns_waitcnt lgkmcnt(0)\nv_writelane_b32 v{SV}, s100, {i}")
    def stamp_idx(expr_sub, reg):
        if st: a(f"""s_memrealtime s[100:101]
s_sub_u32 s60, {expr_sub}, s{reg}
s_min_u32 s60, s60, 11
s_mov_b32 m0, s60
s_waitcnt lgkmcnt(0)
v_writelane_b32 v{SV}, s100, m0""")
    def stamp_out():
        if not (st or p.light): return
        a(f"""s_waitcnt vmcnt(0) lgkmcnt(0)
s_lshl_b32 s20, s2, 4
s_add_u32 s20, s20, s3
s_lshl_b32 s20, s20, 6
s_add_u32 s20, s20, {STAMP_OFF}""")
        if p.light:
            a(f"""s_memrealtime s[98:99]
s_mov_b64 exec, 1
v_mov_b32 v3, 0
v_mov_b32 v4, s100
s_waitcnt lgkmcnt(0)
v_mov_b32 v5, s98
buffer_store_dwordx2 v[4:5], v3, s[28:31], s20 offen""")
        else:
            a(f"""s_mov_b64 exec, 0xffff
v_mbcnt_lo_u32_b32 v3, -1, 0
v_lshlrev_b32 v3, 2, v3
buffer_store_dword v{SV}, v3, s[28:31], s20 offen""")
    def ws_srd():
        a(f"s_mov_b32 s28, s18\ns_mov_b32 s29, s19\ns_mov_b32 s30, {WS_BYTES}\ns_mov_b32 s31, 0x20000")
    def tags_from_epoch():
        a(f"""s_mul_i32 s50, s46, {C1:#x}
s_add_u32 s50, s50, {D1:#x}
s_xor_b32 s51, s50, {X12:#x}
s_mul_i32 s52, s46, {C2:#x}
s_add_u32 s52, s52, {D2:#x}""")
    def read_tags(v):
        a(f"""v_mov_b32 v{v}, 0
ds_read_b32 v{v}, v{v} offset:{L_TAGS}
s_waitcnt lgkmcnt(0)
v_readfirstlane_b32 s26, v{v}
s_and_b32 s27, s26, 15""")
    def poll_result(dst, tag, off, cnt):
        l1, l2, l2b, l3 = label("L_rp"), label("L_rf"), label("L_rg"), label("L_rd")
        a(f"""s_and_b32 s{off}, s2, 7
s_lshl_b32 s{off}, s{off}, 13
s_add_u32 s{off}, s{off}, {WS_RES}
s_mov_b32 s{cnt}, {p.na_res}
{l1}:
s_load_dwordx4 s[{dst}:{dst+3}], s[18:19], s{off}
s_add_u32 s{off}, s{off}, 128
s_sub_u32 s{cnt}, s{cnt}, 1
s_cbranch_scc1 {l2}
s_waitcnt lgkmcnt(0)
s_cmp_lg_u32 s{dst+3}, s{tag}
s_cbranch_scc1 {l1}
{l3}:""")
        with cold():
            a(f"""; the aggregator sits on another die: read the write-through copy past the caches
{l2}:
s_and_b32 s{off}, s2, 7
s_lshl_b32 s{off}, s{off}, 8
s_add_u32 s{off}, s{off}, {WS_RESF}
s_mov_b32 s{cnt}, {SPIN}
{l2b}:
s_waitcnt lgkmcnt(0)
s_load_dwordx4 s[{dst}:{dst+3}], s[18:19], s{off} glc
s_waitcnt lgkmcnt(0)
s_cmp_eq_u32 s{dst+3}, s{tag}
s_cbranch_scc1 {l3}
s_sleep 8
s_sub_u32 s{cnt}, s{cnt}, 1
s_cbranch_scc0 {l2b}
s_and_b32 s{dst}, s{dst}, 0x7ff07ff
s_branch {l3}""")
    def selectors(t=3):
        a(f"""; v16..v23: byte selectors that place one bf16 at element (lane&7) of an 8-element A fragment
v_and_b32 v{t}, 1, v0
v_cmp_eq_u32 vcc, 1, v{t}
v_mov_b32 v{t+1}, 0x0c0c0100
v_mov_b32 v{t+2}, 0x01000c0c
v_mov_b32 v{t+3}, 0x0c0c0302
v_mov_b32 v{t+4}, 0x03020c0c
v_cndmask_b32 v{t+1}, v{t+1}, v{t+2}, vcc
v_cndmask_b32 v{t+2}, v{t+3}, v{t+4}, vcc
v_bfe_u32 v{t}, v0, 1, 2
v_mov_b32 v{t+3}, 0x0c0c0c0c""")
        for d in range(4):
            a(f"""v_cmp_eq_u32 vcc, {d}, v{t}
s_nop 1
v_cndmask_b32 v{16+d}, v{t+3}, v{t+1}, vcc
v_cndmask_b32 v{20+d}, v{t+3}, v{t+2}, vcc""")
    def perms(dst, src, par):
        for d in range(4): a(f"v_perm_b32 v{dst+d}, v{src}, v{src}, v{16+4*par+d}")
    def fg_of_wg():
        a(f"""s_add_u32 s20, s2, {p.xoff}
s_and_b32 s20, s20, 7
s_mul_i32 s20, s20, 7
s_lshr_b32 s21, s2, 5
s_add_u32 s32, s20, s21
s_bfe_u32 s33, s2, 0x20003           ; s33 = j""")
    def lds_init():
        a(f"""v_mov_b32 v88, 0
v_mov_b32 v84, -1
v_mov_b32 v85, 0
s_mov_b64 exec, 1
ds_write_b64 v88, v[84:85] offset:{L_ROUTE}""")

    sec("entry")
    if st: a(f"v_mov_b32 v{SV}, 0")
    if p.light: a("s_memrealtime s[100:101]")
    stamp(0)
    a(f"""s_load_dwordx16 s[4:19], s[0:1], 0
v_readfirstlane_b32 s3, v0
s_cmp_ge_u32 s2, 256
s_cbranch_scc1 L_end
v_and_b32 v0, 63, v0
s_lshr_b32 s3, s3, 6                 ; wave
s_cmp_ge_u32 s3, 5
s_cbranch_scc1 L_stubD
s_cmp_lg_u32 s3, 0
s_cbranch_scc1 L_Lstart""")

    sec("R1")
    a("s_mov_b32 s35, s2")
    if p.relief:
        fg_of_wg()
        a("""; lines whose address bits 9:7 are 3 stream more slowly through one CU: a helper routes these workgroups' rows
s_cmp_ge_u32 s2, 224
s_cselect_b32 s21, 0, s32
s_and_b32 s21, s21, 7
s_cmp_eq_u32 s21, 3
s_cbranch_scc1 L_R3""")
    a("""L_R1:
s_setprio 3
s_lshl_b32 s43, s35, 14
s_add_u32 s44, s43, 4096
v_lshlrev_b32 v1, 4, v0
v_add_u32 v90, s44, v1
v_add_u32 v91, 8192, v90""")
    lds_init()
    a("s_mov_b64 exec, -1\ns_waitcnt lgkmcnt(0)")
    stamp(8)
    for i in range(16):
        a(f"global_load_dwordx4 v[{10+4*i}:{13+4*i}], v{90+i//8}, s[4:5] offset:{(i%8)*1024-4096} {p.xmod}")
        if i == 1:
            a("global_load_dwordx4 v[2:5], v1, s[6:7]\nglobal_load_dwordx4 v[6:9], v1, s[6:7] offset:1024")
    stamp(9)
    a(f"s_load_dword s46, s[18:19], {WS_E}\ns_barrier\ns_branch L_R2")

    sec("stubs")
    a(f"""L_stubD:
s_cmp_ge_u32 s2, 224
s_cbranch_scc1 L_stubA
""" + ("s_cmp_eq_u32 s3, 5\ns_cbranch_scc1 L_PF\n" if p.pfn < 16 else "") + f"""s_cmp_lg_u32 s3, 8
s_cbranch_scc1 L_nocpf
; pull the kernel's code into this die's L2
s_getpc_b64 s[22:23]
L_pc:
v_lshlrev_b32 v1, 7, v0
v_min_u32 v1, L_hot_end-L_pc, v1
global_load_dword v80, v1, s[22:23]
L_nocpf:
s_barrier                            ; A
s_branch L_D
L_stubA:
s_cmp_lg_u32 s3, 5
s_cbranch_scc1 L_end
L_stubH:
s_waitcnt lgkmcnt(0)
s_load_dword s46, s[18:19], {WS_E}
s_waitcnt lgkmcnt(0)
s_barrier                            ; A (the epoch word is read before this workgroup publishes)
s_cmp_eq_u32 s3, 5
s_cbranch_scc1 L_AGG
s_branch L_RED
L_stubR:
s_cmp_ge_u32 s3, 3
s_cbranch_scc0 L_stubH
""")
    if not p.relief: a("s_endpgm")
    else: a(f"""s_cmp_lg_u32 s3, 3
s_cbranch_scc1 L_end
s_add_u32 s20, s2, {p.xoff + 3}
s_and_b32 s20, s20, 7
s_cmp_eq_u32 s20, 7
s_cbranch_scc1 L_end
s_lshl_b32 s20, s20, 5
s_and_b32 s35, s2, 31
s_add_u32 s35, s35, s20
s_branch L_R1""")

    sec("PF")
    if p.pfn < 16:
        nm = 16 - p.pfn
        a("L_PF:")
        fg_of_wg()
        a(f"""; a CU keeps only half as many lines with address bits 9:7 == 3 in flight: the other workgroups of the die pull
s_sub_u32 s22, 3, s20
s_and_b32 s22, s22, 7
s_cmp_gt_u32 s21, s22
s_subb_u32 s23, s21, 0
s_cmp_eq_u32 s21, s22
s_cselect_b32 s23, 7, s23
s_cmp_eq_u32 s22, 7
s_cselect_b32 s23, 7, s23
s_cmp_ge_u32 s23, {nm}
s_cbranch_scc1 L_nocpf
s_add_u32 s23, s23, {p.pfn}          ; m
s_lshr_b32 s24, s23, 2
s_lshl_b32 s24, s24, 4
s_and_b32 s23, s23, 3
s_add_u32 s23, s23, s24
s_lshl_b32 s24, s33, 8
s_add_u32 s23, s23, s24
s_mul_i32 s23, s23, 7168
s_add_u32 s22, s22, s20
s_lshl_b32 s22, s22, 7
s_add_u32 s23, s23, s22
v_bfe_u32 v1, v0, 3, 2
v_mul_u32_u24 v1, {64*7168}, v1
v_bfe_u32 v2, v0, 1, 2
v_mul_u32_u24 v2, {4*7168}, v2
v_add3_u32 v1, v1, v2, s23
v_and_b32 v2, 1, v0
v_cmp_eq_u32 vcc, 0, v2
s_waitcnt lgkmcnt(0)
v_mov_b32 v4, s10
v_mov_b32 v5, s8
v_mov_b32 v6, s11
v_mov_b32 v7, s9
v_cndmask_b32 v4, v4, v5, vcc
v_cndmask_b32 v5, v6, v7, vcc
v_add_co_u32 v4, vcc, v4, v1
s_nop 1
v_addc_co_u32 v5, vcc, 0, v5, vcc
s_mov_b32 exec_hi, 0
s_barrier                            ; A""")
        a("global_load_dword v80, v[4:5], off\ns_mov_b64 exec, -1")
        a("s_branch L_D")
    else: a("s_nop 0")

    sec("R3")
    if not p.relief: a('s_nop 0')
    def r3():
        a(f"""L_R3:
s_lshr_b32 s21, s32, 3
s_lshl_b32 s21, s21, 2
s_add_u32 s21, s21, s33
s_lshl_b32 s48, s21, 3
s_add_u32 s48, s48, {WS_ARR}""")
        lds_init()
        a(f"""s_waitcnt lgkmcnt(0)
s_load_dword s46, s[18:19], {WS_E}
s_barrier                            ; A""")
        ws_srd()
        a("s_waitcnt lgkmcnt(0)")
        tags_from_epoch()
        a(f"""v_mov_b32 v84, s52
ds_write_b32 v88, v84 offset:{L_TAGS}
v_mov_b32 v74, s50
v_mov_b32 v75, s51
buffer_store_dwordx2 v[74:75], v88, s[28:31], s48 offen sc1""")
        poll_result(40, 52, 44, 45)
        a(f"""v_mov_b32 v84, s40
ds_write_b32 v88, v84 offset:{L_ROUTE}
s_barrier                            ; 2
s_barrier                            ; 4""")
        if p.b3: a("s_barrier")
        stamp_out()
        a("s_endpgm")
    if p.relief: r3()

    sec("R2")
    a("L_R2:")
    ws_srd()
    a(f"""s_mov_b32 s24, s14
s_mov_b32 s25, s15
s_mov_b32 s26, {X_BYTES}
s_mov_b32 s27, 0x20000
; row held by a lane after the reduction: lane bit5 -> row bit0, bit4 -> bit1, bit3 -> bit2
v_lshrrev_b32 v82, 5, v0
v_bfe_u32 v83, v0, 4, 1
v_lshl_or_b32 v82, v83, 1, v82
v_bfe_u32 v83, v0, 3, 1
v_lshl_or_b32 v82, v83, 2, v82
s_lshl_b32 s47, s35, 3
s_sub_u32 s47, 2047, s47
v_sub_u32 v82, s47, v82              ; 2047 - token index
v_mul_u32_u24 v92, {KSTR}, v0        ; replica stride
""" + (f"v_lshlrev_b32 v89, 2, v0\ns_and_b32 s49, s2, 7\ns_lshl_b32 s49, s49, 7\ns_add_u32 s49, s49, {WS_DONE}\n" if p.adapt else "") + f"""s_lshl_b32 s48, s35, 3
s_add_u32 s48, s48, {WS_KEYS}""")
    for r in range(8): a(f"v_mov_b32 v{74+r}, 0")
    if p.nanfix: a("v_mov_b32 v93, 0x207")
    a("s_waitcnt lgkmcnt(0)")
    stamp(1)
    tags_from_epoch()
    a(f"""v_mov_b32 v84, s52
s_mov_b64 exec, 1
ds_write_b32 v88, v84 offset:{L_TAGS}
s_mov_b64 exec, -1""")
    def dots(r, lo, hi):
        for q in range(lo, hi): a(f"v_dot2c_f32_bf16 v{74+r}, v{10+8*r+q}, v{2+q}")
    for r in range(6):
        a(f"s_waitcnt vmcnt({14-2*r})"); dots(r, 0, 8)
    a("s_waitcnt vmcnt(2)"); dots(6, 0, 8)
    a("""v_permlane32_swap_b32 v74, v75
v_permlane32_swap_b32 v76, v77
v_permlane32_swap_b32 v78, v79
v_add_f32 v74, v74, v75
v_add_f32 v76, v76, v77
v_add_f32 v78, v78, v79
s_waitcnt vmcnt(1)""")
    dots(7, 0, 4)
    a("v_permlane16_swap_b32 v74, v76\ns_waitcnt vmcnt(0)")
    dots(7, 4, 8)
    stamp(2)
    a("""v_add_f32 v74, v74, v76
s_nop 1
v_permlane32_swap_b32 v80, v81
v_add_f32_dpp v75, v74, v74 row_ror:8 row_mask:0xf bank_mask:0xf
v_add_f32 v80, v80, v81
s_nop 1
v_permlane16_swap_b32 v78, v80
v_add_f32 v78, v78, v80
s_nop 1
v_add_f32_dpp v75, v78, v78 row_ror:8 row_mask:0xf bank_mask:0xc
s_nop 1
v_add_f32_dpp v75, v75, v75 row_half_mirror row_mask:0xf bank_mask:0xf
s_nop 1
v_add_f32_dpp v75, v75, v75 quad_perm:[1,0,3,2] row_mask:0xf bank_mask:0xf
s_nop 1
v_add_f32_dpp v79, v75, v75 quad_perm:[2,3,0,1] row_mask:0xf bank_mask:0xf
v_cmp_u_f32 vcc, v79, v79
v_cvt_pk_bf16_f32 v76, v79, v79
v_ashrrev_i32 v77, 31, v76
v_or_b32 v77, 0x80000000, v77
v_xor_b32 v76, v76, v77
v_lshrrev_b32 v76, 16, v76
v_cndmask_b32 v76, v76, 0, vcc
v_lshl_or_b32 v76, v76, 11, v82
s_nop 1
v_max_u32_dpp v74, v76, v76 row_ror:8 row_mask:0xf bank_mask:0xf
v_max_u32_dpp v78, v76, v76 row_ror:8 row_mask:0xf bank_mask:0xf
v_min_u32_dpp v75, v76, v76 row_ror:8 row_mask:0xf bank_mask:0xf
v_min_u32_dpp v77, v76, v76 row_ror:8 row_mask:0xf bank_mask:0xf
s_nop 0
v_permlane16_swap_b32 v74, v78
v_permlane16_swap_b32 v75, v77
v_min_u32 v80, v74, v78
v_max_u32 v76, v74, v78
v_max_u32 v74, v74, v78
v_max3_u32 v81, v75, v77, v80
v_max3_u32 v75, v75, v77, v80
v_permlane32_swap_b32 v74, v76
s_nop 0
v_permlane32_swap_b32 v75, v81
v_min_u32 v78, v74, v76
v_max_u32 v74, v74, v76
v_max3_u32 v75, v75, v81, v78
v_xor_b32 v74, s50, v74
v_xor_b32 v75, s51, v75
s_mov_b64 exec, 0xff
buffer_store_dwordx2 v[74:75], v92, s[28:31], s48 offen sc1
s_cmp_lt_u32 s2, 224
s_cbranch_scc1 L_Rnob""")
    if p.depk: a("s_waitcnt vmcnt(0)")
    a("""s_barrier
L_Rnob:""")
    stamp(3)
    if p.nanfix:
        a("""s_mov_b64 exec, -1
v_cmp_class_f32 vcc, v79, v93
s_cbranch_vccnz L_nanfix
L_nanfix_done:""")
        with cold("nan"):
            a("""L_hot_end:
L_nanfix:
s_mov_b32 s54, 0x07060302""")
            for r in range(10, 74, 2):
                a(f"""v_and_b32 v84, 0xffff0000, v{r}
v_lshlrev_b32 v85, 16, v{r}
v_and_b32 v86, 0xffff0000, v{r+1}
v_lshlrev_b32 v87, 16, v{r+1}
v_fma_f32 v84, v84, 0, v84
v_fma_f32 v85, v85, 0, v85
v_fma_f32 v86, v86, 0, v86
v_fma_f32 v87, v87, 0, v87
v_perm_b32 v{r}, v84, v85, s54
v_perm_b32 v{r+1}, v86, v87, s54""")
            a("s_branch L_nanfix_done")
    else:
        with cold("nan"): a("L_hot_end:")
    a("s_mov_b64 exec, 1")
    poll_result(40, 52, 44, 45)
    a(f"""v_mov_b32 v84, s40
ds_write_b32 v88, v84 offset:{L_ROUTE}
s_mov_b64 exec, -1
s_setprio 0
s_and_b32 s41, s40, 0x7ff
s_bfe_u32 s40, s40, 0xb0010
s_lshl_b32 s42, s35, 3
s_lshl_b32 s43, s35, 14
; row offsets; routed rows are written by the reducers (an out-of-range offset drops the store)""")
    for r in range(8):
        a(f"""s_cmp_eq_u32 s42, s40
s_cselect_b32 s{60+r}, 0x40000000, s43
s_cmp_eq_u32 s42, s41
s_cselect_b32 s{60+r}, 0x40000000, s{60+r}""")
        if r < 7: a("s_add_u32 s43, s43, 2048\ns_add_u32 s42, s42, 1")
    stamp(4)
    a("s_cmp_ge_u32 s2, 224\ns_cbranch_scc1 L_rstore\ns_barrier                            ; 2\ns_barrier                            ; 4" + ("\ns_barrier                            ; 5" if p.dep5 else ""))
    def bulk(mod):
        for r in range(8):
            a(f"""buffer_store_dwordx4 v[{10+8*r}:{13+8*r}], v1, s[24:27], s{60+r} offen {mod}
buffer_store_dwordx4 v[{14+8*r}:{17+8*r}], v1, s[24:27], s{60+r} offen offset:1024 {mod}""")
    if p.adapt:
        a(f"""; late workgroups leave their rows in L2 (written back at the end) instead of competing with the last hand-off
s_mov_b32 exec_lo, 0x0fffffff
s_mov_b32 exec_hi, 0
buffer_load_dword v84, v89, s[28:31], s49 offen sc1
s_waitcnt vmcnt(0)
v_cmp_eq_u32 vcc, s52, v84
s_mov_b64 exec, -1
s_bcnt1_i32_b64 s54, vcc
s_cmp_ge_u32 s54, {p.adapt}
s_cbranch_scc1 L_rlate""")
        with cold(): a("L_rlate:"); bulk(""); a("s_endpgm")
    if p.rsleep: a(f"s_sleep {p.rsleep}")
    a("L_rstore:")
    stamp(5)
    bulk(p.omod)
    stamp(6)
    if p.b3: a("s_cmp_ge_u32 s2, 224\ns_cbranch_scc1 L_rfin\ns_barrier\nL_rfin:")
    if st: a("s_waitcnt vmcnt(0)"); stamp(7)
    stamp_out()
    a("s_endpgm")

    sec("Lstart")
    a("""L_Lstart:
s_cmp_ge_u32 s2, 224
s_cbranch_scc1 L_stubR""")
    fg_of_wg()
    a(f"""v_lshrrev_b32 v1, 4, v0              ; g
v_and_b32 v2, 15, v0
s_sub_u32 s34, s3, 1                 ; w
s_lshl_b32 s20, s33, 8
s_lshl_b32 s21, s34, 6
s_add_u32 s20, s20, s21
s_mul_i32 s21, s20, 7168
s_lshl_b32 s22, s32, 7
s_add_u32 s21, s21, s22
v_cmp_gt_u32 vcc, 8, v2
v_and_b32 v3, 7, v2
v_lshlrev_b32 v3, 4, v3
v_mul_u32_u24 v4, {4*7168}, v1
v_add3_u32 v3, v3, v4, s21
s_mov_b32 s22, 7168
s_mov_b32 s23, 0
s_mov_b32 s24, {7168*13}
s_mov_b32 s25, 0
s_waitcnt lgkmcnt(0)
v_mov_b32 v4, s10
v_mov_b32 v5, s8
v_mov_b32 v6, s11
v_mov_b32 v7, s9
v_cndmask_b32 v4, v4, v5, vcc
v_cndmask_b32 v5, v6, v7, vcc
v_add_co_u32 v4, vcc, v4, v3
v_mov_b32 v6, 0
v_mov_b32 v7, 1
v_addc_co_u32 v5, vcc, 0, v5, vcc""")
    stamp(8)
    a("s_barrier                            ; A")
    def gload(m):
        a(f"global_load_dwordx4 v[{32+4*m}:{35+4*m}], v[4:5], off {p.wmod}")
        if m < 15: a(f"v_lshl_add_u64 v[4:5], v[4:5], 0, s[{'24:25' if (m+1) % 4 == 0 else '22:23'}]")
    for m in range(p.nb1): gload(m)
    stamp(1); a("s_branch L_L2"); sec("L2"); a("L_L2:")
    selectors(8)
    ws_srd()
    a(f"""s_lshl_b32 s20, s20, 1
v_bfe_u32 v8, v2, 1, 2
v_lshlrev_b32 v9, 8, v8
v_and_b32 v8, 1, v2
v_lshl_or_b32 v9, v8, 7, v9
v_and_b32 v8, 1, v1
v_lshl_or_b32 v9, v8, 6, v9
v_lshrrev_b32 v8, 1, v1
v_lshl_or_b32 v9, v8, 5, v9
v_lshrrev_b32 v8, 3, v2
v_lshl_or_b32 v1, v8, 4, v9
v_lshlrev_b32 v0, 4, v0              ; lane*16
s_lshl_b32 s21, s34, 10
v_add_u32 v2, s21, v0
s_lshl_b32 s12, s32, 2
s_add_u32 s12, s12, s33
s_lshl_b32 s12, s12, 10
s_add_u32 s12, s12, {WS_PREA}
s_add_u32 s4, s4, s20
s_addc_u32 s5, s5, 0
s_mov_b32 s21, {SPIN*16}""")
    if p.nb1 < p.th2: a(f"s_waitcnt vmcnt({p.nb1-1})")
    def xloads():
        a(f"""s_lshr_b32 s9, s8, 5
s_and_b32 s9, s9, 0x3ff800
s_load_dwordx16 s[36:51], s[4:5], s9
s_load_dwordx16 s[52:67], s[4:5], s9 offset:64
s_lshl_b32 s9, s8, 11
s_and_b32 s9, s9, 0x3ff800
s_load_dwordx16 s[68:83], s[4:5], s9
s_load_dwordx16 s[84:99], s[4:5], s9 offset:64
ds_read_b32 v3, v6 offset:{L_TAGS}""")
    def tail_loads(m0):
        for m in range(m0, 16):
            if p.th2 and m >= p.th2: a(f"s_waitcnt vmcnt({p.th2-1})")
            gload(m)
    assert p.cpos <= p.mchk
    for m in range(p.nb1, p.mchk + 1):
        if m == p.cpos: a(f"s_mov_b64 exec, 1\nds_add_u32 v6, v7 offset:{L_CNT}\ns_mov_b64 exec, -1")
        if m == p.mchk: break
        if m == p.mchk - 1 and p.mchk < 16: a(f"ds_read_b32 v3, v6 offset:{L_ROUTE}")
        if p.th2 and m >= p.th2: a(f"s_waitcnt vmcnt({p.th2-1})")
        gload(m)
    if p.mchk < 16:
        a("""s_waitcnt lgkmcnt(0)
v_readfirstlane_b32 s8, v3
s_cmp_lg_u32 s8, -1
s_cbranch_scc1 L_Lknown""")
        with cold():
            a("; a slow workgroup: the route is already known, fetch the two x slices under the rest of the stream\nL_Lknown:")
            xloads(); tail_loads(p.mchk); stamp(2); stamp(3); a("s_branch L_Lx")
        tail_loads(p.mchk)
    stamp(2)
    a(f"""L_Lroute:
ds_read_b32 v3, v6 offset:{L_ROUTE}
s_sub_u32 s21, s21, 1
s_cbranch_scc1 L_Lroute_done
s_waitcnt lgkmcnt(0)
v_readfirstlane_b32 s8, v3
s_cmp_eq_u32 s8, -1
s_cbranch_scc1 L_Lroute
L_Lroute_done:""")
    stamp(3)
    xloads()
    a("""L_Lx:
s_mov_b64 exec, 0xff
s_waitcnt lgkmcnt(0)
v_readfirstlane_b32 s26, v3""")
    stamp(4)
    for g in range(4):
        for t in range(2):
            for q in range(4):
                sr = 36 + 32*t + (16*q + 4*g)//2
                a(f"v_mov_b64 v[{8+2*q}:{9+2*q}], s[{sr}:{sr+1}]")
            a("s_lshl_b64 exec, exec, 8" if (g, t) != (3, 1) else "s_mov_b64 exec, -1")
    perms(24, 8, 0)
    lad = sorted(int(x) for x in p.ladder.split(","))
    for m in range(16):
        c = 24 + 4*(m & 1); nx = 24 + 4*((m+1) & 1)
        if m < 15: perms(nx, 8 + ((m+1) >> 1), (m+1) & 1)
        elif 15 not in lad: a("s_nop 0")
        if m in lad:
            nxt = [x for x in lad if x > m]
            a(f"s_waitcnt vmcnt({16 - (nxt[0] if nxt else 16)})")
            if not nxt: stamp(5)
        a(f"v_mfma_f32_16x16x32_bf16 v[4:7], v[{c}:{c+3}], v[{32+4*m}:{35+4*m}], {'0' if m == 0 else 'v[4:7]'}")
    a(f"""s_cmp_eq_u32 s34, 0
s_cbranch_scc1 L_L0
s_nop 5
ds_write_b128 v2, v[4:7] offset:{L_RED1}
s_waitcnt lgkmcnt(0)
s_barrier                            ; 2""")
    stamp(6)
    stamp_out()
    a(f"""s_endpgm
L_L0:
s_and_b32 s27, s26, 15
s_add_u32 s14, s27, 5
s_add_u32 s15, s27, 10
s_add_u32 s16, s27, 15
s_barrier                            ; 2""")
    stamp(6)
    a(f"""ds_read_b128 v[8:11], v0 offset:{L_RED1+1024}
ds_read_b128 v[12:15], v0 offset:{L_RED1+2048}
ds_read_b128 v[24:27], v0 offset:{L_RED1+3072}
s_waitcnt lgkmcnt(2)
v_pk_add_f32 v[4:5], v[4:5], v[8:9]
v_pk_add_f32 v[6:7], v[6:7], v[10:11]
s_waitcnt lgkmcnt(0)
v_pk_add_f32 v[12:13], v[12:13], v[24:25]
v_pk_add_f32 v[14:15], v[14:15], v[26:27]
v_pk_add_f32 v[4:5], v[4:5], v[12:13]
v_pk_add_f32 v[6:7], v[6:7], v[14:15]
v_bfi_b32 v4, 15, s27, v4
v_bfi_b32 v5, 15, s14, v5
v_bfi_b32 v6, 15, s15, v6
v_bfi_b32 v7, 15, s16, v7
buffer_store_dwordx4 v[4:7], v1, s[28:31], s12 offen""")
    stamp(7)
    if p.b3: a("s_barrier")
    a("s_barrier                            ; 4")
    if p.bcopy == 2:
        a(f"s_add_u32 s12, s12, {WS_PREB-WS_PREA}")
        if p.bsleep: a(f"s_sleep {p.bsleep}")
        a("buffer_store_dwordx4 v[4:7], v1, s[28:31], s12 offen sc1")
    stamp_out()
    a("s_endpgm")

    sec("D")
    a("L_D:")
    fg_of_wg()
    a(f"""v_lshrrev_b32 v1, 4, v0              ; g
v_and_b32 v2, 15, v0                 ; jj
s_sub_u32 s34, s3, 5
v_lshlrev_b32 v64, 13, v1
v_lshl_or_b32 v64, v2, 4, v64
s_lshl_b32 s20, s32, 6
s_lshl_b32 s21, s34, 4
s_add_u32 s20, s20, s21
s_lshl_b32 s20, s20, 11
s_lshl_b32 s21, s33, 9
s_add_u32 s20, s20, s21
s_add_u32 s21, s20, 4096
s_waitcnt lgkmcnt(0)
s_mov_b32 s36, s12
s_mov_b32 s37, s13
s_mov_b32 s38, {W_BYTES}
s_mov_b32 s39, 0x20000""")
    ws_srd()
    if p.touch == 1:
        a(f"""s_cmp_lg_u32 s34, 1
s_cbranch_scc1 L_notouch
s_lshr_b32 s22, s2, 3
s_mul_i32 s22, s22, 3
v_add_u32 v8, s22, v0
v_min_u32 v8, 63, v8
v_lshlrev_b32 v8, 7, v8
s_and_b32 s22, s2, 7
s_lshl_b32 s22, s22, 13
s_add_u32 s22, s22, {WS_RES}
s_mov_b64 exec, 7
buffer_load_dword v80, v8, s[28:31], s22 offen sc1
s_mov_b64 exec, -1
L_notouch:""")
    if p.tlbw:
        a(f"""s_cmp_lg_u32 s34, 2
s_cbranch_scc1 L_notlb
v_lshlrev_b32 v8, 21, v0
s_mov_b64 exec, 0xf
buffer_load_dword v80, v8, s[36:39], 0 offen""")
        if p.tlbw > 1: a("s_mov_b64 exec, 3\nglobal_load_dword v81, v8, s[14:15]")
        a("s_mov_b64 exec, -1\nL_notlb:")
    selectors()
    a(f"""v_lshlrev_b32 v65, 4, v0             ; lane*16
s_lshl_b32 s22, s34, 11
v_add_u32 v66, s22, v65
s_lshl_b32 s22, s34, 10
v_add_u32 v67, s22, v65
s_lshl_b32 s23, s32, 2
s_add_u32 s23, s23, s33
s_lshl_b32 s23, s23, 11
s_add_u32 s23, s23, s22
s_add_u32 s23, s23, {WS_YP}
v_lshrrev_b32 v3, 1, v2
v_lshlrev_b32 v68, 7, v3
v_lshrrev_b32 v3, 1, v1
v_lshl_or_b32 v68, v3, 6, v68
v_and_b32 v3, 1, v2
v_and_b32 v4, 1, v1
v_lshl_or_b32 v3, v3, 1, v4
v_lshl_or_b32 v68, v3, 4, v68
v_mul_u32_u24 v71, 5, v3
s_and_b32 s48, s2, 7
s_lshl_b32 s48, s48, 7
s_lshr_b32 s49, s2, 3
s_lshl_b32 s49, s49, 2
s_add_u32 s48, s48, s49
s_add_u32 s48, s48, {WS_DONE}
s_lshl_b32 s22, s34, 8
v_lshl_add_u32 v69, v0, 2, s22
v_and_b32 v4, 3, v0
v_mul_u32_u24 v70, 5, v4
s_lshl_b32 s41, s32, 12
s_add_u32 s41, s41, {WS_PREA}
s_mov_b32 s42, {p.na_pre}
s_mov_b32 s43, 0xbfb8aa3b            ; -log2(e)
s_lshl_b32 s44, s33, 10
s_add_u32 s44, s44, s41
v_mov_b32 v3, 0
s_mov_b32 s22, {SPIN*4}
L_Dcnt:
s_sleep 1
ds_read_b32 v4, v3 offset:{L_CNT}
s_sub_u32 s22, s22, 1
s_cbranch_scc1 L_Dcnt_done
s_waitcnt lgkmcnt(0)
v_readfirstlane_b32 s45, v4
s_cmp_lt_u32 s45, 4
s_cbranch_scc1 L_Dcnt
L_Dcnt_done:
; (they also bring the mailbox lines into L2)""")
    for q in range(4): a(f"buffer_load_dword v{8+q}, v69, s[28:31], s41 offen offset:{q*1024} sc1")
    if p.dummy: a("s_waitcnt vmcnt(0)")
    stamp(1)
    for i in range(8):
        if p.droute and i == p.npre:
            a(f"""; the remaining down loads wait for the route: until then the slower workgroups' gate/up loads have the memory system
L_Droute:
s_sleep 1
ds_read_b32 v4, v3 offset:{L_ROUTE}
s_sub_u32 s22, s22, 1
s_cbranch_scc1 L_Droute_done
s_waitcnt lgkmcnt(0)
v_readfirstlane_b32 s45, v4
s_cmp_eq_u32 s45, -1
s_cbranch_scc1 L_Droute
L_Droute_done:""")
        m, half = i >> 1, i & 1
        a(f"buffer_load_dwordx4 v[{32+4*i}:{35+4*i}], v64, s[36:39], s{20 + (m>>1)} offen offset:{(m&1)*2048+half*256} {p.dmod}")
    stamp(2)
    a(f"""s_barrier                            ; 2
ds_read_b32 v72, v3 offset:{L_TAGS}
s_waitcnt lgkmcnt(0)
v_readfirstlane_b32 s27, v72
v_add_u32 v70, v70, v72
v_add_u32 v71, v71, v72
v_and_b32 v70, 15, v70""")
    if p.pre_sleep: a(f"s_sleep {p.pre_sleep}")
    stamp(3)
    a("L_poll2:")
    for q in range(4):
        a(f"buffer_load_dword v{8+q}, v69, s[28:31], s41 offen offset:{q*1024} sc1")
    a("s_sub_u32 s42, s42, 1\ns_cbranch_scc1 L_p2sw\ns_waitcnt vmcnt(0)")
    stamp_idx(p.na_pre+7, 42)
    a(f"""v_xor_b32 v8, v8, v70
v_xor_b32 v9, v9, v70
v_xor_b32 v10, v10, v70
v_xor_b32 v11, v11, v70
v_add_f32 v14, v8, v9
v_or3_b32 v12, v8, v9, v10
v_add_f32 v15, v10, v11
v_bitop3_b32 v12, v12, v11, 15 bitop3:0xa8
v_add_f32 v8, v14, v15
v_cvt_pk_bf16_f32 v8, v8, v8
v_and_b32 v8, 0xffff0000, v8
v_cmp_ne_u32 vcc, 0, v12
v_mul_f32 v9, s43, v8
s_cbranch_vccnz L_poll2
L_poll2_done:""")
    if p.b3: a("s_barrier")
    stamp(4)
    a(f"""v_exp_f32 v9, v9
s_nop 0
v_add_f32 v9, 1.0, v9
v_rcp_f32 v9, v9
s_nop 0
v_mul_f32 v9, v8, v9
v_cvt_pk_bf16_f32 v9, v9, v9
v_and_b32 v9, 0xffff0000, v9
v_mul_f32_dpp v10, v8, v9 row_shl:4 row_mask:0xf bank_mask:0x5
s_nop 0
v_mul_f32_dpp v10, v9, v8 row_shr:4 row_mask:0xf bank_mask:0xa
s_nop 1
v_mov_b32_dpp v8, v10 quad_perm:[0,0,0,0] row_mask:0xf bank_mask:0xf
v_mov_b32_dpp v11, v10 quad_perm:[1,1,1,1] row_mask:0xf bank_mask:0xf
v_mov_b32_dpp v9, v10 quad_perm:[2,2,2,2] row_mask:0xf bank_mask:0xf
v_cvt_pk_bf16_f32 v8, v8, v11
v_mov_b32_dpp v12, v10 quad_perm:[3,3,3,3] row_mask:0xf bank_mask:0xf""")
    perms(24, 8, 0)
    a("v_cvt_pk_bf16_f32 v9, v9, v12        ; m = 2, 3")
    for m in range(4):
        c = 24 + 4*(m & 1); nx = 24 + 4*((m+1) & 1)
        if m < 3: perms(nx, 8 + ((m+1) >> 1), (m+1) & 1)
        for half in range(2):
            acc = f"v[{4+8*half}:{7+8*half}]"
            i = 2*m + half
            a(f"v_mfma_f32_16x16x32_bf16 {acc}, v[{c}:{c+3}], v[{32+4*i}:{35+4*i}], {'0' if m == 0 else acc}")
    a(f"""s_cmp_ge_u32 s34, 2
s_nop 5
ds_write_b128 v66, v[4:7] offset:{L_RED2}
ds_write_b128 v66, v[12:15] offset:{L_RED2+1024}
s_waitcnt lgkmcnt(0)
s_barrier                            ; 4""")
    stamp(5)
    a(f"""s_cbranch_scc1 L_D_copy
ds_read_b128 v[4:7], v67 offset:{L_RED2}
ds_read_b128 v[8:11], v67 offset:{L_RED2+2048}
ds_read_b128 v[12:15], v67 offset:{L_RED2+4096}
ds_read_b128 v[24:27], v67 offset:{L_RED2+6144}
s_waitcnt lgkmcnt(2)
v_pk_add_f32 v[4:5], v[4:5], v[8:9]
v_pk_add_f32 v[6:7], v[6:7], v[10:11]
s_waitcnt lgkmcnt(0)
v_pk_add_f32 v[12:13], v[12:13], v[24:25]
v_pk_add_f32 v[14:15], v[14:15], v[26:27]
v_pk_add_f32 v[4:5], v[4:5], v[12:13]
v_pk_add_f32 v[6:7], v[6:7], v[14:15]
v_bfi_b32 v4, 15, v71, v4
buffer_store_dwordx4 v[4:7], v68, s[28:31], s23 offen sc1""")
    if p.dep5: stamp(6); a("s_waitcnt vmcnt(0)\ns_barrier")
    a("L_D_done:")
    if not p.dep5: stamp(6)
    if st: a("s_waitcnt vmcnt(0)"); stamp(7)
    stamp_out()
    a(f"""s_endpgm
L_D_copy:""")
    if p.dep5: a("s_barrier                            ; 5")
    a(f"""s_cmp_lg_u32 s34, 3
s_cbranch_scc1 L_D_copy2
s_mov_b64 exec, 1
buffer_store_dword v72, v3, s[28:31], s48 offen
s_branch L_D_done
L_D_copy2:""")
    if p.bcopy == 1: a(f"""buffer_load_dwordx4 v[8:11], v65, s[28:31], s44 offen sc1
s_add_u32 s45, s44, {WS_PREB-WS_PREA}
s_waitcnt vmcnt(0)
buffer_store_dwordx4 v[8:11], v65, s[28:31], s45 offen sc1""")
    a("s_branch L_D_done")
    with cold():
        a(f"""; the local mailbox never filled: a peer sits on another die; publish our block write-through, then read that mailbox
L_p2sw:
s_waitcnt vmcnt(0)
s_cmp_ge_u32 s41, {WS_PREB}
s_cbranch_scc1 L_poll2_done
s_mov_b32 s42, {SPIN}
s_add_u32 s40, s27, 5
s_add_u32 s46, s27, 10
s_add_u32 s47, s27, 15
L_p2own:
buffer_load_dwordx4 v[8:11], v65, s[28:31], s44 offen sc1
s_sub_u32 s42, s42, 1
s_cbranch_scc1 L_p2own_done
s_waitcnt vmcnt(0)
v_xor_b32 v12, s27, v8
v_bitop3_b32 v12, v9, s40, v12 bitop3:{XOR_OR:#x}
v_bitop3_b32 v12, v10, s46, v12 bitop3:{XOR_OR:#x}
v_bitop3_b32 v12, v11, s47, v12 bitop3:{XOR_OR:#x}
v_and_b32 v12, 15, v12
v_cmp_ne_u32 vcc, 0, v12
s_cbranch_vccnz L_p2own
L_p2own_done:
s_waitcnt vmcnt(0)
s_add_u32 s45, s44, {WS_PREB-WS_PREA}
buffer_store_dwordx4 v[8:11], v65, s[28:31], s45 offen sc1
s_add_u32 s41, s41, {WS_PREB-WS_PREA}
s_mov_b32 s42, {SPIN}
s_branch L_poll2""")

    sec("RED")
    a(f"""L_RED:
s_sub_u32 s34, s3, 1
s_sub_u32 s44, s2, 224
s_lshl_b32 s45, s44, 1
s_add_u32 s45, s45, s34
s_lshl_b32 s60, s45, 7
v_lshrrev_b32 v1, 3, v0
v_and_b32 v2, 7, v0                  ; sub
v_lshlrev_b32 v3, 13, v1
v_lshl_or_b32 v3, v2, 4, v3
s_add_u32 s36, s18, {WS_YP}
s_addc_u32 s37, s19, 0
s_mov_b32 s38, {56*8192}
s_mov_b32 s39, 0x20000""")
    for i in range(1, 7): a(f"s_add_u32 s{60+i}, s{59+i}, {8*8192}")
    a(f"""; output element of this lane: token = sub>>2, column = 16*piece + 4*(sub&3) + [0,2,1,3][lane>>4]
v_bfe_u32 v4, v0, 4, 1
v_bfe_u32 v5, v0, 5, 1
v_lshl_or_b32 v4, v4, 1, v5
v_and_b32 v40, 3, v0
v_lshl_or_b32 v4, v40, 2, v4
s_lshl_b32 s50, s45, 4
v_add_lshl_u32 v4, v4, s50, 1
v_and_b32 v5, 4, v0
v_cmp_ne_u32 s[56:57], 0, v5
s_and_b32 s48, s2, 7
s_lshl_b32 s48, s48, 7
s_add_u32 s48, s48, {WS_DONE}
v_lshlrev_b32 v41, 2, v0""")
    tags_from_epoch()
    a("s_and_b32 s27, s52, 15\nv_mad_u32_u24 v40, v40, 5, s27\nv_and_b32 v40, 15, v40")
    ws_srd()
    a("s_barrier                            ; B")
    poll_result(40, 52, 44, 45)
    stamp(1)
    a(f"""s_lshr_b32 s44, s40, 5
s_and_b32 s44, s44, 0x3ff800
s_lshl_b32 s45, s40, 11
s_and_b32 s45, s45, 0x3ff800
v_mov_b32 v8, s44
v_mov_b32 v9, s45
s_and_b32 s44, s41, 0xffff0000
s_lshl_b32 s45, s41, 16
v_mov_b32 v10, s44
v_mov_b32 v11, s45
v_cndmask_b32 v8, v8, v9, s[56:57]
v_cndmask_b32 v10, v10, v11, s[56:57]
v_add_u32 v4, v4, v8
global_load_ushort v6, v4, s[4:5]
v_ashrrev_i32 v11, 31, v10
v_not_b32 v11, v11
v_or_b32 v11, 0x80000000, v11
v_xor_b32 v10, v10, v11
v_and_b32 v10, 0xffff0000, v10
v_mul_f32 v10, 0xbfb8aa3b, v10
v_exp_f32 v10, v10
s_mov_b32 s58, {SPIN}
v_add_f32 v10, 1.0, v10
v_rcp_f32 v10, v10
s_mov_b32 s59, {p.hint_max}
v_cvt_pk_bf16_f32 v10, v10, v10
v_and_b32 v7, 0xffff0000, v10
s_mov_b32 exec_lo, 0x0fffffff
s_mov_b32 exec_hi, 0
L_hint:
buffer_load_dword v8, v41, s[28:31], s48 offen sc1
s_sub_u32 s59, s59, 1
s_cbranch_scc1 L_hint_done
s_waitcnt vmcnt(0)
v_cmp_ne_u32 vcc, s52, v8
s_cbranch_vccnz L_hint
L_hint_done:
s_mov_b64 exec, -1
s_waitcnt vmcnt(0)
v_lshlrev_b32 v6, 16, v6""")
    if p.red_delay: a(f"s_sleep {p.red_delay}")
    stamp(2)
    if st: a("s_mov_b32 s72, 0\ns_mov_b32 s73, 0")
    a("L_poll3:")
    for i in range(7):
        a(f"buffer_load_dwordx4 v[{8+4*i}:{11+4*i}], v3, s[36:39], s{60+i} offen sc1")
    a("s_sub_u32 s58, s58, 1\ns_cbranch_scc1 L_poll3_done")
    a(f"""s_waitcnt vmcnt(5)
v_xor_b32 v8, v8, v40
v_xor_b32 v12, v12, v40
v_or_b32 v36, v8, v12
v_pk_add_f32 v[8:9], v[8:9], v[12:13]
v_pk_add_f32 v[10:11], v[10:11], v[14:15]""")
    for i in range(2, 7):
        a(f"""s_waitcnt vmcnt({6-i})
v_xor_b32 v{8+4*i}, v{8+4*i}, v40
v_pk_add_f32 v[10:11], v[10:11], v[{10+4*i}:{11+4*i}]
v_pk_add_f32 v[8:9], v[8:9], v[{8+4*i}:{9+4*i}]""")
        if i == 6: a(f"v_bitop3_b32 v36, v36, v{8+4*i}, 15 bitop3:0xa8")
        else: a(f"v_or_b32 v36, v36, v{8+4*i}")
    if st: a(f"""s_memrealtime s[100:101]
s_mov_b32 s74, s73
s_mov_b32 s73, s72
s_waitcnt lgkmcnt(0)
s_mov_b32 s72, s100
v_writelane_b32 v{SV}, s73, 7
v_writelane_b32 v{SV}, s74, 8""")
    a(f"""v_cmp_ne_u32 vcc, 0, v36
v_permlane32_swap_b32 v8, v9
s_cbranch_vccnz L_poll3
L_poll3_done:""")
    stamp(3)
    a(f"""v_permlane32_swap_b32 v10, v11
v_add_f32 v8, v8, v9
v_add_f32 v10, v10, v11
s_nop 1
v_permlane16_swap_b32 v8, v10
v_add_f32 v8, v8, v10
s_nop 1
v_add_f32_dpp v5, v8, v8 row_ror:8 row_mask:0xf bank_mask:0xf
s_mov_b32 exec_lo, 0x00ff00ff
s_mov_b32 exec_hi, 0x00ff00ff
v_cvt_pk_bf16_f32 v5, v5, v5
v_and_b32 v5, 0xffff0000, v5
v_mul_f32 v5, v5, v7
v_cvt_pk_bf16_f32 v5, v5, v5
v_and_b32 v5, 0xffff0000, v5
v_add_f32 v5, v5, v6
v_cvt_pk_bf16_f32 v5, v5, v5
global_store_short v4, v5, s[14:15] {p.fmod}""")
    stamp(4)
    if st: a("s_waitcnt vmcnt(0)"); stamp(5)
    stamp_out()
    a("s_endpgm")

    sec("AGG")
    a(f"""L_AGG:
s_setprio 3
s_and_b32 s32, s2, 7
v_lshlrev_b32 v1, 7, v0              ; lane*128
s_lshl_b32 s33, s32, 13
s_add_u32 s33, s33, {WS_RES}
s_lshl_b32 s34, s32, 8
s_add_u32 s34, s34, {WS_RESF}
s_bfe_u32 s53, s2, 0x20003
s_mul_i32 s36, s32, {KSTR}
s_add_u32 s36, s36, {WS_KEYS}""")
    ws_srd()
    if p.touch == 0: a(f"""s_cmp_lg_u32 s53, 0
s_cbranch_scc1 L_notouch
buffer_load_dword v3, v1, s[28:31], s33 offen sc1
L_notouch:""")
    a(f"""; expected id bits of entry p = 4*lane + e : (255-p)<<3
v_lshlrev_b32 v93, 5, v0
v_sub_u32 v88, {255*8}, v93
v_subrev_u32 v89, 8, v88
v_subrev_u32 v90, 16, v88
v_subrev_u32 v91, 24, v88
v_lshlrev_b32 v2, 4, v0""")
    tags_from_epoch()
    a(f"""v_mov_b32 v83, s52
s_mov_b32 s52, {SPIN}
v_mov_b32 v82, 0
v_mov_b32 v70, 0
v_mov_b32 v71, 0
v_mov_b32 v92, 0x07060302
v_mov_b32 v94, 0x05040100
s_mov_b32 s55, 0x07ff07ff
s_mov_b64 s[56:57], -1
s_barrier                            ; B""")
    if p.agg_dx and p.relief: a(f"""s_cmp_lg_u32 s32, {(4 - p.xoff) & 7}
s_cbranch_scc1 L_aggd
s_sleep {p.agg_dx}
L_aggd:""")
    if p.agg_d0: a(f"s_sleep {p.agg_d0}")
    if p.agg_d1:
        for k in range(3): a(f"s_cmp_eq_u32 s53, {k}\ns_cbranch_scc1 L_aggo\ns_sleep {p.agg_d1}")
    if p.agg_d1: a("L_aggo:")
    stamp(1)
    def merge():
        for k, ctrl in enumerate(("quad_perm:[1,0,3,2]", "quad_perm:[2,3,0,1]", "row_half_mirror")):
            s1, s2 = ("v70", "v71") if k == 0 else ("v76", "v77")
            a(f"""s_nop {1 if k == 0 else 0}
v_min_u32_dpp v84, {s1}, {s1} {ctrl} row_mask:0xf bank_mask:0xf
v_max_u32_dpp v85, {s2}, {s2} {ctrl} row_mask:0xf bank_mask:0xf
v_max_u32_dpp v76, {s1}, {s1} {ctrl} row_mask:0xf bank_mask:0xf
v_max_u32 v77, v84, v85""")
        a("""s_nop 0
v_min_u32_dpp v84, v76, v76 row_mirror row_mask:0xf bank_mask:0xf
v_max_u32_dpp v85, v77, v77 row_mirror row_mask:0xf bank_mask:0xf
v_max_u32_dpp v78, v76, v76 row_mirror row_mask:0xf bank_mask:0xf
v_max_u32_dpp v76, v76, v76 row_mirror row_mask:0xf bank_mask:0xf
v_max_u32 v79, v84, v85
v_max_u32 v77, v84, v85
v_permlane16_swap_b32 v76, v78
s_nop 0
v_permlane16_swap_b32 v77, v79
v_min_u32 v84, v76, v78
v_max_u32 v86, v76, v78
v_max_u32 v76, v76, v78
v_max3_u32 v87, v77, v79, v84
v_max3_u32 v77, v77, v79, v84
v_permlane32_swap_b32 v76, v86
s_nop 0
v_permlane32_swap_b32 v77, v87
v_min_u32 v84, v76, v86
v_max_u32 v76, v76, v86
v_max3_u32 v77, v77, v87, v84
v_perm_b32 v80, v76, v77, v94
v_bitop3_b32 v80, v80, s55, v80 bitop3:0x0c""")
    def xprefetch():
        a("""v_bfe_u32 v4, v80, 16, 11
v_and_b32 v5, 0x7ff, v80
v_lshl_or_b32 v4, v4, 11, v2
v_lshl_or_b32 v5, v5, 11, v2
global_load_dwordx4 v[8:11], v4, s[4:5]
global_load_dwordx4 v[12:15], v5, s[4:5]
global_load_dwordx4 v[16:19], v4, s[4:5] offset:1024
global_load_dwordx4 v[20:23], v5, s[4:5] offset:1024""")
    a("""L_poll1:
buffer_load_dwordx4 v[60:63], v93, s[28:31], s36 offen sc1
buffer_load_dwordx4 v[64:67], v93, s[28:31], s36 offen offset:16 sc1
s_sub_u32 s52, s52, 1
s_cbranch_scc1 L_poll1_done
s_cmp_lg_u64 s[56:57], -1
s_cbranch_scc1 L_spec
s_waitcnt vmcnt(0)
L_specdone:""")
    with cold():
        a("; while the next look is in flight, warm this die's L2 with the rows that lead so far\nL_spec:\ns_mov_b64 exec, -1")
        merge(); xprefetch()
        a("s_mov_b64 exec, s[56:57]\ns_waitcnt vmcnt(4)\ns_branch L_specdone")
    stamp_idx(SPIN+3, 52)
    for e in range(4):
        a(f"v_xor_b32 v{60+2*e}, s50, v{60+2*e}\nv_xor_b32 v{61+2*e}, s51, v{61+2*e}")
    tt = ((0xF0 ^ 0xAA) | (0xCC ^ 0xAA)) & 0xFF
    for e in range(4):
        a(f"v_bitop3_b32 v{84+e}, v{60+2*e}, v{61+2*e}, v{88+e} bitop3:{tt:#x}")
    a(f"""v_or3_b32 v84, v84, v85, v86
v_or_b32 v84, v84, v87
v_and_b32 v84, {MASK:#x}, v84
v_cmp_ne_u32 vcc, 0, v84
v_min_u32 v84, v60, v62
v_max_u32 v60, v60, v62
v_max3_u32 v61, v61, v63, v84
v_min_u32 v85, v64, v66
v_max_u32 v64, v64, v66
v_max3_u32 v65, v65, v67, v85
s_andn2_b64 exec, exec, vcc
v_min_u32 v84, v60, v64
v_max_u32 v70, v60, v64
v_max3_u32 v71, v61, v65, v84
s_and_b64 s[56:57], s[56:57], vcc
s_mov_b64 exec, s[56:57]
s_cbranch_scc1 L_poll1
L_poll1_done:
s_mov_b64 exec, -1""")
    stamp(2)
    merge()
    a(f"""v_lshlrev_b32 v84, 5, v76
v_lshlrev_b32 v85, 5, v77
v_perm_b32 v81, v84, v85, v92
buffer_store_dwordx4 v[80:83], v1, s[28:31], s33 offen""")
    xprefetch()
    a(f"""v_mov_b32 v3, 0
s_mov_b64 exec, 1
buffer_store_dwordx4 v[80:83], v3, s[28:31], s34 offen sc1""")
    stamp(3)
    a(f"""s_cmp_lg_u32 s2, 224
s_cbranch_scc1 L_agg_done
""")
    if p.relief: a(f"""; every workgroup must have read the epoch word before it changes
s_mov_b32 exec_lo, 0x0fffffff
v_lshlrev_b32 v4, 3, v0
s_mov_b32 s52, {SPIN}
s_mov_b32 s55, {WS_ARR}
L_arr:
buffer_load_dwordx2 v[60:61], v4, s[28:31], s55 offen sc1
s_sub_u32 s52, s52, 1
s_cbranch_scc1 L_arr_done
s_waitcnt vmcnt(0)
v_xor_b32 v60, s50, v60
v_bitop3_b32 v60, v61, s51, v60 bitop3:{XOR_OR:#x}
v_cmp_ne_u32 vcc, 0, v60
s_cbranch_vccnz L_arr
L_arr_done:
s_mov_b64 exec, 1""")
    a(f"""s_add_u32 s46, s46, 1
v_mov_b32 v85, s46
buffer_store_dword v85, v3, s[28:31], 0 offen sc1
L_agg_done:""")
    stamp_out()
    a("s_endpgm")

    order = p.order.split(",")
    assert sorted(order) == sorted(S.keys()), (order, list(S.keys()))
    body = ""
    for k, name in enumerate(order):
        t = S[name].text()
        if k + 1 < len(order):
            nxt = S[order[k+1]].lines[0].strip()
            lines = t.rstrip("\n").split("\n")
            if lines[-1].strip() == "s_branch " + nxt.rstrip(":"): t = "\n".join(lines[:-1]) + "\n"
        body += f"; ---------------------------------------------------------------- {name}\n" + t
    body += "L_end:\n    s_endpgm\n"
    meta = dict(nwg=256, nwave=9, nst=12) if st else (dict(light=1) if p.light else None)
    txt = kernel_file(body, 256, 576, L_END, 104 if st else 96, meta=meta, extra_comment=DOC)
    if p.align > 8: txt = txt.replace(".text\n", f".text\n.p2align {p.align}\n", 1)
    return txt

if __name__ == "__main__":
    p = P()
    out = sys.argv[1]
    for kv in sys.argv[2:]:
        k, v = kv.split("=")
        assert hasattr(P, k), k
        setattr(p, k, type(getattr(P, k))(eval(v)) if not isinstance(getattr(P, k), str) else v.replace("+", " "))
    open(out, "w").write(gen(p))
```

```python
import sys
from asmlib import *

WS_E    = 0
WS_RES  = 4096
WS_RESF = 73728
WS_DONE = 77824
WS_KEYS = 131072
KSTR    = 2304
WS_PREA = 393216
WS_PREB = 655360
WS_YP   = 1048576
MASK    = 0xF80007F8
SPIN    = 1 << 16
L_TAGS, L_ROUTE, L_CNT, L_RED1, L_RED2, L_END = 0, 16, 20, 64, 4608, 12800
C1, D1, X12, C2, D2 = 0x9E3779B8, 0x3C6EF372, 0xA5A5A5A8, 0x85EBCA6B, 0x27D4EB2F
XOR_OR = ((0xF0 ^ 0xCC) | 0xAA) & 0xFF

class P:
    nb1 = 5; th2 = 6; cpos = 10; relief = True; pfn = 10; pfat = 1
    xmod = ""; wmod = "nt"; dmod = "nt"; omod = "sc1"; fmod = ""
    rsleep = 12; b3 = False; w1 = True; adapt = 0; tlbw = 0; mchk = 16; touch = 1; dep5 = False; depk = True; bcopy = 1; bsleep = 0; ladder = "0,4,8,11,13,14,15"; droute = 1; dummy = True; npre = 4; xoff = 4; agg_dx = 0
    stamps = False; light = False
    na_pre = 64; na_res = 63
    agg_d0 = 0; agg_d1 = 0
    pre_sleep = 2; hint_max = 200; red_delay = 12
    align = 12; nanfix = True
    order = "entry,R1,Lstart,stubs,PF,R2,L2,D,RED,AGG,cold,nan"

DOC = """;
;   workgroups 224..255 (helpers): R, a second R for half the rows of the workgroups with fg%8==3, an aggregator
"""

def gen(p):
    S = {}
    cur = [None]
    def sec(name):
        S.setdefault(name, Asm()); cur[0] = S[name]
    def a(t): cur[0](t)
    class cold:
        def __init__(s, name="cold"): s.name = name
        def __enter__(s): s.back = cur[0]; sec(s.name)
        def __exit__(s, *e): cur[0] = s.back
    nl = [0]
    def label(b):
        nl[0] += 1; return f"{b}_{nl[0]}"
    st = p.stamps
    SV = 103
    def stamp(i):
        if st: a(f"s_memrealtime s[100:101]\ns_waitcnt lgkmcnt(0)\nv_writelane_b32 v{SV}, s100, {i}")
    def stamp_idx(expr_sub, reg):
        if st: a(f"""s_memrealtime s[100:101]
s_sub_u32 s60, {expr_sub}, s{reg}
s_min_u32 s60, s60, 11
s_mov_b32 m0, s60
s_waitcnt lgkmcnt(0)
v_writelane_b32 v{SV}, s100, m0""")
    def stamp_out():
        if not (st or p.light): return
        a(f"""s_waitcnt vmcnt(0) lgkmcnt(0)
s_lshl_b32 s20, s2, 4
s_add_u32 s20, s20, s3
s_lshl_b32 s20, s20, 6
s_add_u32 s20, s20, {STAMP_OFF}""")
        if p.light:
            a(f"""s_memrealtime s[98:99]
s_mov_b64 exec, 1
v_mov_b32 v3, 0
v_mov_b32 v4, s100
s_waitcnt lgkmcnt(0)
v_mov_b32 v5, s98
buffer_store_dwordx2 v[4:5], v3, s[28:31], s20 offen""")
        else:
            a(f"""s_mov_b64 exec, 0xffff
v_mbcnt_lo_u32_b32 v3, -1, 0
v_lshlrev_b32 v3, 2, v3
buffer_store_dword v{SV}, v3, s[28:31], s20 offen""")
    def ws_srd():
        a(f"s_mov_b32 s28, s18\ns_mov_b32 s29, s19\ns_mov_b32 s30, {WS_BYTES}\ns_mov_b32 s31, 0x20000")
    def tags_from_epoch():
        a(f"""s_mul_i32 s50, s46, {C1:#x}
s_add_u32 s50, s50, {D1:#x}
s_xor_b32 s51, s50, {X12:#x}
s_mul_i32 s52, s46, {C2:#x}
s_add_u32 s52, s52, {D2:#x}""")
    def read_tags(v):
        a(f"""v_mov_b32 v{v}, 0
ds_read_b32 v{v}, v{v} offset:{L_TAGS}
s_waitcnt lgkmcnt(0)
v_readfirstlane_b32 s26, v{v}
s_and_b32 s27, s26, 15""")
    def poll_result(dst, tag, off, cnt):
        l1, l2, l2b, l3 = label("L_rp"), label("L_rf"), label("L_rg"), label("L_rd")
        a(f"""s_and_b32 s{off}, s2, 7
s_lshl_b32 s{off}, s{off}, 13
s_add_u32 s{off}, s{off}, {WS_RES}
s_mov_b32 s{cnt}, {p.na_res}
{l1}:
s_load_dwordx4 s[{dst}:{dst+3}], s[18:19], s{off}
s_add_u32 s{off}, s{off}, 128
s_sub_u32 s{cnt}, s{cnt}, 1
s_cbranch_scc1 {l2}
s_waitcnt lgkmcnt(0)
s_cmp_lg_u32 s{dst+3}, s{tag}
s_cbranch_scc1 {l1}
{l3}:""")
        with cold():
            a(f"""; the aggregator sits on another die: read the write-through copy past the caches
{l2}:
s_and_b32 s{off}, s2, 7
s_lshl_b32 s{off}, s{off}, 8
s_add_u32 s{off}, s{off}, {WS_RESF}
s_mov_b32 s{cnt}, {SPIN}
{l2b}:
s_waitcnt lgkmcnt(0)
s_load_dwordx4 s[{dst}:{dst+3}], s[18:19], s{off} glc
s_waitcnt lgkmcnt(0)
s_cmp_eq_u32 s{dst+3}, s{tag}
s_cbranch_scc1 {l3}
s_sleep 8
s_sub_u32 s{cnt}, s{cnt}, 1
s_cbranch_scc0 {l2b}
s_and_b32 s{dst}, s{dst}, 0x7ff07ff
s_branch {l3}""")
    def selectors(t=3):
        a(f"""; v16..v23: byte selectors that place one bf16 at element (lane&7) of an 8-element A fragment
v_and_b32 v{t}, 1, v0
v_cmp_eq_u32 vcc, 1, v{t}
v_mov_b32 v{t+1}, 0x0c0c0100
v_mov_b32 v{t+2}, 0x01000c0c
v_mov_b32 v{t+3}, 0x0c0c0302
v_mov_b32 v{t+4}, 0x03020c0c
v_cndmask_b32 v{t+1}, v{t+1}, v{t+2}, vcc
v_cndmask_b32 v{t+2}, v{t+3}, v{t+4}, vcc
v_bfe_u32 v{t}, v0, 1, 2
v_mov_b32 v{t+3}, 0x0c0c0c0c""")
        for d in range(4):
            a(f"""v_cmp_eq_u32 vcc, {d}, v{t}
s_nop 1
v_cndmask_b32 v{16+d}, v{t+3}, v{t+1}, vcc
v_cndmask_b32 v{20+d}, v{t+3}, v{t+2}, vcc""")
    def perms(dst, src, par):
        for d in range(4): a(f"v_perm_b32 v{dst+d}, v{src}, v{src}, v{16+4*par+d}")
    def fg_of_wg():
        a(f"""s_add_u32 s20, s2, {p.xoff}
s_and_b32 s20, s20, 7
s_mul_i32 s20, s20, 7
s_lshr_b32 s21, s2, 5
s_add_u32 s32, s20, s21
s_bfe_u32 s33, s2, 0x20003           ; s33 = j""")
    def lds_init():
        a(f"""v_mov_b32 v88, 0
v_mov_b32 v84, -1
v_mov_b32 v85, 0
s_mov_b64 exec, 1
ds_write_b64 v88, v[84:85] offset:{L_ROUTE}""")

    sec("entry")
    if st: a(f"v_mov_b32 v{SV}, 0")
    if p.light: a("s_memrealtime s[100:101]")
    stamp(0)
    a(f"""s_load_dwordx16 s[4:19], s[0:1], 0
v_readfirstlane_b32 s3, v0
s_cmp_ge_u32 s2, 256
s_cbranch_scc1 L_end
v_and_b32 v0, 63, v0
s_lshr_b32 s3, s3, 6                 ; wave
s_cmp_ge_u32 s3, 5
s_cbranch_scc1 L_stubD
s_cmp_lg_u32 s3, 0
s_cbranch_scc1 L_Lstart""")

    sec("R1")
    a("s_lshl_b32 s35, s2, 3\ns_lshl_b32 s48, s2, 3")
    fg_of_wg()
    a(f"""; lines whose address bits 9:7 are 3 stream more slowly through one CU: those workgroups route only 4 of their rows
s_cmp_ge_u32 s2, 224
s_cselect_b32 s21, 0, s32
s_and_b32 s21, s21, 7
s_cmp_eq_u32 s21, 3
L_R1:
s_cselect_b32 s55, 0x40000000, 0
s_setprio 3
s_lshl_b32 s43, s35, 11
s_add_u32 s44, s43, 4096
v_lshlrev_b32 v1, 4, v0
v_add_u32 v90, s44, v1
s_add_u32 s44, s44, 4096
s_or_b32 s44, s44, s55
s_add_u32 s45, s44, 4096
s_mov_b32 s22, {X_BYTES}
s_mov_b32 s23, 0x20000""")
    lds_init()
    a("s_mov_b64 exec, -1\ns_waitcnt lgkmcnt(0)")
    stamp(8)
    for i in range(8):
        a(f"global_load_dwordx4 v[{10+4*i}:{13+4*i}], v90, s[4:5] offset:{i*1024-4096} {p.xmod}")
        if i == 1:
            a("global_load_dwordx4 v[2:5], v1, s[6:7]\nglobal_load_dwordx4 v[6:9], v1, s[6:7] offset:1024\ns_mov_b32 s20, s4\ns_mov_b32 s21, s5")
    for i in range(8, 16):
        a(f"buffer_load_dwordx4 v[{10+4*i}:{13+4*i}], v1, s[20:23], s{44 + (i-8)//4} offen offset:{(i%4)*1024} {p.xmod}")
    stamp(9)
    a(f"s_load_dword s46, s[18:19], {WS_E}\ns_barrier\ns_branch L_R2")

    sec("stubs")
    a(f"""L_stubD:
s_cmp_ge_u32 s2, 224
s_cbranch_scc1 L_stubA
""" + ("s_cmp_eq_u32 s3, 5\ns_cbranch_scc1 L_PF\n" if p.pfn < 16 else "") + f"""s_cmp_lg_u32 s3, 8
s_cbranch_scc1 L_nocpf
; pull the kernel's code into this die's L2
s_getpc_b64 s[22:23]
L_pc:
v_lshlrev_b32 v1, 7, v0
v_min_u32 v1, L_hot_end-L_pc, v1
global_load_dword v80, v1, s[22:23]
L_nocpf:
s_barrier                            ; A
s_branch L_D
L_stubA:
s_cmp_lg_u32 s3, 5
s_cbranch_scc1 L_end
L_stubH:
s_waitcnt lgkmcnt(0)
s_load_dword s46, s[18:19], {WS_E}
s_waitcnt lgkmcnt(0)
s_barrier                            ; A (the epoch word is read before this workgroup publishes)
s_cmp_eq_u32 s3, 5
s_cbranch_scc1 L_AGG
s_branch L_RED
L_stubR:
s_cmp_ge_u32 s3, 3
s_cbranch_scc0 L_stubH
""")
    if not p.relief: a("s_endpgm")
    else: a(f"""s_cmp_lg_u32 s3, 3
s_cbranch_scc1 L_end
s_add_u32 s20, s2, {p.xoff + 3}
s_and_b32 s20, s20, 7
s_cmp_eq_u32 s20, 7
s_cbranch_scc1 L_end
s_lshl_b32 s21, s20, 5
s_and_b32 s35, s2, 31
s_add_u32 s35, s35, s21
s_lshl_b32 s35, s35, 3
s_add_u32 s35, s35, 4
s_and_b32 s48, s2, 31
s_lshl_b32 s48, s48, 3
s_add_u32 s48, s48, 2048
s_cmp_eq_u32 s20, s20
s_branch L_R1""")

    sec("PF")
    if p.pfn < 16:
        nm = 16 - p.pfn
        a("L_PF:")
        fg_of_wg()
        a(f"""; a CU keeps only half as many lines with address bits 9:7 == 3 in flight: the other workgroups of the die pull
s_sub_u32 s22, 3, s20
s_and_b32 s22, s22, 7
s_cmp_gt_u32 s21, s22
s_subb_u32 s23, s21, 0
s_cmp_eq_u32 s21, s22
s_cselect_b32 s23, 7, s23
s_cmp_eq_u32 s22, 7
s_cselect_b32 s23, 7, s23
s_cmp_ge_u32 s23, {nm}
s_cbranch_scc1 L_nocpf
s_add_u32 s23, s23, {p.pfn}          ; m
s_lshr_b32 s24, s23, 2
s_lshl_b32 s24, s24, 4
s_and_b32 s23, s23, 3
s_add_u32 s23, s23, s24
s_lshl_b32 s24, s33, 8
s_add_u32 s23, s23, s24
s_mul_i32 s23, s23, 7168
s_add_u32 s22, s22, s20
s_lshl_b32 s22, s22, 7
s_add_u32 s23, s23, s22
v_bfe_u32 v1, v0, 3, 2
v_mul_u32_u24 v1, {64*7168}, v1
v_bfe_u32 v2, v0, 1, 2
v_mul_u32_u24 v2, {4*7168}, v2
v_add3_u32 v1, v1, v2, s23
v_and_b32 v2, 1, v0
v_cmp_eq_u32 vcc, 0, v2
s_waitcnt lgkmcnt(0)
v_mov_b32 v4, s10
v_mov_b32 v5, s8
v_mov_b32 v6, s11
v_mov_b32 v7, s9
v_cndmask_b32 v4, v4, v5, vcc
v_cndmask_b32 v5, v6, v7, vcc
v_add_co_u32 v4, vcc, v4, v1
s_nop 1
v_addc_co_u32 v5, vcc, 0, v5, vcc
s_mov_b32 exec_hi, 0
s_barrier                            ; A""")
        a("global_load_dword v80, v[4:5], off\ns_mov_b64 exec, -1")
        a("s_branch L_D")
    else: a("s_nop 0")

    sec("R2")
    a("L_R2:")
    ws_srd()
    a(f"""s_mov_b32 s24, s14
s_mov_b32 s25, s15
s_mov_b32 s26, {X_BYTES}
s_mov_b32 s27, 0x20000
; row held by a lane after the reduction: lane bit5 -> row bit0, bit4 -> bit1, bit3 -> bit2
v_lshrrev_b32 v82, 5, v0
v_bfe_u32 v83, v0, 4, 1
v_lshl_or_b32 v82, v83, 1, v82
v_bfe_u32 v83, v0, 3, 1
v_lshl_or_b32 v82, v83, 2, v82
s_sub_u32 s47, 2047, s35
v_sub_u32 v82, s47, v82              ; 2047 - token index
v_mul_u32_u24 v92, {KSTR}, v0        ; replica stride
""" + (f"v_lshlrev_b32 v89, 2, v0\ns_and_b32 s49, s2, 7\ns_lshl_b32 s49, s49, 7\ns_add_u32 s49, s49, {WS_DONE}\n" if p.adapt else "") + f"""s_add_u32 s48, s48, {WS_KEYS}
s_cmp_lg_u32 s55, 0
s_cselect_b32 s56, 0xff00ff00, 0     ; lanes that hold rows 4..7 of a four-row block
s_mov_b32 s57, s56""")
    for r in range(8): a(f"v_mov_b32 v{74+r}, 0")
    if p.nanfix: a("v_mov_b32 v93, 0x207")
    a("s_waitcnt lgkmcnt(0)")
    stamp(1)
    tags_from_epoch()
    a(f"""v_mov_b32 v84, s52
s_mov_b64 exec, 1
ds_write_b32 v88, v84 offset:{L_TAGS}
s_mov_b64 exec, -1""")
    def dots(r, lo, hi):
        for q in range(lo, hi): a(f"v_dot2c_f32_bf16 v{74+r}, v{10+8*r+q}, v{2+q}")
    for r in range(6):
        a(f"s_waitcnt vmcnt({14-2*r})"); dots(r, 0, 8)
    a("s_waitcnt vmcnt(2)"); dots(6, 0, 8)
    a("""v_permlane32_swap_b32 v74, v75
v_permlane32_swap_b32 v76, v77
v_permlane32_swap_b32 v78, v79
v_add_f32 v74, v74, v75
v_add_f32 v76, v76, v77
v_add_f32 v78, v78, v79
s_waitcnt vmcnt(1)""")
    dots(7, 0, 4)
    a("v_permlane16_swap_b32 v74, v76\ns_waitcnt vmcnt(0)")
    dots(7, 4, 8)
    stamp(2)
    a("""v_add_f32 v74, v74, v76
s_nop 1
v_permlane32_swap_b32 v80, v81
v_add_f32_dpp v75, v74, v74 row_ror:8 row_mask:0xf bank_mask:0xf
v_add_f32 v80, v80, v81
s_nop 1
v_permlane16_swap_b32 v78, v80
v_add_f32 v78, v78, v80
s_nop 1
v_add_f32_dpp v75, v78, v78 row_ror:8 row_mask:0xf bank_mask:0xc
s_nop 1
v_add_f32_dpp v75, v75, v75 row_half_mirror row_mask:0xf bank_mask:0xf
s_nop 1
v_add_f32_dpp v75, v75, v75 quad_perm:[1,0,3,2] row_mask:0xf bank_mask:0xf
s_nop 1
v_add_f32_dpp v79, v75, v75 quad_perm:[2,3,0,1] row_mask:0xf bank_mask:0xf
v_cmp_u_f32 vcc, v79, v79
v_cvt_pk_bf16_f32 v76, v79, v79
v_ashrrev_i32 v77, 31, v76
v_or_b32 v77, 0x80000000, v77
v_xor_b32 v76, v76, v77
v_lshrrev_b32 v76, 16, v76
v_cndmask_b32 v76, v76, 0, vcc
v_lshl_or_b32 v76, v76, 11, v82
v_cndmask_b32 v76, v76, 0, s[56:57]
s_nop 1
v_max_u32_dpp v74, v76, v76 row_ror:8 row_mask:0xf bank_mask:0xf
v_max_u32_dpp v78, v76, v76 row_ror:8 row_mask:0xf bank_mask:0xf
v_min_u32_dpp v75, v76, v76 row_ror:8 row_mask:0xf bank_mask:0xf
v_min_u32_dpp v77, v76, v76 row_ror:8 row_mask:0xf bank_mask:0xf
s_nop 0
v_permlane16_swap_b32 v74, v78
v_permlane16_swap_b32 v75, v77
v_min_u32 v80, v74, v78
v_max_u32 v76, v74, v78
v_max_u32 v74, v74, v78
v_max3_u32 v81, v75, v77, v80
v_max3_u32 v75, v75, v77, v80
v_permlane32_swap_b32 v74, v76
s_nop 0
v_permlane32_swap_b32 v75, v81
v_min_u32 v78, v74, v76
v_max_u32 v74, v74, v76
v_max3_u32 v75, v75, v81, v78
v_xor_b32 v74, s50, v74
v_xor_b32 v75, s51, v75
s_mov_b64 exec, 0xff
buffer_store_dwordx2 v[74:75], v92, s[28:31], s48 offen sc1
s_cmp_lt_u32 s2, 224
s_cbranch_scc1 L_Rnob""")
    if p.depk: a("s_waitcnt vmcnt(0)")
    a("""s_barrier
L_Rnob:""")
    stamp(3)
    if p.nanfix:
        a("""s_mov_b64 exec, -1
v_cmp_class_f32 vcc, v79, v93
s_cbranch_vccnz L_nanfix
L_nanfix_done:""")
        with cold("nan"):
            a("""L_hot_end:
L_nanfix:
s_mov_b32 s54, 0x07060302""")
            for r in range(10, 74, 2):
                a(f"""v_and_b32 v84, 0xffff0000, v{r}
v_lshlrev_b32 v85, 16, v{r}
v_and_b32 v86, 0xffff0000, v{r+1}
v_lshlrev_b32 v87, 16, v{r+1}
v_fma_f32 v84, v84, 0, v84
v_fma_f32 v85, v85, 0, v85
v_fma_f32 v86, v86, 0, v86
v_fma_f32 v87, v87, 0, v87
v_perm_b32 v{r}, v84, v85, s54
v_perm_b32 v{r+1}, v86, v87, s54""")
            a("s_branch L_nanfix_done")
    else:
        with cold("nan"): a("L_hot_end:")
    a("s_mov_b64 exec, 1")
    poll_result(40, 52, 44, 45)
    a(f"""v_mov_b32 v84, s40
ds_write_b32 v88, v84 offset:{L_ROUTE}
s_mov_b64 exec, -1
s_setprio 0
s_and_b32 s41, s40, 0x7ff
s_bfe_u32 s40, s40, 0xb0010
s_mov_b32 s42, s35
s_lshl_b32 s43, s35, 11
; row offsets; routed rows are written by the reducers (an out-of-range offset drops the store)""")
    for r in range(8):
        a(f"""s_cmp_eq_u32 s42, s40
s_cselect_b32 s{60+r}, 0x40000000, s43
s_cmp_eq_u32 s42, s41
s_cselect_b32 s{60+r}, 0x40000000, s{60+r}""")
        if r < 7: a("s_add_u32 s43, s43, 2048\ns_add_u32 s42, s42, 1")
        if r == 3: a("s_or_b32 s43, s43, s55")
    stamp(4)
    a("s_cmp_ge_u32 s2, 224\ns_cbranch_scc1 L_rstore\ns_barrier                            ; 2\ns_barrier                            ; 4" + ("\ns_barrier                            ; 5" if p.dep5 else ""))
    def bulk(mod):
        for r in range(8):
            a(f"""buffer_store_dwordx4 v[{10+8*r}:{13+8*r}], v1, s[24:27], s{60+r} offen {mod}
buffer_store_dwordx4 v[{14+8*r}:{17+8*r}], v1, s[24:27], s{60+r} offen offset:1024 {mod}""")
    if p.adapt:
        a(f"""; late workgroups leave their rows in L2 (written back at the end) instead of competing with the last hand-off
s_mov_b32 exec_lo, 0x0fffffff
s_mov_b32 exec_hi, 0
buffer_load_dword v84, v89, s[28:31], s49 offen sc1
s_waitcnt vmcnt(0)
v_cmp_eq_u32 vcc, s52, v84
s_mov_b64 exec, -1
s_bcnt1_i32_b64 s54, vcc
s_cmp_ge_u32 s54, {p.adapt}
s_cbranch_scc1 L_rlate""")
        with cold(): a("L_rlate:"); bulk(""); a("s_endpgm")
    if p.rsleep: a(f"s_sleep {p.rsleep}")
    a("L_rstore:")
    stamp(5)
    bulk(p.omod)
    stamp(6)
    if p.b3: a("s_cmp_ge_u32 s2, 224\ns_cbranch_scc1 L_rfin\ns_barrier\nL_rfin:")
    if st: a("s_waitcnt vmcnt(0)"); stamp(7)
    stamp_out()
    a("s_endpgm")

    sec("Lstart")
    a("""L_Lstart:
s_cmp_ge_u32 s2, 224
s_cbranch_scc1 L_stubR""")
    fg_of_wg()
    a(f"""v_lshrrev_b32 v1, 4, v0              ; g
v_and_b32 v2, 15, v0
s_sub_u32 s34, s3, 1                 ; w
s_lshl_b32 s20, s33, 8
s_lshl_b32 s21, s34, 6
s_add_u32 s20, s20, s21
s_mul_i32 s21, s20, 7168
s_lshl_b32 s22, s32, 7
s_add_u32 s21, s21, s22
v_cmp_gt_u32 vcc, 8, v2
v_and_b32 v3, 7, v2
v_lshlrev_b32 v3, 4, v3
v_mul_u32_u24 v4, {4*7168}, v1
v_add3_u32 v3, v3, v4, s21
s_mov_b32 s22, 7168
s_mov_b32 s23, 0
s_mov_b32 s24, {7168*13}
s_mov_b32 s25, 0
s_waitcnt lgkmcnt(0)
v_mov_b32 v4, s10
v_mov_b32 v5, s8
v_mov_b32 v6, s11
v_mov_b32 v7, s9
v_cndmask_b32 v4, v4, v5, vcc
v_cndmask_b32 v5, v6, v7, vcc
v_add_co_u32 v4, vcc, v4, v3
v_mov_b32 v6, 0
v_mov_b32 v7, 1
v_addc_co_u32 v5, vcc, 0, v5, vcc""")
    stamp(8)
    a("s_barrier                            ; A")
    def gload(m):
        a(f"global_load_dwordx4 v[{32+4*m}:{35+4*m}], v[4:5], off {p.wmod}")
        if m < 15: a(f"v_lshl_add_u64 v[4:5], v[4:5], 0, s[{'24:25' if (m+1) % 4 == 0 else '22:23'}]")
    for m in range(p.nb1): gload(m)
    stamp(1); a("s_branch L_L2"); sec("L2"); a("L_L2:")
    selectors(8)
    ws_srd()
    a(f"""s_lshl_b32 s20, s20, 1
v_bfe_u32 v8, v2, 1, 2
v_lshlrev_b32 v9, 8, v8
v_and_b32 v8, 1, v2
v_lshl_or_b32 v9, v8, 7, v9
v_and_b32 v8, 1, v1
v_lshl_or_b32 v9, v8, 6, v9
v_lshrrev_b32 v8, 1, v1
v_lshl_or_b32 v9, v8, 5, v9
v_lshrrev_b32 v8, 3, v2
v_lshl_or_b32 v1, v8, 4, v9
v_lshlrev_b32 v0, 4, v0              ; lane*16
s_lshl_b32 s21, s34, 10
v_add_u32 v2, s21, v0
s_lshl_b32 s12, s32, 2
s_add_u32 s12, s12, s33
s_lshl_b32 s12, s12, 10
s_add_u32 s12, s12, {WS_PREA}
s_add_u32 s4, s4, s20
s_addc_u32 s5, s5, 0
s_mov_b32 s21, {SPIN*16}""")
    if p.nb1 < p.th2: a(f"s_waitcnt vmcnt({p.nb1-1})")
    def xloads():
        a(f"""s_lshr_b32 s9, s8, 5
s_and_b32 s9, s9, 0x3ff800
s_load_dwordx16 s[36:51], s[4:5], s9
s_load_dwordx16 s[52:67], s[4:5], s9 offset:64
s_lshl_b32 s9, s8, 11
s_and_b32 s9, s9, 0x3ff800
s_load_dwordx16 s[68:83], s[4:5], s9
s_load_dwordx16 s[84:99], s[4:5], s9 offset:64
ds_read_b32 v3, v6 offset:{L_TAGS}""")
    def tail_loads(m0):
        for m in range(m0, 16):
            if p.th2 and m >= p.th2: a(f"s_waitcnt vmcnt({p.th2-1})")
            gload(m)
    assert p.cpos <= p.mchk
    for m in range(p.nb1, p.mchk + 1):
        if m == p.cpos: a(f"s_mov_b64 exec, 1\nds_add_u32 v6, v7 offset:{L_CNT}\ns_mov_b64 exec, -1")
        if m == p.mchk: break
        if m == p.mchk - 1 and p.mchk < 16: a(f"ds_read_b32 v3, v6 offset:{L_ROUTE}")
        if p.th2 and m >= p.th2: a(f"s_waitcnt vmcnt({p.th2-1})")
        gload(m)
    if p.mchk < 16:
        a("""s_waitcnt lgkmcnt(0)
v_readfirstlane_b32 s8, v3
s_cmp_lg_u32 s8, -1
s_cbranch_scc1 L_Lknown""")
        with cold():
            a("; a slow workgroup: the route is already known, fetch the two x slices under the rest of the stream\nL_Lknown:")
            xloads(); tail_loads(p.mchk); stamp(2); stamp(3); a("s_branch L_Lx")
        tail_loads(p.mchk)
    stamp(2)
    a(f"""L_Lroute:
ds_read_b32 v3, v6 offset:{L_ROUTE}
s_sub_u32 s21, s21, 1
s_cbranch_scc1 L_Lroute_done
s_waitcnt lgkmcnt(0)
v_readfirstlane_b32 s8, v3
s_cmp_eq_u32 s8, -1
s_cbranch_scc1 L_Lroute
L_Lroute_done:""")
    stamp(3)
    xloads()
    a("""L_Lx:
s_mov_b64 exec, 0xff
s_waitcnt lgkmcnt(0)
v_readfirstlane_b32 s26, v3""")
    stamp(4)
    for g in range(4):
        for t in range(2):
            for q in range(4):
                sr = 36 + 32*t + (16*q + 4*g)//2
                a(f"v_mov_b64 v[{8+2*q}:{9+2*q}], s[{sr}:{sr+1}]")
            a("s_lshl_b64 exec, exec, 8" if (g, t) != (3, 1) else "s_mov_b64 exec, -1")
    perms(24, 8, 0)
    lad = sorted(int(x) for x in p.ladder.split(","))
    for m in range(16):
        c = 24 + 4*(m & 1); nx = 24 + 4*((m+1) & 1)
        if m < 15: perms(nx, 8 + ((m+1) >> 1), (m+1) & 1)
        elif 15 not in lad: a("s_nop 0")
        if m in lad:
            nxt = [x for x in lad if x > m]
            a(f"s_waitcnt vmcnt({16 - (nxt[0] if nxt else 16)})")
            if not nxt: stamp(5)
        a(f"v_mfma_f32_16x16x32_bf16 v[4:7], v[{c}:{c+3}], v[{32+4*m}:{35+4*m}], {'0' if m == 0 else 'v[4:7]'}")
    a(f"""s_cmp_eq_u32 s34, 0
s_cbranch_scc1 L_L0
s_nop 5
ds_write_b128 v2, v[4:7] offset:{L_RED1}
s_waitcnt lgkmcnt(0)
s_barrier                            ; 2""")
    stamp(6)
    stamp_out()
    a(f"""s_endpgm
L_L0:
s_and_b32 s27, s26, 15
s_add_u32 s14, s27, 5
s_add_u32 s15, s27, 10
s_add_u32 s16, s27, 15
s_barrier                            ; 2""")
    stamp(6)
    a(f"""ds_read_b128 v[8:11], v0 offset:{L_RED1+1024}
ds_read_b128 v[12:15], v0 offset:{L_RED1+2048}
ds_read_b128 v[24:27], v0 offset:{L_RED1+3072}
s_waitcnt lgkmcnt(2)
v_pk_add_f32 v[4:5], v[4:5], v[8:9]
v_pk_add_f32 v[6:7], v[6:7], v[10:11]
s_waitcnt lgkmcnt(0)
v_pk_add_f32 v[12:13], v[12:13], v[24:25]
v_pk_add_f32 v[14:15], v[14:15], v[26:27]
v_pk_add_f32 v[4:5], v[4:5], v[12:13]
v_pk_add_f32 v[6:7], v[6:7], v[14:15]
v_bfi_b32 v4, 15, s27, v4
v_bfi_b32 v5, 15, s14, v5
v_bfi_b32 v6, 15, s15, v6
v_bfi_b32 v7, 15, s16, v7
buffer_store_dwordx4 v[4:7], v1, s[28:31], s12 offen""")
    stamp(7)
    if p.b3: a("s_barrier")
    a("s_barrier                            ; 4")
    if p.bcopy == 2:
        a(f"s_add_u32 s12, s12, {WS_PREB-WS_PREA}")
        if p.bsleep: a(f"s_sleep {p.bsleep}")
        a("buffer_store_dwordx4 v[4:7], v1, s[28:31], s12 offen sc1")
    stamp_out()
    a("s_endpgm")

    sec("D")
    a("L_D:")
    fg_of_wg()
    a(f"""v_lshrrev_b32 v1, 4, v0              ; g
v_and_b32 v2, 15, v0                 ; jj
s_sub_u32 s34, s3, 5
v_lshlrev_b32 v64, 13, v1
v_lshl_or_b32 v64, v2, 4, v64
s_lshl_b32 s20, s32, 6
s_lshl_b32 s21, s34, 4
s_add_u32 s20, s20, s21
s_lshl_b32 s20, s20, 11
s_lshl_b32 s21, s33, 9
s_add_u32 s20, s20, s21
s_add_u32 s21, s20, 4096
s_waitcnt lgkmcnt(0)
s_mov_b32 s36, s12
s_mov_b32 s37, s13
s_mov_b32 s38, {W_BYTES}
s_mov_b32 s39, 0x20000""")
    ws_srd()
    if p.touch == 1:
        a(f"""s_cmp_lg_u32 s34, 1
s_cbranch_scc1 L_notouch
s_lshr_b32 s22, s2, 3
s_mul_i32 s22, s22, 3
v_add_u32 v8, s22, v0
v_min_u32 v8, 63, v8
v_lshlrev_b32 v8, 7, v8
s_and_b32 s22, s2, 7
s_lshl_b32 s22, s22, 13
s_add_u32 s22, s22, {WS_RES}
s_mov_b64 exec, 7
buffer_load_dword v80, v8, s[28:31], s22 offen sc1
s_mov_b64 exec, -1
L_notouch:""")
    if p.tlbw:
        a(f"""s_cmp_lg_u32 s34, 2
s_cbranch_scc1 L_notlb
v_lshlrev_b32 v8, 21, v0
s_mov_b64 exec, 0xf
buffer_load_dword v80, v8, s[36:39], 0 offen""")
        if p.tlbw > 1: a("s_mov_b64 exec, 3\nglobal_load_dword v81, v8, s[14:15]")
        a("s_mov_b64 exec, -1\nL_notlb:")
    selectors()
    a(f"""v_lshlrev_b32 v65, 4, v0             ; lane*16
s_lshl_b32 s22, s34, 11
v_add_u32 v66, s22, v65
s_lshl_b32 s22, s34, 10
v_add_u32 v67, s22, v65
s_lshl_b32 s23, s32, 2
s_add_u32 s23, s23, s33
s_lshl_b32 s23, s23, 11
s_add_u32 s23, s23, s22
s_add_u32 s23, s23, {WS_YP}
v_lshrrev_b32 v3, 1, v2
v_lshlrev_b32 v68, 7, v3
v_lshrrev_b32 v3, 1, v1
v_lshl_or_b32 v68, v3, 6, v68
v_and_b32 v3, 1, v2
v_and_b32 v4, 1, v1
v_lshl_or_b32 v3, v3, 1, v4
v_lshl_or_b32 v68, v3, 4, v68
v_mul_u32_u24 v71, 5, v3
s_and_b32 s48, s2, 7
s_lshl_b32 s48, s48, 7
s_lshr_b32 s49, s2, 3
s_lshl_b32 s49, s49, 2
s_add_u32 s48, s48, s49
s_add_u32 s48, s48, {WS_DONE}
s_lshl_b32 s22, s34, 8
v_lshl_add_u32 v69, v0, 2, s22
v_and_b32 v4, 3, v0
v_mul_u32_u24 v70, 5, v4
s_lshl_b32 s41, s32, 12
s_add_u32 s41, s41, {WS_PREA}
s_mov_b32 s42, {p.na_pre}
s_mov_b32 s43, 0xbfb8aa3b            ; -log2(e)
s_lshl_b32 s44, s33, 10
s_add_u32 s44, s44, s41
v_mov_b32 v3, 0
s_mov_b32 s22, {SPIN*4}
L_Dcnt:
s_sleep 1
ds_read_b32 v4, v3 offset:{L_CNT}
s_sub_u32 s22, s22, 1
s_cbranch_scc1 L_Dcnt_done
s_waitcnt lgkmcnt(0)
v_readfirstlane_b32 s45, v4
s_cmp_lt_u32 s45, 4
s_cbranch_scc1 L_Dcnt
L_Dcnt_done:
; (they also bring the mailbox lines into L2)""")
    for q in range(4): a(f"buffer_load_dword v{8+q}, v69, s[28:31], s41 offen offset:{q*1024} sc1")
    if p.dummy: a("s_waitcnt vmcnt(0)")
    stamp(1)
    for i in range(8):
        if p.droute and i == p.npre:
            a(f"""; the remaining down loads wait for the route: until then the slower workgroups' gate/up loads have the memory system
L_Droute:
s_sleep 1
ds_read_b32 v4, v3 offset:{L_ROUTE}
s_sub_u32 s22, s22, 1
s_cbranch_scc1 L_Droute_done
s_waitcnt lgkmcnt(0)
v_readfirstlane_b32 s45, v4
s_cmp_eq_u32 s45, -1
s_cbranch_scc1 L_Droute
L_Droute_done:""")
        m, half = i >> 1, i & 1
        a(f"buffer_load_dwordx4 v[{32+4*i}:{35+4*i}], v64, s[36:39], s{20 + (m>>1)} offen offset:{(m&1)*2048+half*256} {p.dmod}")
    stamp(2)
    a(f"""s_barrier                            ; 2
ds_read_b32 v72, v3 offset:{L_TAGS}
s_waitcnt lgkmcnt(0)
v_readfirstlane_b32 s27, v72
v_add_u32 v70, v70, v72
v_add_u32 v71, v71, v72
v_and_b32 v70, 15, v70""")
    if p.pre_sleep: a(f"s_sleep {p.pre_sleep}")
    stamp(3)
    a("L_poll2:")
    for q in range(4):
        a(f"buffer_load_dword v{8+q}, v69, s[28:31], s41 offen offset:{q*1024} sc1")
    a("s_sub_u32 s42, s42, 1\ns_cbranch_scc1 L_p2sw\ns_waitcnt vmcnt(0)")
    stamp_idx(p.na_pre+7, 42)
    a(f"""v_xor_b32 v8, v8, v70
v_xor_b32 v9, v9, v70
v_xor_b32 v10, v10, v70
v_xor_b32 v11, v11, v70
v_add_f32 v14, v8, v9
v_or3_b32 v12, v8, v9, v10
v_add_f32 v15, v10, v11
v_bitop3_b32 v12, v12, v11, 15 bitop3:0xa8
v_add_f32 v8, v14, v15
v_cvt_pk_bf16_f32 v8, v8, v8
v_and_b32 v8, 0xffff0000, v8
v_cmp_ne_u32 vcc, 0, v12
v_mul_f32 v9, s43, v8
s_cbranch_vccnz L_poll2
L_poll2_done:""")
    if p.b3: a("s_barrier")
    stamp(4)
    a(f"""v_exp_f32 v9, v9
s_nop 0
v_add_f32 v9, 1.0, v9
v_rcp_f32 v9, v9
s_nop 0
v_mul_f32 v9, v8, v9
v_cvt_pk_bf16_f32 v9, v9, v9
v_and_b32 v9, 0xffff0000, v9
v_mul_f32_dpp v10, v8, v9 row_shl:4 row_mask:0xf bank_mask:0x5
s_nop 0
v_mul_f32_dpp v10, v9, v8 row_shr:4 row_mask:0xf bank_mask:0xa
s_nop 1
v_mov_b32_dpp v8, v10 quad_perm:[0,0,0,0] row_mask:0xf bank_mask:0xf
v_mov_b32_dpp v11, v10 quad_perm:[1,1,1,1] row_mask:0xf bank_mask:0xf
v_mov_b32_dpp v9, v10 quad_perm:[2,2,2,2] row_mask:0xf bank_mask:0xf
v_cvt_pk_bf16_f32 v8, v8, v11
v_mov_b32_dpp v12, v10 quad_perm:[3,3,3,3] row_mask:0xf bank_mask:0xf""")
    perms(24, 8, 0)
    a("v_cvt_pk_bf16_f32 v9, v9, v12        ; m = 2, 3")
    for m in range(4):
        c = 24 + 4*(m & 1); nx = 24 + 4*((m+1) & 1)
        if m < 3: perms(nx, 8 + ((m+1) >> 1), (m+1) & 1)
        for half in range(2):
            acc = f"v[{4+8*half}:{7+8*half}]"
            i = 2*m + half
            a(f"v_mfma_f32_16x16x32_bf16 {acc}, v[{c}:{c+3}], v[{32+4*i}:{35+4*i}], {'0' if m == 0 else acc}")
    a(f"""s_cmp_ge_u32 s34, 2
s_nop 5
ds_write_b128 v66, v[4:7] offset:{L_RED2}
ds_write_b128 v66, v[12:15] offset:{L_RED2+1024}
s_waitcnt lgkmcnt(0)
s_barrier                            ; 4""")
    stamp(5)
    a(f"""s_cbranch_scc1 L_D_copy
ds_read_b128 v[4:7], v67 offset:{L_RED2}
ds_read_b128 v[8:11], v67 offset:{L_RED2+2048}
ds_read_b128 v[12:15], v67 offset:{L_RED2+4096}
ds_read_b128 v[24:27], v67 offset:{L_RED2+6144}
s_waitcnt lgkmcnt(2)
v_pk_add_f32 v[4:5], v[4:5], v[8:9]
v_pk_add_f32 v[6:7], v[6:7], v[10:11]
s_waitcnt lgkmcnt(0)
v_pk_add_f32 v[12:13], v[12:13], v[24:25]
v_pk_add_f32 v[14:15], v[14:15], v[26:27]
v_pk_add_f32 v[4:5], v[4:5], v[12:13]
v_pk_add_f32 v[6:7], v[6:7], v[14:15]
v_bfi_b32 v4, 15, v71, v4
buffer_store_dwordx4 v[4:7], v68, s[28:31], s23 offen sc1""")
    if p.dep5: stamp(6); a("s_waitcnt vmcnt(0)\ns_barrier")
    a("L_D_done:")
    if not p.dep5: stamp(6)
    if st: a("s_waitcnt vmcnt(0)"); stamp(7)
    stamp_out()
    a(f"""s_endpgm
L_D_copy:""")
    if p.dep5: a("s_barrier                            ; 5")
    a(f"""s_cmp_lg_u32 s34, 3
s_cbranch_scc1 L_D_copy2
s_mov_b64 exec, 1
buffer_store_dword v72, v3, s[28:31], s48 offen
s_branch L_D_done
L_D_copy2:""")
    if p.bcopy == 1: a(f"""buffer_load_dwordx4 v[8:11], v65, s[28:31], s44 offen sc1
s_add_u32 s45, s44, {WS_PREB-WS_PREA}
s_waitcnt vmcnt(0)
buffer_store_dwordx4 v[8:11], v65, s[28:31], s45 offen sc1""")
    a("s_branch L_D_done")
    with cold():
        a(f"""; the local mailbox never filled: a peer sits on another die; publish our block write-through, then read that mailbox
L_p2sw:
s_waitcnt vmcnt(0)
s_cmp_ge_u32 s41, {WS_PREB}
s_cbranch_scc1 L_poll2_done
s_mov_b32 s42, {SPIN}
s_add_u32 s40, s27, 5
s_add_u32 s46, s27, 10
s_add_u32 s47, s27, 15
L_p2own:
buffer_load_dwordx4 v[8:11], v65, s[28:31], s44 offen sc1
s_sub_u32 s42, s42, 1
s_cbranch_scc1 L_p2own_done
s_waitcnt vmcnt(0)
v_xor_b32 v12, s27, v8
v_bitop3_b32 v12, v9, s40, v12 bitop3:{XOR_OR:#x}
v_bitop3_b32 v12, v10, s46, v12 bitop3:{XOR_OR:#x}
v_bitop3_b32 v12, v11, s47, v12 bitop3:{XOR_OR:#x}
v_and_b32 v12, 15, v12
v_cmp_ne_u32 vcc, 0, v12
s_cbranch_vccnz L_p2own
L_p2own_done:
s_waitcnt vmcnt(0)
s_add_u32 s45, s44, {WS_PREB-WS_PREA}
buffer_store_dwordx4 v[8:11], v65, s[28:31], s45 offen sc1
s_add_u32 s41, s41, {WS_PREB-WS_PREA}
s_mov_b32 s42, {SPIN}
s_branch L_poll2""")

    sec("RED")
    a(f"""L_RED:
s_sub_u32 s34, s3, 1
s_sub_u32 s44, s2, 224
s_lshl_b32 s45, s44, 1
s_add_u32 s45, s45, s34
s_lshl_b32 s60, s45, 7
v_lshrrev_b32 v1, 3, v0
v_and_b32 v2, 7, v0                  ; sub
v_lshlrev_b32 v3, 13, v1
v_lshl_or_b32 v3, v2, 4, v3
s_add_u32 s36, s18, {WS_YP}
s_addc_u32 s37, s19, 0
s_mov_b32 s38, {56*8192}
s_mov_b32 s39, 0x20000""")
    for i in range(1, 7): a(f"s_add_u32 s{60+i}, s{59+i}, {8*8192}")
    a(f"""; output element of this lane: token = sub>>2, column = 16*piece + 4*(sub&3) + [0,2,1,3][lane>>4]
v_bfe_u32 v4, v0, 4, 1
v_bfe_u32 v5, v0, 5, 1
v_lshl_or_b32 v4, v4, 1, v5
v_and_b32 v40, 3, v0
v_lshl_or_b32 v4, v40, 2, v4
s_lshl_b32 s50, s45, 4
v_add_lshl_u32 v4, v4, s50, 1
v_and_b32 v5, 4, v0
v_cmp_ne_u32 s[56:57], 0, v5
s_and_b32 s48, s2, 7
s_lshl_b32 s48, s48, 7
s_add_u32 s48, s48, {WS_DONE}
v_lshlrev_b32 v41, 2, v0""")
    tags_from_epoch()
    a("s_and_b32 s27, s52, 15\nv_mad_u32_u24 v40, v40, 5, s27\nv_and_b32 v40, 15, v40")
    ws_srd()
    a("s_barrier                            ; B")
    poll_result(40, 52, 44, 45)
    stamp(1)
    a(f"""s_lshr_b32 s44, s40, 5
s_and_b32 s44, s44, 0x3ff800
s_lshl_b32 s45, s40, 11
s_and_b32 s45, s45, 0x3ff800
v_mov_b32 v8, s44
v_mov_b32 v9, s45
s_and_b32 s44, s41, 0xffff0000
s_lshl_b32 s45, s41, 16
v_mov_b32 v10, s44
v_mov_b32 v11, s45
v_cndmask_b32 v8, v8, v9, s[56:57]
v_cndmask_b32 v10, v10, v11, s[56:57]
v_add_u32 v4, v4, v8
global_load_ushort v6, v4, s[4:5]
v_ashrrev_i32 v11, 31, v10
v_not_b32 v11, v11
v_or_b32 v11, 0x80000000, v11
v_xor_b32 v10, v10, v11
v_and_b32 v10, 0xffff0000, v10
v_mul_f32 v10, 0xbfb8aa3b, v10
v_exp_f32 v10, v10
s_mov_b32 s58, {SPIN}
v_add_f32 v10, 1.0, v10
v_rcp_f32 v10, v10
s_mov_b32 s59, {p.hint_max}
v_cvt_pk_bf16_f32 v10, v10, v10
v_and_b32 v7, 0xffff0000, v10
s_mov_b32 exec_lo, 0x0fffffff
s_mov_b32 exec_hi, 0
L_hint:
buffer_load_dword v8, v41, s[28:31], s48 offen sc1
s_sub_u32 s59, s59, 1
s_cbranch_scc1 L_hint_done
s_waitcnt vmcnt(0)
v_cmp_ne_u32 vcc, s52, v8
s_cbranch_vccnz L_hint
L_hint_done:
s_mov_b64 exec, -1
s_waitcnt vmcnt(0)
v_lshlrev_b32 v6, 16, v6""")
    if p.red_delay: a(f"s_sleep {p.red_delay}")
    stamp(2)
    if st: a("s_mov_b32 s72, 0\ns_mov_b32 s73, 0")
    a("L_poll3:")
    for i in range(7):
        a(f"buffer_load_dwordx4 v[{8+4*i}:{11+4*i}], v3, s[36:39], s{60+i} offen sc1")
    a("s_sub_u32 s58, s58, 1\ns_cbranch_scc1 L_poll3_done")
    a(f"""s_waitcnt vmcnt(5)
v_xor_b32 v8, v8, v40
v_xor_b32 v12, v12, v40
v_or_b32 v36, v8, v12
v_pk_add_f32 v[8:9], v[8:9], v[12:13]
v_pk_add_f32 v[10:11], v[10:11], v[14:15]""")
    for i in range(2, 7):
        a(f"""s_waitcnt vmcnt({6-i})
v_xor_b32 v{8+4*i}, v{8+4*i}, v40
v_pk_add_f32 v[10:11], v[10:11], v[{10+4*i}:{11+4*i}]
v_pk_add_f32 v[8:9], v[8:9], v[{8+4*i}:{9+4*i}]""")
        if i == 6: a(f"v_bitop3_b32 v36, v36, v{8+4*i}, 15 bitop3:0xa8")
        else: a(f"v_or_b32 v36, v36, v{8+4*i}")
    if st: a(f"""s_memrealtime s[100:101]
s_mov_b32 s74, s73
s_mov_b32 s73, s72
s_waitcnt lgkmcnt(0)
s_mov_b32 s72, s100
v_writelane_b32 v{SV}, s73, 7
v_writelane_b32 v{SV}, s74, 8""")
    a(f"""v_cmp_ne_u32 vcc, 0, v36
v_permlane32_swap_b32 v8, v9
s_cbranch_vccnz L_poll3
L_poll3_done:""")
    stamp(3)
    a(f"""v_permlane32_swap_b32 v10, v11
v_add_f32 v8, v8, v9
v_add_f32 v10, v10, v11
s_nop 1
v_permlane16_swap_b32 v8, v10
v_add_f32 v8, v8, v10
s_nop 1
v_add_f32_dpp v5, v8, v8 row_ror:8 row_mask:0xf bank_mask:0xf
s_mov_b32 exec_lo, 0x00ff00ff
s_mov_b32 exec_hi, 0x00ff00ff
v_cvt_pk_bf16_f32 v5, v5, v5
v_and_b32 v5, 0xffff0000, v5
v_mul_f32 v5, v5, v7
v_cvt_pk_bf16_f32 v5, v5, v5
v_and_b32 v5, 0xffff0000, v5
v_add_f32 v5, v5, v6
v_cvt_pk_bf16_f32 v5, v5, v5
global_store_short v4, v5, s[14:15] {p.fmod}""")
    stamp(4)
    if st: a("s_waitcnt vmcnt(0)"); stamp(5)
    stamp_out()
    a("s_endpgm")

    sec("AGG")
    a(f"""L_AGG:
s_setprio 3
s_and_b32 s32, s2, 7
v_lshlrev_b32 v1, 7, v0              ; lane*128
s_lshl_b32 s33, s32, 13
s_add_u32 s33, s33, {WS_RES}
s_lshl_b32 s34, s32, 8
s_add_u32 s34, s34, {WS_RESF}
s_bfe_u32 s53, s2, 0x20003
s_mul_i32 s36, s32, {KSTR}
s_add_u32 s36, s36, {WS_KEYS}""")
    ws_srd()
    if p.touch == 0: a(f"""s_cmp_lg_u32 s53, 0
s_cbranch_scc1 L_notouch
buffer_load_dword v3, v1, s[28:31], s33 offen sc1
L_notouch:""")
    a(f"""; expected id bits of entry p = 4*lane + e : (255-p)<<3
v_lshlrev_b32 v93, 5, v0
v_sub_u32 v88, {255*8}, v93
v_subrev_u32 v89, 8, v88
v_subrev_u32 v90, 16, v88
v_subrev_u32 v91, 24, v88
v_lshlrev_b32 v2, 4, v0
v_add_u32 v4, {p.xoff+3}, v0
v_and_b32 v4, 7, v4
v_cmp_ne_u32 vcc, 7, v4
v_cmp_gt_u32 s[58:59], 32, v0
v_lshl_add_u32 v4, v4, 5, v0
v_lshlrev_b32 v4, 3, v4
v_sub_u32 v4, {255*8}, v4
s_and_b64 s[58:59], s[58:59], vcc
v_cndmask_b32 v72, 0, -1, s[58:59]
v_and_b32 v73, v4, v72
v_and_b32 v74, 31, v0
v_lshlrev_b32 v74, 3, v74""")
    tags_from_epoch()
    a(f"""v_mov_b32 v83, s52
s_mov_b32 s52, {SPIN}
v_mov_b32 v82, 0
v_mov_b32 v70, 0
v_mov_b32 v71, 0
v_mov_b32 v92, 0x07060302
v_mov_b32 v94, 0x05040100
s_mov_b32 s55, 0x07ff07ff
s_mov_b64 s[56:57], -1
s_barrier                            ; B""")
    if p.agg_dx and p.relief: a(f"""s_cmp_lg_u32 s32, {(4 - p.xoff) & 7}
s_cbranch_scc1 L_aggd
s_sleep {p.agg_dx}
L_aggd:""")
    if p.agg_d0: a(f"s_sleep {p.agg_d0}")
    if p.agg_d1:
        for k in range(3): a(f"s_cmp_eq_u32 s53, {k}\ns_cbranch_scc1 L_aggo\ns_sleep {p.agg_d1}")
    if p.agg_d1: a("L_aggo:")
    stamp(1)
    def merge():
        for k, ctrl in enumerate(("quad_perm:[1,0,3,2]", "quad_perm:[2,3,0,1]", "row_half_mirror")):
            s1, s2 = ("v70", "v71") if k == 0 else ("v76", "v77")
            a(f"""s_nop {1 if k == 0 else 0}
v_min_u32_dpp v84, {s1}, {s1} {ctrl} row_mask:0xf bank_mask:0xf
v_max_u32_dpp v85, {s2}, {s2} {ctrl} row_mask:0xf bank_mask:0xf
v_max_u32_dpp v76, {s1}, {s1} {ctrl} row_mask:0xf bank_mask:0xf
v_max_u32 v77, v84, v85""")
        a("""s_nop 0
v_min_u32_dpp v84, v76, v76 row_mirror row_mask:0xf bank_mask:0xf
v_max_u32_dpp v85, v77, v77 row_mirror row_mask:0xf bank_mask:0xf
v_max_u32_dpp v78, v76, v76 row_mirror row_mask:0xf bank_mask:0xf
v_max_u32_dpp v76, v76, v76 row_mirror row_mask:0xf bank_mask:0xf
v_max_u32 v79, v84, v85
v_max_u32 v77, v84, v85
v_permlane16_swap_b32 v76, v78
s_nop 0
v_permlane16_swap_b32 v77, v79
v_min_u32 v84, v76, v78
v_max_u32 v86, v76, v78
v_max_u32 v76, v76, v78
v_max3_u32 v87, v77, v79, v84
v_max3_u32 v77, v77, v79, v84
v_permlane32_swap_b32 v76, v86
s_nop 0
v_permlane32_swap_b32 v77, v87
v_min_u32 v84, v76, v86
v_max_u32 v76, v76, v86
v_max3_u32 v77, v77, v87, v84
v_perm_b32 v80, v76, v77, v94
v_bitop3_b32 v80, v80, s55, v80 bitop3:0x0c""")
    def xprefetch():
        a("""v_bfe_u32 v4, v80, 16, 11
v_and_b32 v5, 0x7ff, v80
v_lshl_or_b32 v4, v4, 11, v2
v_lshl_or_b32 v5, v5, 11, v2
global_load_dwordx4 v[8:11], v4, s[4:5]
global_load_dwordx4 v[12:15], v5, s[4:5]
global_load_dwordx4 v[16:19], v4, s[4:5] offset:1024
global_load_dwordx4 v[20:23], v5, s[4:5] offset:1024""")
    a("""L_poll1:
buffer_load_dwordx4 v[60:63], v93, s[28:31], s36 offen sc1
buffer_load_dwordx4 v[64:67], v93, s[28:31], s36 offen offset:16 sc1
buffer_load_dwordx2 v[68:69], v74, s[28:31], s36 offen offset:2048 sc1
s_sub_u32 s52, s52, 1
s_cbranch_scc1 L_poll1_done
s_cmp_lg_u64 s[56:57], -1
s_cbranch_scc1 L_spec
s_waitcnt vmcnt(0)
L_specdone:""")
    with cold():
        a("; while the next look is in flight, warm this die's L2 with the rows that lead so far\nL_spec:\ns_mov_b64 exec, -1")
        merge(); xprefetch()
        a("s_mov_b64 exec, s[56:57]\ns_waitcnt vmcnt(4)\ns_branch L_specdone")
    stamp_idx(SPIN+3, 52)
    for e in range(4):
        a(f"v_xor_b32 v{60+2*e}, s50, v{60+2*e}\nv_xor_b32 v{61+2*e}, s51, v{61+2*e}")
    tt = ((0xF0 ^ 0xAA) | (0xCC ^ 0xAA)) & 0xFF
    a("v_bitop3_b32 v68, v68, s50, v72 bitop3:0x28\nv_bitop3_b32 v69, v69, s51, v72 bitop3:0x28")
    for e in range(4):
        a(f"v_bitop3_b32 v{84+e}, v{60+2*e}, v{61+2*e}, v{88+e} bitop3:{tt:#x}")
    a(f"""v_bitop3_b32 v75, v68, v69, v73 bitop3:{tt:#x}
v_or3_b32 v84, v84, v85, v86
v_or3_b32 v84, v84, v87, v75
v_and_b32 v84, {MASK:#x}, v84
v_cmp_ne_u32 vcc, 0, v84
v_min_u32 v84, v60, v62
v_max_u32 v60, v60, v62
v_max3_u32 v61, v61, v63, v84
v_min_u32 v85, v64, v66
v_max_u32 v64, v64, v66
v_max3_u32 v65, v65, v67, v85
v_min_u32 v85, v64, v68
v_max_u32 v64, v64, v68
v_max3_u32 v65, v65, v69, v85
s_andn2_b64 exec, exec, vcc
v_min_u32 v84, v60, v64
v_max_u32 v70, v60, v64
v_max3_u32 v71, v61, v65, v84
s_and_b64 s[56:57], s[56:57], vcc
s_mov_b64 exec, s[56:57]
s_cbranch_scc1 L_poll1
L_poll1_done:
s_mov_b64 exec, -1""")
    stamp(2)
    merge()
    a(f"""v_lshlrev_b32 v84, 5, v76
v_lshlrev_b32 v85, 5, v77
v_perm_b32 v81, v84, v85, v92
buffer_store_dwordx4 v[80:83], v1, s[28:31], s33 offen""")
    xprefetch()
    a(f"""v_mov_b32 v3, 0
s_mov_b64 exec, 1
buffer_store_dwordx4 v[80:83], v3, s[28:31], s34 offen sc1""")
    stamp(3)
    a(f"""s_cmp_lg_u32 s2, 224
s_cbranch_scc1 L_agg_done
""")
    a(f"""s_add_u32 s46, s46, 1
v_mov_b32 v85, s46
buffer_store_dword v85, v3, s[28:31], 0 offen sc1
L_agg_done:""")
    stamp_out()
    a("s_endpgm")

    order = p.order.split(",")
    assert sorted(order) == sorted(S.keys()), (order, list(S.keys()))
    body = ""
    for k, name in enumerate(order):
        t = S[name].text()
        if k + 1 < len(order):
            nxt = S[order[k+1]].lines[0].strip()
            lines = t.rstrip("\n").split("\n")
            if lines[-1].strip() == "s_branch " + nxt.rstrip(":"): t = "\n".join(lines[:-1]) + "\n"
        body += f"; ---------------------------------------------------------------- {name}\n" + t
    body += "L_end:\n    s_endpgm\n"
    meta = dict(nwg=256, nwave=9, nst=12) if st else (dict(light=1) if p.light else None)
    txt = kernel_file(body, 256, 576, L_END, 104 if st else 96, meta=meta, extra_comment=DOC)
    if p.align > 8: txt = txt.replace(".text\n", f".text\n.p2align {p.align}\n", 1)
    return txt

if __name__ == "__main__":
    p = P()
    out = sys.argv[1]
    for kv in sys.argv[2:]:
        k, v = kv.split("=")
        assert hasattr(P, k), k
        setattr(p, k, type(getattr(P, k))(eval(v)) if not isinstance(getattr(P, k), str) else v.replace("+", " "))
    open(out, "w").write(gen(p))
```
